```python
import torch

def _softmax(x, axis=-1):
    return torch.softmax(x, dim=axis)
def _gelu(x):
    return torch.nn.functional.gelu(x, approximate="tanh")
def _silu(x):
    return torch.nn.functional.silu(x)
def _sigmoid(x):
    return torch.sigmoid(x)
def _layernorm(x, axis=-1, eps=1e-5):
    m = x.mean(dim=axis, keepdim=True)
    v = x.var(dim=axis, keepdim=True, unbiased=False)
    return (x - m) / torch.sqrt(v + eps)
def _scatter_add(tgt, idx, src, axis=0):
    return tgt.clone().index_add_(axis, idx, src)
def _segment_sum(src, seg, n):
    out = torch.zeros((n,) + src.shape[1:], dtype=src.dtype)
    return out.index_add_(0, seg, src)
def _pad(x, pw):
    flat = tuple(v for pair in reversed(pw) for v in pair)
    return torch.nn.functional.pad(x, flat)

kernel_name = 'gated_mix__ssm_conv_s4d__ssm_conv_s4d__prompt'

def setup_inputs():

    _w = (lambda a: (lambda t: t.to(torch.bfloat16) if t.is_floating_point() else t)(torch.as_tensor(a)))
    def _A_setup():
        Bsz, L, D, N = 1, 2048, 512, 128
        return {
            "u": _w((lambda *s: torch.randn(*s, dtype=torch.bfloat16) * 0.05)(Bsz, L, D)),
            "log_A_real": _w((lambda *s: torch.randn(*s, dtype=torch.bfloat16) * 6.4)(D, N) * 0.5),
            "A_imag": _w((lambda *s: torch.randn(*s, dtype=torch.bfloat16) * 0.05)(D, N) * 3.14),
            "C_real": _w((lambda *s: torch.randn(*s, dtype=torch.bfloat16) * 0.05)(D, N) / N ** 0.5),
            "C_imag": _w((lambda *s: torch.randn(*s, dtype=torch.bfloat16) * 0.05)(D, N) / N ** 0.5),
            "log_dt": _w((lambda *s: torch.randn(*s, dtype=torch.bfloat16) * 0.05)(D) * 0.5 - 4.0),
            "D_skip": _w((lambda *s: torch.randn(*s, dtype=torch.bfloat16) * 0.05)(D)),
        }
    _A_in = _A_setup()

    def _B_setup():
        Bsz, L, D, N = 1, 2048, 512, 128
        return {
            "u": _w((lambda *s: torch.randn(*s, dtype=torch.bfloat16) * 0.05)(Bsz, L, D)),
            "log_A_real": _w((lambda *s: torch.randn(*s, dtype=torch.bfloat16) * 6.4)(D, N) * 0.5),
            "A_imag": _w((lambda *s: torch.randn(*s, dtype=torch.bfloat16) * 0.05)(D, N) * 3.14),
            "C_real": _w((lambda *s: torch.randn(*s, dtype=torch.bfloat16) * 0.05)(D, N) / N ** 0.5),
            "C_imag": _w((lambda *s: torch.randn(*s, dtype=torch.bfloat16) * 0.05)(D, N) / N ** 0.5),
            "log_dt": _w((lambda *s: torch.randn(*s, dtype=torch.bfloat16) * 0.05)(D) * 0.5 - 4.0),
            "D_skip": _w((lambda *s: torch.randn(*s, dtype=torch.bfloat16) * 0.05)(D)),
        }
    _B_in = _B_setup()

    return {
        "A_u": _A_in["u"],
        "A_log_A_real": _A_in["log_A_real"],
        "A_A_imag": _A_in["A_imag"],
        "A_C_real": _A_in["C_real"],
        "A_C_imag": _A_in["C_imag"],
        "A_log_dt": _A_in["log_dt"],
        "A_D_skip": _A_in["D_skip"],
        "B_u": _B_in["u"],
        "B_log_A_real": _B_in["log_A_real"],
        "B_A_imag": _B_in["A_imag"],
        "B_C_real": _B_in["C_real"],
        "B_C_imag": _B_in["C_imag"],
        "B_log_dt": _B_in["log_dt"],
        "B_D_skip": _B_in["D_skip"],
        "gate_w": _w((lambda *s: torch.randn(*s, dtype=torch.bfloat16) * 0.05)(512) * 16.0),
    }

def reference(A_u, A_log_A_real, A_A_imag, A_C_real, A_C_imag, A_log_dt, A_D_skip, B_u, B_log_A_real, B_A_imag, B_C_real, B_C_imag, B_log_dt, B_D_skip, gate_w):
    def _A_ref(u, log_A_real, A_imag, C_real, C_imag, log_dt, D_skip):
        L = u.shape[1]
        dt = torch.exp(log_dt)
        A = -torch.exp(log_A_real) + 1j * A_imag
        C = (C_real + 1j * C_imag) * dt[:, None]
        pos = (lambda x, dt: x.to(dt))(torch.arange(L), log_dt.dtype)
        P = torch.exp((A * dt[:, None])[:, :, None] * pos[None, None, :])
        K = 2.0 * torch.einsum("dn,dnl->dl", C, P).real
        L2 = 2 * L
        u_t = (lambda x, *d: x.permute(*d))(u, 0, 2, 1)
        Kf = (lambda x, *a, **k: torch.fft.rfft(x.float(), *a, **k))(K, L2)
        Uf = (lambda x, *a, **k: torch.fft.rfft(x.float(), *a, **k))(u_t, L2)
        y = (lambda x, *a, **k: torch.fft.irfft(x, *a, **k).to(torch.bfloat16))(Uf * Kf[None, :, :], L2)[:, :, :L]
        y = (lambda x, *d: x.permute(*d))(y, 0, 2, 1)
        return y + u * D_skip[None, None, :]

    def _B_ref(u, log_A_real, A_imag, C_real, C_imag, log_dt, D_skip):
        L = u.shape[1]
        dt = torch.exp(log_dt)
        A = -torch.exp(log_A_real) + 1j * A_imag
        C = (C_real + 1j * C_imag) * dt[:, None]
        pos = (lambda x, dt: x.to(dt))(torch.arange(L), log_dt.dtype)
        P = torch.exp((A * dt[:, None])[:, :, None] * pos[None, None, :])
        K = 2.0 * torch.einsum("dn,dnl->dl", C, P).real
        L2 = 2 * L
        u_t = (lambda x, *d: x.permute(*d))(u, 0, 2, 1)
        Kf = (lambda x, *a, **k: torch.fft.rfft(x.float(), *a, **k))(K, L2)
        Uf = (lambda x, *a, **k: torch.fft.rfft(x.float(), *a, **k))(u_t, L2)
        y = (lambda x, *a, **k: torch.fft.irfft(x, *a, **k).to(torch.bfloat16))(Uf * Kf[None, :, :], L2)[:, :, :L]
        y = (lambda x, *d: x.permute(*d))(y, 0, 2, 1)
        return y + u * D_skip[None, None, :]

    x = A_u
    g = _sigmoid((x * gate_w).sum(-1, keepdims=True))
    a = _A_ref(x, A_log_A_real, A_A_imag, A_C_real, A_C_imag, A_log_dt, A_D_skip)
    b = _B_ref(x, B_log_A_real, B_A_imag, B_C_real, B_C_imag, B_log_dt, B_D_skip)
    return g * a + (1 - g) * b
```

```python
import re, copy
TRANS = ("v_exp_f32", "v_log_f32", "v_rcp_f32", "v_rsq_f32", "v_sqrt_f32", "v_sin_f32", "v_cos_f32")
_reg = re.compile(r"(?<![\w.])(-?\|?)([vs])(\d+)\b|(?<![\w.])(-?)([vs])\[(\d+):(\d+)\]|\b(vcc|exec|m0|scc)\b")

def regs_of(op):
    out = []
    for m in _reg.finditer(op):
        if m.group(2): out.append((m.group(2), int(m.group(3))))
        elif m.group(5): out += [(m.group(5), i) for i in range(int(m.group(6)), int(m.group(7)) + 1)]
        else: out.append(("x", m.group(8)))
    return out

def split_ops(s):
    out, depth, cur = [], 0, ""
    for ch in s:
        if ch == "[": depth += 1
        if ch == "]": depth -= 1
        if ch == "," and depth == 0: out.append(cur.strip()); cur = ""
        else: cur += ch
    if cur.strip(): out.append(cur.strip())
    return out

class Ins:
    def __init__(self, text):
        self.text = text
        t = text.split(";")[0].strip()
        p = t.split(None, 1)
        self.mn = mn = p[0]
        rest = p[1] if len(p) > 1 else ""
        ops = split_ops(rest)
        if ops:
            last = ops[-1].split()
            ops[-1] = last[0]; self.mods = " ".join(last[1:])
        else: self.mods = ""
        self.ops = ops
        R = [regs_of(o) for o in ops]
        flat = lambda L: [r for x in L for r in x]
        self.kind = "other"; self.w = []; self.r = []; self.passes = 0
        if mn.startswith("v_mfma"):
            self.kind = "mfma"; self.w = R[0]; self.r = flat(R[1:]); self.A, self.B, self.C = R[1], R[2], R[3]
            self.passes = 8 if "32x32x16" in mn else 4
        elif mn.startswith("ds_"):
            self.kind = "ds"
            if mn.startswith("ds_read") : self.w = R[0]; self.r = flat(R[1:])
            else: self.r = flat(R)
            if "addtid" in mn: self.r.append(("x", "m0"))
        elif mn.startswith(("global_", "buffer_")):
            self.kind = "vmem"
            if "_load" in mn and "lds" not in self.mods.split(): self.w = R[0]; self.r = flat(R[1:])
            elif "atomic" in mn and "sc0" in self.mods.split(): self.w = R[0]; self.r = flat(R[1:])
            else: self.r = flat(R)
            if "lds" in self.mods.split(): self.r.append(("x", "m0"))
            self.wide_store = "store_dwordx4" in mn or "store_dwordx3" in mn
        elif mn.startswith(("s_load", "s_memrealtime", "s_memtime")):
            self.kind = "smem"; self.w = R[0]; self.r = flat(R[1:])
        elif mn.startswith("v_"):
            self.kind = "valu"; self.w = R[0]; self.r = flat(R[1:])
            if mn.startswith(("v_fmac", "v_dot2c", "v_permlane", "v_writelane")) or "_dpp" in mn: self.r = self.r + R[0]
            if mn.startswith("v_permlane"): self.w = R[0] + R[1]
            if mn.startswith(("v_add_co", "v_addc_co", "v_sub_co")): self.w = R[0] + R[1]; self.r = flat(R[2:])
            if mn.startswith("v_cndmask") and len(ops) == 3: self.r.append(("x", "vcc"))
        elif mn.startswith("s_"):
            self.kind = "salu"
            if mn.startswith(("s_cmp", "s_cbranch", "s_branch", "s_barrier", "s_waitcnt", "s_nop", "s_endpgm", "s_sleep", "s_setprio")): self.r = flat(R)
            else: self.w = R[0] if R else []; self.r = flat(R[1:])
            if "saveexec" in mn: self.w = self.w + [("x", "exec")]
        self.ws = 1
        if mn == "s_nop": self.ws = int(ops[0]) + 1
        self.trans = mn.replace("_e32", "").replace("_e64", "") in TRANS
        self.dpp = "_dpp" in mn
        self.lane = mn.startswith(("v_readlane", "v_readfirstlane"))
        self.perml = mn.startswith("v_permlane")

def ov(a, b): return bool(set(a) & set(b))
isv = lambda L: [r for r in L if r[0] == "v"]
iss = lambda L: [r for r in L if r[0] == "s" or r == ("x", "vcc")]

def need(p, c):
    n = 0
    if p.kind == "valu":
        wv, wsg = isv(p.w), iss(p.w)
        if c.kind == "mfma" and ov(wv, c.r): n = max(n, 2)
        if c.kind == "valu":
            if p.trans and ov(wv, c.r): n = max(n, 1)
            if c.lane and ov(wv, c.r): n = max(n, 1)
            if (c.dpp or c.perml) and ov(wv, c.r): n = max(n, 2)
            if ov(wsg, c.r): n = max(n, 4 if c.lane else 2)
        if c.kind == "vmem" and ov(wsg, c.r): n = max(n, 5)
        if p.mn.startswith("v_dot") and (ov(wv, c.r) or ov(wv, c.w)):
            chain = c.mn == p.mn and len(c.ops) == 4 and regs_of(c.ops[3]) == wv and not ov(wv, regs_of(c.ops[1]) + regs_of(c.ops[2]))
            if not chain: n = max(n, 3)
    if p.kind == "mfma":
        big = 12 if p.passes == 8 else 8
        if c.kind == "mfma":
            if ov(p.w, c.A) or ov(p.w, c.B): n = max(n, big)
            if ov(p.w, c.C) and not (p.w == c.C and p.passes == c.passes): n = max(n, big - 2)
            if ov(p.w, c.w) and not (p.w == c.C): n = max(n, big)
        elif c.kind in ("valu", "ds", "vmem"):
            if ov(p.w, c.r) or ov(p.w, c.w): n = max(n, big)
            if c.kind == "valu" and ov(p.C, c.w): n = max(n, 7 if p.passes == 8 else 3)
    if p.kind == "salu" and ("x", "m0") in p.w and ("x", "m0") in c.r: n = max(n, 1)
    if p.kind == "vmem" and getattr(p, "wide_store", False) and ov(isv(p.r), c.w): n = max(n, 2)
    return n

class Asm:
    def __init__(self):
        self.lines = []; self.hist = []; self.lg = []; self.vm = []; self.nins = 0; self.nops = 0
    def raw(self, s): self.lines.append(s)
    def snapshot(self): return (copy.copy(self.hist), copy.copy(self.lg), copy.copy(self.vm))
    def restore(self, s): self.hist, self.lg, self.vm = copy.copy(s[0]), copy.copy(s[1]), copy.copy(s[2])
    def label(self, name, snap=None):
        self.lines.append(name + ":")
        if snap is not None: self.restore(snap)
    def _emit(self, ins):
        self.lines.append("    " + ins.text); self.hist.append(ins); self.hist = self.hist[-24:]; self.nins += 1
    def wait(self, vm=None, lg=None):
        parts = []
        if vm is not None and len(self.vm) > vm:
            vm = min(vm, 63); parts.append(f"vmcnt({vm})"); self.vm = self.vm[len(self.vm) - vm:] if vm else []
        if lg is not None and len(self.lg) > lg:
            lg = min(lg, 15)
            if any(q.kind == "smem" for q in self.lg): lg = 0
            parts.append(f"lgkmcnt({lg})"); self.lg = self.lg[len(self.lg) - lg:] if lg else []
        if parts: self._emit(Ins("s_waitcnt " + " ".join(parts)))
    def I(self, text, track=True):
        for t in text.strip().split("\n"):
            t = t.strip()
            if t and not t.startswith(";"): self._one(t, track)
            elif t: self.lines.append("    " + t)
    def _one(self, text, track):
        c = Ins(text)
        touched = c.r + c.w
        vm = lg = None
        for i, q in enumerate(self.vm):
            if ov(q.w, touched): vm = len(self.vm) - 1 - i
        for i, q in enumerate(self.lg):
            if ov(q.w, touched): lg = len(self.lg) - 1 - i
        self.wait(vm, lg)
        dist, n = 0, 0
        for p in reversed(self.hist):
            n = max(n, need(p, c) - dist); dist += p.ws
            if dist > 20: break
        if n > 0:
            self._emit(Ins(f"s_nop {n-1}")); self.nops += 1
        self._emit(c)
        if track:
            if c.kind == "vmem": self.vm.append(c)
            elif c.kind in ("ds", "smem"): self.lg.append(c)
    def text(self): return "\n".join(self.lines) + "\n"

def merge(main, side, start=0, every=1):
    out, j = [], 0
    for i, m in enumerate(main):
        out.append(m)
        if i >= start and (i - start) % every == 0 and j < len(side): out.append(side[j]); j += 1
    return out + side[j:]
```

```python
import sys, struct
from asmlib import Asm, merge
KN = "gated_mix__ssm_conv_s4d__ssm_conv_s4d__prompt"

class Cfg:
    stamps = False
    foldD = False
    dump = None

ROW = 272
SCRW = 57 * ROW
UB = 4 * SCRW; USTR = 4608
WB = UB + 2 * USTR; WSTR = 10448
W5O, W3O, W9O, W7O = 0, 3192, 6288, 8384
RB = WB + 2 * WSTR
KB = RB + 16384; KSTR = 7168
RDS = 1344; R4O = 5376; R8O = 5888
FLAG = KB + 4 * KSTR
LDS_BYTES = FLAG + 32
P0 = 540
def drow_hi(rho):
    q, hh, i = rho >> 3, (rho >> 2) & 1, rho & 3
    if q == 0: return 4 * hh + i
    if q == 1: return 4 * hh + 4 + min(i, 2)
    if q == 2: return 256 + 4 * hh + 2 * i
    return [[520, 516, 1032, 1544], [776, 772, 1288, 1800]][hh][i]
G1 = [0, 1, 2, 3, 8, 9, 10, 264, 266, 520, 516, 1032, 1544, 260, 262]
G2 = [4, 5, 6, 7, 256, 258, 776, 772, 1288, 1800]
HSLOT = {h: i for i, h in enumerate(G1 + G2)}
HTREE = [(1, 0, 1), (2, 0, 2), (3, 2, 1), (4, 0, 4), (5, 4, 1), (6, 4, 2), (7, 6, 1), (8, 0, 8), (9, 8, 1), (10, 8, 2),
         (256, 0, 256), (258, 2, 256), (260, 4, 256), (262, 6, 256), (264, 8, 256), (266, 10, 256),
         (516, 4, 512), (520, 8, 512), (772, 516, 256), (776, 520, 256), (1032, 8, 1024), (1288, 264, 1024), (1544, 520, 1024), (1800, 776, 1024)]

def tables():
    comp, io = [], []
    for l in range(64):
        a, g = l & 15, l >> 4
        r, hh = l & 31, l >> 5
        b = a; s = b & 3
        rr, cq = (l & 15) >> 2, l & 3
        c = [r * ROW + 16 * hh,
             (32 + HSLOT[drow_hi(r)]) * ROW + 16 * hh,
             2 * P0 - 16 * r - 8 * hh - 520,
             R4O + 380 - 4 * l,
             R8O + 258 - 2 * l - 128,
             s * RDS + 2 * (P0 - 16 - (b - s) + 8 * g) - 1024,
             R4O + 120 + 16 * g - 8 * a,
             R8O + (a & 1) * 388 + 16 * g - 4 * a + 64,
             UB + 32 * a + 16 * g,
             WB + ((W3O + 8) if rr & 1 else W5O) + 16 * (4 * g + (rr >> 1)) + 8 * cq,
             WB + ((W7O + 16) if rr & 1 else W9O) + 32 * (4 * g + (rr >> 1)) + 8 * cq,
             RB + 8 * l]
        def frag(pred, val):
            out = []
            for d in range(4):
                lo = val if pred(8 * g + 2 * d) else 0
                hi = val if pred(8 * g + 2 * d + 1) else 0
                out.append(lo | hi << 16)
            return out
        c += frag(lambda e: e in (b + 12, b + 13), 0xffff)
        c += frag(lambda e: e == b + 16, 0xffff)
        comp.append(c)
        t = []
        for tau, w in ((8, 2), (12, 1), (8, 4), (8, 3)):
            t += frag(lambda e: abs(tau + b - e) <= w, 0x3f80)
        zl = l % 24
        t += [UB + 480 + 8 * l,
              UB + 32 * a + 16 * g + 448,
              WB + 32 * a + 8 * g,
              RB + 8 * l,
              64 * a + 16 * g,
              (16 * a + 4 * g) * 1024,
              WB + (zl // 12) * WSTR + [W5O, W3O, W9O][(zl % 12) // 4] + 8 * (zl % 4),
              UB + 448 + 2 * a]
        io.append(t)
    def lay(tb):
        n = len(tb[0]) // 4
        return [tb[l][4 * k + j] & 0xffffffff for k in range(n) for l in range(64) for j in range(4)]
    return lay(comp), lay(io)

def gen(cfg=Cfg):
    A = Asm(); I = A.I
    head = open("cdna_kernels/" + KN + ".s.ref").read().split("; Override launch")[0]
    A.raw(head.rstrip())
    A.raw(f"; @launch grid=(256,1,1) block=(512,1,1) lds={LDS_BYTES}")
    A.raw('.amdgcn_target "amdgcn-amd-amdhsa--gfx950"\n.text')
    A.raw(f".globl {KN}_kernel\n.p2align 8\n.type {KN}_kernel,@function\n{KN}_kernel:")
    nst = [0]
    def stamp():
        if cfg.stamps:
            I(f"s_memrealtime s[{64+2*nst[0]}:{65+2*nst[0]}]", track=False); nst[0] += 1
    def stamp_out():
        if cfg.stamps:
            n = nst[0]
            I("s_load_dwordx2 s[98:99], s[0:1], 136"); A.wait(lg=0); I("s_waitcnt lgkmcnt(0)")
            I("s_lshl_b32 s97, s2, 3\ns_add_u32 s97, s97, s3\ns_lshl_b32 s97, s97, 6\ns_add_u32 s97, s97, 0x100000\nv_mov_b32 v250, s97")
            I("s_mov_b64 exec, 1")
            for i in range(n):
                I(f"v_mov_b32 v251, s{64+2*i}\nglobal_store_dword v250, v251, s[98:99] offset:{4*i}")
    stamp()
    I("""s_cmp_ge_u32 s2, 0x100
         s_cbranch_scc1 L_end
         v_lshrrev_b32 v1, 6, v0
         v_and_b32 v0, 63, v0
         v_readfirstlane_b32 s3, v1
         s_getpc_b64 s[6:7]""")
    A.raw("L_pc:")
    I("""s_and_b32 s4, s2, 7
         s_lshl_b32 s4, s4, 5
         s_lshr_b32 s5, s2, 3
         s_add_u32 s44, s4, s5
         s_cmp_ge_u32 s3, 4
         s_cbranch_scc1 L_io""")
    snap_io = A.snapshot(); nst_io = nst[0]

    vLR, vAI, vCR, vCI = 1, 2, 3, 4
    T = 8
    aL, aH, aKW, aR4W, aR8W, aMD, aM4, aM8, aX, aW2, aW3, aR = range(T, T + 12)
    mSp, mD = T + 12, T + 16
    I("""s_lshr_b32 s45, s3, 1
         s_and_b32 s46, s3, 1
         s_mul_i32 s4, s45, 56
         s_add_u32 s48, s0, s4
         s_addc_u32 s49, s1, 0
         s_load_dwordx8 s[8:15], s[48:49], 8
         s_load_dwordx4 s[16:19], s[48:49], 40
         s_lshl_b32 s4, s44, 1
         s_add_u32 s4, s4, s46
         s_lshl_b32 s4, s4, 8
         v_lshl_add_u32 v5, v0, 2, s4
         s_add_u32 s6, s6, L_tabc-L_pc
         s_addc_u32 s7, s7, 0
         v_lshlrev_b32 v6, 4, v0
         s_lshl_b32 s47, s44, 2""")
    I(f"""global_load_dword v{vLR}, v5, s[8:9]
         global_load_dword v{vAI}, v5, s[10:11]
         global_load_dword v{vCR}, v5, s[12:13]
         global_load_dword v{vCI}, v5, s[14:15]
         s_load_dword s20, s[16:17], s47
         s_load_dword s21, s[18:19], s47""")
    for k in range(4): I(f"global_load_dwordx4 v[{T+4*k}:{T+4*k+3}], v6, s[6:7] offset:{1024*k}")
    I(f"v_add_u32 v7, 0x1000, v6\nglobal_load_dwordx4 v[{T+16}:{T+19}], v7, s[6:7]")
    I("s_barrier")
    I(f"""s_mul_i32 s22, s3, {SCRW}
         s_mul_i32 s23, s3, {KSTR}
         s_add_u32 s23, s23, {KB}
         s_mov_b32 m0, s22
         v_mov_b32 v28, 0
         v_mov_b32 v29, 0
         v_mov_b32 v30, 0
         v_mov_b32 v31, 0
         v_add_u32 v6, s23, v6
         v_mov_b32 v32, 0x3c00""")
    for k in range(7): I(f"ds_write_b128 v6, v[28:31] offset:{1024*k}")
    I(f"""ds_write_addtid_b32 v32 offset:0
         s_mov_b32 s24, 0x3fb8aa3b
         s_mov_b32 s26, 0x42000000
         s_mov_b32 s27, 0x42000000
         s_mov_b32 s28, 0
         s_mov_b32 s29, 0x80000000
         s_mul_i32 s30, s46, {USTR}
         s_mul_i32 s31, s46, {WSTR}
         s_lshl_b32 s32, s3, 12
         s_lshl_b32 s33, s46, 4""")
    I("""s_lshr_b32 s20, s20, s33
         s_lshl_b32 s20, s20, 16
         s_lshr_b32 s21, s21, s33
         s_and_b32 s21, s21, 0xffff
         v_mov_b32 v33, s20
         v_mul_f32 v33, s24, v33
         v_exp_f32 v33, v33
         v_cvt_pk_bf16_f32 v33, v33, v33
         v_lshlrev_b32 v33, 16, v33""")
    vDT = 33
    stamp()
    I(f"""v_and_b32 v34, 0x7fff7fff, v{vCR}
         v_and_b32 v35, 0x7fff7fff, v{vCI}
         v_pk_max_u16 v34, v34, v35
         v_lshrrev_b32 v35, 16, v34
         v_and_b32 v34, 0xffff, v34
         v_max_u32 v34, v34, v35""")
    red = [f"v_max_u32_dpp v34, v34, v34 {m}" for m in
           ("row_shr:1 row_mask:0xf bank_mask:0xf", "row_shr:2 row_mask:0xf bank_mask:0xf", "row_shr:4 row_mask:0xf bank_mask:0xf",
            "row_shr:8 row_mask:0xf bank_mask:0xf", "row_bcast:15 row_mask:0xa bank_mask:0xf", "row_bcast:31 row_mask:0xc bank_mask:0xf")]
    red += ["v_readlane_b32 s34, v34, 63", "s_lshr_b32 s34, s34, 7", "s_max_u32 s34, s34, 11",
            "s_sub_u32 s36, 264, s34", "s_lshl_b32 s36, s36, 23", "s_mov_b32 s37, s36",
            "s_sub_u32 s35, s34, 9", "s_lshl_b32 s35, s35, 23"]
    ZA, ZB, TP = 36, 38, 40
    AB = 42
    E1, E2 = 46, 48
    Wr = {p: 50 + i for i, p in enumerate((1, 2, 4, 8, 16, 32, 64, 128, 256, 512, 1024))}
    Lr = {r: 144 + r for r in range(1, 16)}
    for p in (8, 16, 32, 64): Lr[p // 8] = Wr[p]
    TMP = [160, 161, 162, 163]
    Hk = {h: 164 + i for i, h in enumerate((0, 2, 4, 6, 8, 10, 264, 516, 520, 776))}
    FA, FB, KA = 64, 96, 128
    def cm(dst, a, b, conj=False):
        if conj:
            return [f"v_pk_mul_f16 v{dst}, v{a}, v{b} op_sel_hi:[0,1] neg_hi:[0,1]",
                    f"v_pk_fma_f16 v{dst}, v{a}, v{b}, v{dst} op_sel:[1,1,0] op_sel_hi:[1,0,1]"]
        return [f"v_pk_mul_f16 v{dst}, v{a}, v{b} op_sel_hi:[0,1]",
                f"v_pk_fma_f16 v{dst}, v{a}, v{b}, v{dst} op_sel:[1,1,0] op_sel_hi:[1,0,1] neg_lo:[1,0,0]"]
    def sq(z):
        return [f"v_pk_mul_f32 v[{TP}:{TP+1}], v[{z}:{z+1}], v[{z}:{z+1}] op_sel_hi:[0,1]",
                f"v_pk_fma_f32 v[{z}:{z+1}], v[{z}:{z+1}], v[{z}:{z+1}], v[{TP}:{TP+1}] op_sel:[1,1,0] op_sel_hi:[1,0,1] neg_lo:[1,0,0]"]
    def half(h):
        up = (lambda d, s: f"v_and_b32 v{d}, 0xffff0000, v{s}") if h else (lambda d, s: f"v_lshlrev_b32 v{d}, 16, v{s}")
        S = [up(AB, vLR), f"v_mul_f32 v{AB}, s24, v{AB}", f"v_exp_f32 v{AB}, v{AB}", up(AB + 1, vAI),
             f"v_cvt_pk_bf16_f32 v{AB}, v{AB}, v{AB}", f"v_mul_f32 v{AB+1}, v{vDT}, v{AB+1}", f"v_lshlrev_b32 v{AB}, 16, v{AB}",
             f"v_mul_f32 v{AB+1}, 0.15915494, v{AB+1}", f"v_mul_f32_e64 v{AB}, -v{vDT}, v{AB}", f"v_fract_f32 v{TP}, v{AB+1}",
             f"v_mul_f32 v{AB}, s24, v{AB}", f"v_cos_f32 v{ZA}, v{TP}",
             f"v_pk_mul_f32 v[{AB+2}:{AB+3}], v[{AB}:{AB+1}], s[26:27]", f"v_sin_f32 v{ZA+1}, v{TP}",
             f"v_fract_f32 v{TP+1}, v{AB+3}", f"v_exp_f32 v{E1}, v{AB}", f"v_cos_f32 v{ZB}, v{TP+1}", f"v_exp_f32 v{E2}, v{AB+2}",
             f"v_sin_f32 v{ZB+1}, v{TP+1}",
             f"v_pk_mul_f32 v[{ZA}:{ZA+1}], v[{ZA}:{ZA+1}], v[{E1}:{E1+1}] op_sel_hi:[1,0]",
             f"v_pk_mul_f32 v[{ZB}:{ZB+1}], v[{ZB}:{ZB+1}], v[{E2}:{E2+1}] op_sel_hi:[1,0]"]
        cv = lambda p, z: f"v_cvt_pk_f16_f32 v{Wr[p]}, v{z}, v{z+1}"
        wl = lambda r, v: f"ds_write_addtid_b32 v{v} offset:{r*ROW}"
        wh = lambda hh, v: f"ds_write_addtid_b32 v{v} offset:{(32+HSLOT[hh])*ROW}"
        S += [cv(1, ZA), cv(32, ZB), wl(4, Wr[32])]
        for pa, pb in ((2, 64), (4, 128), (8, 256), (16, 512), (None, 1024)):
            if pa: S += sq(ZA) + [cv(pa, ZA)]
            S += sq(ZB) + [cv(pb, ZB)]
            if pa in (8, 16): S.append(wl(pa // 8, Wr[pa]))
            if pb in (64, 128): S.append(wl(pb // 8, Wr[pb]))
        n1 = len(S)
        k = 0
        for r in range(3, 32):
            top = 1 << (r.bit_length() - 1)
            if r == top: continue
            d = Lr[r] if r < 16 else TMP[k % 4]; k += 1
            S += cm(d, Lr[r - top], Wr[8 * top]) + [wl(r, d)]
        S += [up(TP, vCR), up(TP + 1, vCI), f"v_pk_mul_f32 v[{TP}:{TP+1}], v[{TP}:{TP+1}], s[36:37]",
              f"v_cvt_pk_f16_f32 v{Hk[0]}, v{TP}, -v{TP+1}", wh(0, Hk[0])]
        for hh, a, b in HTREE:
            d = Hk.get(hh) or TMP[k % 4]; k += 1
            S += cm(d, Hk[a], Wr[b], True) + [wh(hh, d)]
        return S, n1
    def frag_reads():
        R = []
        for s in range(8):
            R += [f"ds_read_b128 v[{FA+4*s}:{FA+4*s+3}], v{aH} offset:{32*s}", f"ds_read_b128 v[{FB+4*s}:{FB+4*s+3}], v{aL} offset:{32*s}"]
        return R
    def kmf(first):
        return [f"v_mfma_f32_32x32x16_f16 v[{KA}:{KA+15}], v[{FA+4*s}:{FA+4*s+3}], v[{FB+4*s}:{FB+4*s+3}], " +
                ("0" if first and s == 0 else f"v[{KA}:{KA+15}]") for s in range(8)]
    S0, n1 = half(0)
    for t in merge(S0, red, 2, 3): I(t)
    I(f"v_add_u32 v{aL}, s22, v{aL}\nv_add_u32 v{aH}, s22, v{aH}")
    for t in frag_reads(): I(t)
    stamp()
    S1, n1 = half(1)
    fix = [f"v_add_u32 v{x}, s23, v{x}" for x in (aKW, aR4W, aR8W, aMD, aM4, aM8)]
    fix += [f"v_add_u32 v{aX}, s30, v{aX}", f"v_add_u32 v{aW2}, s31, v{aW2}", f"v_add_u32 v{aW3}, s31, v{aW3}", f"v_add_u32 v{aR}, s32, v{aR}",
            f"v_mul_f32 v62, s35, v{vDT}"]
    for t in merge(S1, kmf(True), 24, 12): I(t)
    R = frag_reads()
    for t in R: I(t)
    for t in fix: I(t)
    stamp()
    for t in kmf(False): I(t)
    for i in range(0, 16, 2): I(f"v_pk_mul_f32 v[{KA+i}:{KA+i+1}], v[{KA+i}:{KA+i+1}], v[62:63] op_sel_hi:[1,0]")
    o = lambda i: f"v{KA+i}"
    I(f"v_cndmask_b32_e64 {o(5)}, {o(5)}, {o(4)}, s[28:29]\nv_cndmask_b32_e64 {o(11)}, {o(11)}, {o(10)}, s[28:29]")
    if cfg.foldD:
        I(f"s_lshl_b32 s38, s21, 16\ns_mov_b64 exec, 1\nv_add_f32 {o(0)}, s38, {o(0)}\ns_mov_b64 exec, -1")
    Q = 36
    def wcopy(q, pairs, s, lagoff):
        (a, b), (c, d) = pairs
        I(f"v_cvt_pk_bf16_f32 v{q}, {a}, {b}\nv_cvt_pk_bf16_f32 v{q+1}, {c}, {d}")
        I(f"ds_write_b64 v{aKW}, v[{q}:{q+1}] offset:{520 + s*RDS - (0 if s == 3 else 8) - 2*lagoff}")
    wcopy(Q, ((o(3), o(2)), (o(1), o(0))), 3, 0)
    wcopy(Q + 2, ((o(4), o(3)), (o(2), o(1))), 0, 0)
    wcopy(Q + 4, ((o(5), o(4)), (o(3), o(2))), 1, 0)
    wcopy(Q + 6, ((o(6), o(5)), (o(4), o(3))), 2, 0)
    v0_, v2_, v4_, v6_ = o(8), o(9), o(10), o(11)
    wcopy(Q + 8, ((v4_, v2_), (v0_, v0_)), 3, 256)
    wcopy(Q + 10, ((v4_, v4_), (v2_, v0_)), 0, 256)
    wcopy(Q + 12, ((v4_, v4_), (v4_, v2_)), 1, 256)
    wcopy(Q + 14, ((v6_, v4_), (v4_, v4_)), 2, 256)
    I(f"""v_cvt_pk_bf16_f32 v{Q+16}, {o(0)}, 0
          v_cvt_pk_bf16_f32 v{Q+17}, 0, {v4_}
          v_cvt_pk_bf16_f32 v{Q+18}, {o(12)}, {o(13)}
          v_cvt_pk_bf16_f32 v{Q+19}, {o(14)}, {o(15)}
          v_mov_b32 v{Q+20}, s23
          s_mov_b64 exec, 1
          ds_write_b32 v{Q+20}, v{Q+16} offset:{0*RDS + 2*P0}
          ds_write_b32 v{Q+20}, v{Q+1} offset:{1*RDS + 2*P0}
          ds_write_b32 v{Q+20}, v{Q+3} offset:{2*RDS + 2*P0}
          ds_write_b32 v{Q+20}, v{Q+16} offset:{2*RDS + 2*P0 + 4}
          s_mov_b64 exec, s[28:29]
          ds_write_b32 v{Q+20}, v{Q+17} offset:{3*RDS + 56}
          ds_write_b32 v{Q+20}, v{Q+10} offset:{3*RDS + 60}
          ds_write_b32 v{Q+20}, v{Q+10} offset:{0*RDS + 52}
          ds_write_b32 v{Q+20}, v{Q+17} offset:{1*RDS + 52}
          s_mov_b64 exec, -1
          ds_write_b32 v{aR4W}, v{Q+18}
          ds_write_b16 v{aR8W}, v{Q+19} offset:128
          ds_write_b16_d16_hi v{aR8W}, v{Q+19} offset:0
          ds_write_b16 v{aR8W}, v{Q+19} offset:{128+388}
          ds_write_b16_d16_hi v{aR8W}, v{Q+19} offset:388
          v_readlane_b32 s38, v{Q+18}, 63
          s_pack_ll_b32_b16 s38, s38, s38
          s_pack_ll_b32_b16 s39, s21, s21""")
    for d in range(4): I(f"v_and_b32 v{mSp+d}, s38, v{mSp+d}")
    if not cfg.foldD:
        for d in range(4): I(f"v_and_b32 v{mD+d}, s39, v{mD+d}")
    stamp()
    MD = lambda mu: 64 + 2 * mu
    M4 = lambda i, f: 132 + 8 * i + 4 * f
    M8 = lambda i: 156 + 4 * (i - 1)
    ACC = lambda c: 172 + 4 * c
    NXB = 5
    XB = lambda k: 204 + 4 * (k % NXB)
    WA = lambda k: 224 + 4 * (k % 3)
    RQ = lambda c: 236 + 2 * (c % 2)
    q4 = lambda r: f"v[{r}:{r+3}]"
    def rd64(r, addr, off): return [f"ds_read_b64 v[{r}:{r+1}], v{addr} offset:{off}", f"ds_read_b64 v[{r+2}:{r+3}], v{addr} offset:{off+8}"]
    def rdtr(r, addr, off, hs): return [f"ds_read_b64_tr_b16 v[{r}:{r+1}], v{addr} offset:{off}", f"ds_read_b64_tr_b16 v[{r+2}:{r+3}], v{addr} offset:{off+hs}"]
    touched = set()
    def mf(c, a, b):
        src = q4(ACC(c)) if c in touched else "0"; touched.add(c)
        return f"v_mfma_f32_16x16x32_bf16 {q4(ACC(c))}, {q4(a)}, {q4(b)}, {src}"
    for mu in (14, 30, 12, 28, 10, 26):
        for t in rd64(MD(mu), aMD, 1024 - 32 * mu): I(t)
    later = []
    for mu in (8, 24, 6, 22, 4, 20, 2, 18, 0, 16, 32): later += rd64(MD(mu), aMD, 1024 - 32 * mu)
    later2 = []
    for i in (2, 1, 0):
        for f in (0, 1): later2 += rd64(M4(i, f), aM4, 128 * i + 64 * f)
    for i in (4, 3, 2, 1): later2 += rd64(M8(i), aM8, 64 * (i - 1))
    I("s_barrier")
    stamp()
    items = []
    wk = [0]
    def seg2(beta):
        out = []
        for f in (0, 1):
            r = WA(wk[0]); wk[0] += 1
            out.append((rdtr(r, aW2, 512 * beta + 256 * f, 32), [(c, r, M4(beta - c + 4, f)) for c in range(beta + 2, min(beta + 5, 8))]))
        return out
    def seg3(beta):
        r = WA(wk[0]); wk[0] += 1
        return [(rdtr(r, aW3, 512 * beta, 64), [(c, r, M8(beta - c + 8)) for c in range(beta + 4, 8)])]
    extra = {1: lambda: seg2(0), 2: lambda: seg2(1) + seg3(0), 3: lambda: seg2(2) + seg3(1), 4: lambda: seg2(3) + seg3(2),
             5: lambda: seg3(3), 6: lambda: seg2(4) + seg2(5)}
    k = 0
    for c in range(8):
        xs = []
        for nu in range(16 * c - 14, 16 * c + 1, 2):
            mu = 16 * c - nu; r = XB(k); k += 1
            m = [(c, MD(mu), r)]
            if c + 1 < 8: m.append((c + 1, MD(mu + 16), r))
            if mu == 0:
                if not cfg.foldD: m.insert(0, (c, mD, r))
                if c + 2 < 8: m.append((c + 2, MD(32), r))
                if c + 4 < 8: m.append((c + 4, mSp, r))
            xs.append(([f"ds_read_b128 {q4(r)}, v{aX} offset:{32*(nu+14)}"], m))
        ex = extra[c]() if c in extra else []
        seq = merge(xs, ex, 1, 2)
        items += [(c, rd, m) for rd, m in seq]
    bar_after = {1, 3, 5, 7}
    PF = 3
    segs, cur = [], []
    for it in items:
        cur.append(it)
        nxt = items[items.index(it) + 1][0] if it is not items[-1] else None
        if nxt != it[0] and it[0] in (3, 7): segs.append(cur); cur = []
    pend = []
    def result(c):
        q = RQ(c)
        I(f"v_cvt_pk_bf16_f32 v{q}, v{ACC(c)}, v{ACC(c)+1}\nv_cvt_pk_bf16_f32 v{q+1}, v{ACC(c)+2}, v{ACC(c)+3}")
        I(f"ds_write_b64 v{aR}, v[{q}:{q+1}] offset:{512*c}")
    for seg in segs:
        for j in range(min(PF, len(seg))):
            for t in seg[j][1]: I(t)
        for j, (c, rd, m) in enumerate(seg):
            if j + PF < len(seg):
                for t in seg[j + PF][1]: I(t)
            for n in range(4):
                if later: I(later.pop(0))
                elif later2 and n < 3: I(later2.pop(0))
            for spec in m: I(mf(*spec))
            last = j + 1 == len(seg) or seg[j + 1][0] != c
            for p in list(pend):
                p[1] -= 1
                if p[1] == 0:
                    result(p[0]); pend.remove(p)
                    if p[0] in bar_after:
                        if p[0] == 1: wl_ = len(A.lg) - 1 - max(i for i, q in enumerate(A.lg) if q.mn == "ds_write_b64")
                        A.wait(lg=len(A.lg) - 1 - max(i for i, q in enumerate(A.lg) if q.mn == "ds_write_b64"))
                        I("s_barrier"); stamp()
            if last:
                if c in (3, 7):
                    result(c); A.wait(lg=0); I("s_barrier"); stamp()
                else: pend.append([c, 2])
    stamp_out()
    I("s_endpgm")

    nst[0] = nst_io
    A.label("L_io", snap_io)
    BND = 8
    aUW, aXio, aWW, aRr, offG, offOut, aZ, aUX = range(24, 32)
    I(f"""s_load_dwordx2 s[8:9], s[0:1], 0
         s_load_dwordx4 s[12:15], s[0:1], 112
         s_load_dwordx4 s[16:19], s[0:1], 128
         s_memrealtime s[20:21]
         s_sub_u32 s45, s3, 4
         s_lshl_b32 s47, s44, 2
         v_mov_b32 v2, 0
         v_mov_b32 v3, {FLAG}
         s_lshl_b32 s4, s45, 18
         s_add_u32 s4, s4, s47
         v_lshl_add_u32 v4, v0, 12, s4
         v_and_b32 v5, 15, v0
         s_sub_u32 s4, s4, 0x4000
         v_lshl_add_u32 v5, v5, 10, s4
         v_add_u32 v6, 0x100000, v5
         s_lshl_b32 s4, s2, 13
         s_lshl_b32 s22, s45, 11
         s_add_u32 s4, s4, s22
         v_lshlrev_b32 v7, 4, v0
         v_add_u32 v1, s4, v7
         s_mov_b32 s10, 0x200000
         s_mov_b32 s11, 0x20000
         s_mov_b32 s23, 0x100000""")
    I(f"""s_lshl_b32 s4, s5, 16
         s_add_u32 s4, s4, s47
         v_lshl_add_u32 v33, v0, 10, s4
         s_sub_u32 s4, s45, 1
         s_lshl_b32 s4, s4, 13
         v_lshl_add_u32 v32, v0, 7, s4
         v_min_u32 v32, L_fin-L_pc-4, v32
         s_cmp_lg_u32 s45, 0
         s_cbranch_scc1 L_io1""")
    sn = A.snapshot()
    I(f"""ds_write_b32 v3, v2
         s_lshr_b32 s4, s2, 6
         s_lshl_b32 s4, s4, 6
         v_mov_b32 v36, s4""")
    A.wait(lg=0)
    I("""s_or_b32 s20, s20, 1
         v_mov_b32 v34, s20
         v_mov_b32 v35, 0
         s_mov_b64 exec, 1
         global_atomic_cmpswap v37, v36, v[34:35], s[16:17] sc0 sc1
         s_mov_b64 exec, -1
         s_barrier
         buffer_load_dword v32, v33, s[8:11], 0 offen
         s_branch L_io2""")
    sn2 = A.snapshot()
    A.label("L_io1", sn)
    A.wait(lg=0)
    I("s_barrier\nglobal_load_dword v32, v32, s[6:7]")
    A.label("L_io2", sn2)
    GX, GW = 40, 48
    I(f"""buffer_load_dwordx4 v[{GX}:{GX+3}], v1, s[8:11], 0 offen
         buffer_load_dwordx4 v[{GX+4}:{GX+7}], v1, s[8:11], 0 offen offset:1024
         global_load_dwordx4 v[{GW}:{GW+3}], v7, s[12:13]
         s_add_u32 s6, s6, L_tabi-L_pc
         s_addc_u32 s7, s7, 0
         v_add_u32 v38, 0x1000, v7""")
    for k in range(4): I(f"global_load_dwordx4 v[{BND+4*k}:{BND+4*k+3}], v7, s[6:7] offset:{1024*k}")
    for k in range(2): I(f"global_load_dwordx4 v[{24+4*k}:{27+4*k}], v38, s[6:7] offset:{1024*k}")
    U1, U2 = 52, 58
    for base, vx, so in ((U1, 5, "0"), (U2, 6, "s23")):
        I(f"buffer_load_dword v{base}, v{vx}, s[8:11], 0 offen")
        for j in range(4): I(f"buffer_load_dword v{base+1+j}, v4, s[8:11], {so} offen offset:{1024*j}")
    stamp()
    WU = 64
    for d in range(4): I(f"v_lshlrev_b32 v{WU+2*d}, 16, v{GW+d}\nv_and_b32 v{WU+2*d+1}, 0xffff0000, v{GW+d}")
    I("s_mov_b32 s24, 0x3f803f80\nv_mov_b32 v80, 0\nv_mov_b32 v81, 0")
    for rw in range(2):
        for d in range(4):
            x = GX + 4 * rw + d
            I(f"""v_lshlrev_b32 v72, 16, v{x}
                  v_and_b32 v73, 0xffff0000, v{x}
                  v_pk_mul_f32 v[72:73], v[72:73], v[{WU+2*d}:{WU+2*d+1}]
                  v_cvt_pk_bf16_f32 v72, v72, v73
                  v_dot2_f32_bf16 v{80+rw}, v72, s24, v{80+rw}""")
    for m in ("row_shr:1 row_mask:0xf bank_mask:0xf bound_ctrl:1", "row_shr:2 row_mask:0xf bank_mask:0xf bound_ctrl:1",
              "row_shr:4 row_mask:0xf bank_mask:0xf bound_ctrl:1", "row_shr:8 row_mask:0xf bank_mask:0xf bound_ctrl:1",
              "row_bcast:15 row_mask:0xa bank_mask:0xf", "row_bcast:31 row_mask:0xc bank_mask:0xf"):
        I(f"v_add_f32_dpp v80, v80, v80 {m}\nv_add_f32_dpp v81, v81, v81 {m}")
    I("""v_cvt_pk_bf16_f32 v80, v80, v81
         v_and_b32 v81, 0xffff0000, v80
         v_lshlrev_b32 v80, 16, v80
         v_mul_f32 v80, 0xbfb8aa3b, v80
         v_mul_f32 v81, 0xbfb8aa3b, v81
         v_exp_f32 v80, v80
         v_exp_f32 v81, v81
         v_add_f32 v80, 1.0, v80
         v_add_f32 v81, 1.0, v81
         v_rcp_f32 v80, v80
         v_rcp_f32 v81, v81
         v_cvt_pk_bf16_f32 v82, v80, v81
         s_lshl_b32 s4, s2, 5
         s_lshl_b32 s22, s45, 3
         s_add_u32 s4, s4, s22
         v_mov_b32 v84, s4
         s_cmp_lg_u32 s45, 0
         s_cbranch_scc1 L_io3""")
    sn = A.snapshot()
    I("""v_readfirstlane_b32 s25, v37
         s_cmp_eq_u32 s25, 0
         s_cselect_b32 s25, s20, s25
         v_mov_b32 v83, s25
         ds_write_b32 v3, v83
         v_mov_b32 v74, 0
         v_mov_b32 v75, 0""")
    I(f"v_subrev_u32 v76, 480, v{aUW}\nds_write_b64 v76, v[74:75]\nds_write_b64 v76, v[74:75] offset:{USTR}\nds_write_b64 v{aZ}, v[74:75]")
    I("s_branch L_io4")
    A.label("L_io3", sn)
    I("ds_read_b32 v83, v3")
    I("v_cmp_eq_u32 vcc, 0, v83\ns_cbranch_vccnz L_io3")
    A.label("L_io4")
    A.lg = []
    I("""s_mov_b32 s28, 0
         s_mov_b32 s29, 0x80000000
         s_mov_b64 exec, s[28:29]
         global_store_dwordx2 v84, v[82:83], s[18:19] sc1
         s_mov_b64 exec, -1
         s_lshl_b32 s26, s45, 9
         s_mov_b32 s30, 0x05040100
         s_mov_b32 s31, 0x07060302""")
    for x in (aUW, aXio, aWW, aUX): I(f"v_add_u32 v{x}, s26, v{x}")
    stamp()
    def stage(base, off):
        I(f"ds_write_b16 v{aUX}, v{base} offset:{off}\nds_write_b16_d16_hi v{aUX}, v{base} offset:{off+USTR}")
        I(f"""v_perm_b32 v72, v{base+2}, v{base+1}, s30
              v_perm_b32 v73, v{base+4}, v{base+3}, s30
              v_perm_b32 v74, v{base+2}, v{base+1}, s31
              v_perm_b32 v75, v{base+4}, v{base+3}, s31
              ds_write_b64 v{aUW}, v[72:73] offset:{off}
              ds_write_b64 v{aUW}, v[74:75] offset:{off+USTR}""")
    def wgen(off, arrs):
        I(f"ds_read_b128 v[88:91], v{aXio} offset:{off}\nds_read_b128 v[92:95], v{aXio} offset:{off+USTR}")
        for ch in range(2):
            for n in arrs: I(f"v_mfma_f32_16x16x32_bf16 v[{96+16*ch+4*n}:{99+16*ch+4*n}], v[{BND+4*n}:{BND+4*n+3}], v[{88+4*ch}:{91+4*ch}], 0")
        for ch in range(2):
            for n in arrs:
                r = 96 + 16 * ch + 4 * n
                I(f"v_cvt_pk_bf16_f32 v{r}, v{r}, v{r+1}\nv_cvt_pk_bf16_f32 v{r+1}, v{r+2}, v{r+3}")
                I(f"ds_write_b64 v{aWW}, v[{r}:{r+1}] offset:{off + ch*WSTR + (W5O+16, W3O+24, W9O+16, W7O+16)[n]}")
    stage(U1, 0)
    stamp()
    wgen(0, range(4))
    I(f"""s_add_u32 s27, s45, 2
         s_and_b32 s27, s27, 3
         s_lshl_b32 s4, s27, 10
         v_add_u32 v{offG}, s4, v{offG}
         v_add_u32 v76, 0x1000, v{offG}
         s_lshl_b32 s4, s27, 9
         v_add_u32 v{aRr}, s4, v{aRr}
         s_lshl_b32 s4, s27, 18
         s_add_u32 s4, s4, s47
         v_add_u32 v{offOut}, s4, v{offOut}
         v_add_u32 v77, 0x100000, v{offOut}
         s_lshr_b32 s4, s27, 1
         s_lshl_b32 s4, s4, 6
         v_mov_b32 v78, s4""")
    A.wait(lg=0)
    I("s_barrier")
    stamp()
    GQ = 128
    def gather():
        I(f"""global_load_dword v{GQ+8}, v78, s[16:17] sc1
              global_load_dword v{GQ+9}, v78, s[16:17] offset:128 sc1
              global_load_dwordx4 v[{GQ}:{GQ+3}], v{offG}, s[18:19] sc1
              global_load_dwordx4 v[{GQ+4}:{GQ+7}], v76, s[18:19] sc1""")
    gather()
    I("s_barrier")
    stage(U2, 2048)
    stamp()
    I("s_cmp_ge_u32 s45, 2\ns_cbranch_scc1 L_io5")
    wgen(2048, range(2))
    A.label("L_io5")
    I("s_mov_b32 s33, 0")
    A.label("L_io6")
    A.wait(vm=0)
    I(f"""v_cmp_eq_u32 s[34:35], v{GQ+1}, v{GQ+8}
         v_cmp_eq_u32 s[36:37], v{GQ+3}, v{GQ+8}
         v_cmp_eq_u32 s[38:39], v{GQ+5}, v{GQ+9}
         v_cmp_eq_u32 s[40:41], v{GQ+7}, v{GQ+9}
         v_cmp_ne_u32 s[42:43], 0, v{GQ+8}
         v_cmp_ne_u32 vcc, 0, v{GQ+9}
         s_add_u32 s33, s33, 1
         s_and_b64 s[34:35], s[34:35], s[36:37]
         s_and_b64 s[38:39], s[38:39], s[40:41]
         s_and_b64 s[42:43], s[42:43], vcc
         s_and_b64 s[34:35], s[34:35], s[38:39]
         s_and_b64 s[34:35], s[34:35], s[42:43]
         s_cmp_eq_u64 s[34:35], exec
         s_cbranch_scc1 L_io7
         s_cmp_gt_u32 s33, 0x40000
         s_cbranch_scc1 L_io7
         s_sleep 1""")
    gather()
    I("s_branch L_io6")
    A.label("L_io7")
    A.vm = []
    stamp()
    def final(gq, second):
        off = 2048 if second else 0
        vo = 77 if second else offOut
        for n in range(4): I(f"ds_read_b64 v[{88+2*n}:{89+2*n}], v{aRr} offset:{off + 4096*n}")
        for i in range(4):
            I(f"v_and_b32 v{96+i}, 0xffff0000, v{gq+2*(i>>1)}" if i & 1 else f"v_lshlrev_b32 v{96+i}, 16, v{gq+2*(i>>1)}")
        for i in range(4): I(f"v_sub_f32 v{96+i}, 1.0, v{96+i}")
        I("v_cvt_pk_bf16_f32 v100, v96, v97\nv_cvt_pk_bf16_f32 v101, v98, v99")
        for i in range(4): I(f"v_perm_b32 v{96+i}, v{100+(i>>1)}, v{gq+2*(i>>1)}, s{30+(i&1)}")
        for i in range(4):
            for ch in range(2):
                I(f"v_perm_b32 v{104+2*i+ch}, v{88+2*(2+ch)+(i>>1)}, v{88+2*ch+(i>>1)}, s{30+(i&1)}")
        for i in range(4):
            for ch in range(2):
                I(f"v_dot2_f32_bf16 v{104+2*i+ch}, v{104+2*i+ch}, v{96+i}, 0")
        for i in range(4):
            I(f"v_cvt_pk_bf16_f32 v{112+i}, v{104+2*i}, v{105+2*i}")
            I(f"global_store_dword v{vo}, v{112+i}, s[14:15] offset:{1024*i}")
    for n, (cond, second) in enumerate((("lt", False), ("ge", False), ("lt", True), ("ge", True))):
        I(f"s_cmp_{cond}_u32 s45, 2\ns_cbranch_scc1 L_fs{n}")
        final(GQ + (4 if second else 0), second)
        A.label(f"L_fs{n}")
        if n < 3:
            I("s_waitcnt lgkmcnt(0)\ns_barrier"); A.lg = []
        stamp()
    if cfg.stamps:
        I("s_waitcnt vmcnt(0)"); stamp()
    stamp_out()
    A.label("L_end")
    I("s_endpgm")
    tc, ti = tables()
    A.raw(".p2align 7\nL_tabc:")
    for i in range(0, len(tc), 8): A.raw(".long " + ", ".join("0x%x" % x for x in tc[i:i + 8]))
    A.raw("L_tabi:")
    for i in range(0, len(ti), 8): A.raw(".long " + ", ".join("0x%x" % x for x in ti[i:i + 8]))
    A.raw("L_fin:")
    A.raw(f""".section .rodata,"a"
.p2align 6
.amdhsa_kernel {KN}_kernel
  .amdhsa_next_free_vgpr 256
  .amdhsa_next_free_sgpr 102
  .amdhsa_accum_offset 256
  .amdhsa_group_segment_fixed_size 0
  .amdhsa_kernarg_size 144
  .amdhsa_user_sgpr_count 2
  .amdhsa_user_sgpr_kernarg_segment_ptr 1
  .amdhsa_system_sgpr_workgroup_id_x 1
.end_amdhsa_kernel""")
    sys.stderr.write(f"instructions {A.nins}, nops {A.nops}, lds {LDS_BYTES}\n")
    return A.text()

if __name__ == "__main__":
    out = sys.argv[1]
    for kv in sys.argv[2:]:
        k, v = kv.split("="); setattr(Cfg, k, eval(v))
    open(out, "w").write(gen())
```

```python
import re, copy
TRANS = ("v_exp_f32", "v_log_f32", "v_rcp_f32", "v_rsq_f32", "v_sqrt_f32", "v_sin_f32", "v_cos_f32")
_reg = re.compile(r"(?<![\w.])(-?\|?)([vs])(\d+)\b|(?<![\w.])(-?)([vs])\[(\d+):(\d+)\]|\b(vcc|exec|m0|scc)\b")

def regs_of(op):
    out = []
    for m in _reg.finditer(op):
        if m.group(2): out.append((m.group(2), int(m.group(3))))
        elif m.group(5): out += [(m.group(5), i) for i in range(int(m.group(6)), int(m.group(7)) + 1)]
        else: out.append(("x", m.group(8)))
    return out

def split_ops(s):
    out, depth, cur = [], 0, ""
    for ch in s:
        if ch == "[": depth += 1
        if ch == "]": depth -= 1
        if ch == "," and depth == 0: out.append(cur.strip()); cur = ""
        else: cur += ch
    if cur.strip(): out.append(cur.strip())
    return out

class Ins:
    def __init__(self, text):
        self.text = text
        t = text.split(";")[0].strip()
        p = t.split(None, 1)
        self.mn = mn = p[0]
        rest = p[1] if len(p) > 1 else ""
        ops = split_ops(rest)
        if ops:
            last = ops[-1].split()
            ops[-1] = last[0]; self.mods = " ".join(last[1:])
        else: self.mods = ""
        self.ops = ops
        R = [regs_of(o) for o in ops]
        flat = lambda L: [r for x in L for r in x]
        self.kind = "other"; self.w = []; self.r = []; self.passes = 0
        if mn.startswith("v_mfma"):
            self.kind = "mfma"; self.w = R[0]; self.r = flat(R[1:]); self.A, self.B, self.C = R[1], R[2], R[3]
            self.passes = 8 if "32x32x16" in mn else 4
        elif mn.startswith("ds_"):
            self.kind = "ds"
            if mn.startswith("ds_read") : self.w = R[0]; self.r = flat(R[1:])
            else: self.r = flat(R)
            if "addtid" in mn: self.r.append(("x", "m0"))
        elif mn.startswith(("global_", "buffer_")) and len(R) > 1:
            self.kind = "vmem"
            if "_load" in mn and "lds" not in self.mods.split(): self.w = R[0]; self.r = flat(R[1:]) + (R[0] if "d16" in mn else [])
            elif "atomic" in mn and "sc0" in self.mods.split(): self.w = R[0]; self.r = flat(R[1:])
            else: self.r = flat(R)
            if "lds" in self.mods.split(): self.r.append(("x", "m0"))
            self.wide_store = "store_dwordx4" in mn or "store_dwordx3" in mn
        elif mn.startswith(("s_load", "s_memrealtime", "s_memtime")):
            self.kind = "smem"; self.w = R[0]; self.r = flat(R[1:])
        elif mn.startswith("v_"):
            self.kind = "valu"; self.w = R[0]; self.r = flat(R[1:])
            if mn.startswith(("v_fmac", "v_dot2c", "v_permlane", "v_writelane")) or "_dpp" in mn: self.r = self.r + R[0]
            if mn.startswith("v_permlane"): self.w = R[0] + R[1]
            if mn.startswith(("v_add_co", "v_addc_co", "v_sub_co")): self.w = R[0] + R[1]; self.r = flat(R[2:])
            if mn.startswith("v_cndmask") and len(ops) == 3: self.r.append(("x", "vcc"))
        elif mn.startswith("s_"):
            self.kind = "salu"
            if mn.startswith(("s_cmp", "s_cbranch", "s_branch", "s_barrier", "s_waitcnt", "s_nop", "s_endpgm", "s_sleep", "s_setprio")): self.r = flat(R)
            else: self.w = R[0] if R else []; self.r = flat(R[1:])
            if "saveexec" in mn: self.w = self.w + [("x", "exec")]
        self.ws = 1
        if mn == "s_nop": self.ws = int(ops[0]) + 1
        self.trans = mn.replace("_e32", "").replace("_e64", "") in TRANS
        self.dpp = "_dpp" in mn
        self.lane = mn.startswith(("v_readlane", "v_readfirstlane"))
        self.perml = mn.startswith("v_permlane")

def ov(a, b): return bool(set(a) & set(b))
isv = lambda L: [r for r in L if r[0] == "v"]
iss = lambda L: [r for r in L if r[0] == "s" or r == ("x", "vcc")]

def need(p, c):
    n = 0
    if p.kind == "valu":
        wv, wsg = isv(p.w), iss(p.w)
        if c.kind == "mfma" and ov(wv, c.r): n = max(n, 2)
        if c.kind == "valu":
            if p.trans and ov(wv, c.r): n = max(n, 1)
            if c.lane and ov(wv, c.r): n = max(n, 1)
            if (c.dpp or c.perml) and ov(wv, c.r): n = max(n, 2)
            if ov(wsg, c.r): n = max(n, 4 if c.lane else 2)
        if c.kind == "vmem" and ov(wsg, c.r): n = max(n, 5)
        if p.mn.startswith("v_dot") and (ov(wv, c.r) or ov(wv, c.w)):
            chain = c.mn == p.mn and len(c.ops) == 4 and regs_of(c.ops[3]) == wv and not ov(wv, regs_of(c.ops[1]) + regs_of(c.ops[2]))
            if not chain: n = max(n, 3)
    if p.kind == "mfma":
        big = 12 if p.passes == 8 else 8
        if c.kind == "mfma":
            if ov(p.w, c.A) or ov(p.w, c.B): n = max(n, big)
            if ov(p.w, c.C) and not (p.w == c.C and p.passes == c.passes): n = max(n, big - 2)
            if ov(p.w, c.w) and not (p.w == c.C): n = max(n, big)
        elif c.kind in ("valu", "ds", "vmem"):
            if ov(p.w, c.r) or ov(p.w, c.w): n = max(n, big)
            if c.kind == "valu" and ov(p.C, c.w): n = max(n, 7 if p.passes == 8 else 3)
    if p.kind == "salu" and ("x", "m0") in p.w and ("x", "m0") in c.r: n = max(n, 1)
    if p.kind == "vmem" and getattr(p, "wide_store", False) and ov(isv(p.r), c.w): n = max(n, 2)
    return n

class Asm:
    def __init__(self):
        self.lines = []; self.hist = []; self.lg = []; self.vm = []; self.nins = 0; self.nops = 0
    def raw(self, s): self.lines.append(s)
    def snapshot(self): return (copy.copy(self.hist), copy.copy(self.lg), copy.copy(self.vm))
    def restore(self, s): self.hist, self.lg, self.vm = copy.copy(s[0]), copy.copy(s[1]), copy.copy(s[2])
    def label(self, name, snap=None):
        self.lines.append(name + ":")
        if snap is not None: self.restore(snap)
    def _emit(self, ins):
        self.lines.append("    " + ins.text); self.hist.append(ins); self.hist = self.hist[-24:]; self.nins += 1
    def wait(self, vm=None, lg=None):
        parts = []
        if vm is not None and len(self.vm) > vm:
            vm = min(vm, 63); parts.append(f"vmcnt({vm})"); self.vm = self.vm[len(self.vm) - vm:] if vm else []
        if lg is not None and len(self.lg) > lg:
            lg = min(lg, 15)
            if any(q.kind == "smem" for q in self.lg): lg = 0
            parts.append(f"lgkmcnt({lg})"); self.lg = self.lg[len(self.lg) - lg:] if lg else []
        if parts: self._emit(Ins("s_waitcnt " + " ".join(parts)))
    def I(self, text, track=True):
        for t in text.strip().split("\n"):
            t = t.strip()
            if t and not t.startswith(";"): self._one(t, track)
            elif t: self.lines.append("    " + t)
    def _one(self, text, track):
        c = Ins(text)
        touched = c.r + c.w
        vm = lg = None
        for i, q in enumerate(self.vm):
            if ov(q.w, touched): vm = len(self.vm) - 1 - i
        for i, q in enumerate(self.lg):
            if ov(q.w, touched): lg = len(self.lg) - 1 - i
        self.wait(vm, lg)
        dist, n = 0, 0
        for p in reversed(self.hist):
            n = max(n, need(p, c) - dist); dist += p.ws
            if dist > 20: break
        if n > 0:
            self._emit(Ins(f"s_nop {n-1}")); self.nops += 1
        self._emit(c)
        if track:
            if c.kind == "vmem": self.vm.append(c)
            elif c.kind in ("ds", "smem"): self.lg.append(c)
    def text(self): return "\n".join(self.lines) + "\n"

def merge(main, side, start=0, every=1):
    out, j = [], 0
    for i, m in enumerate(main):
        out.append(m)
        if i >= start and (i - start) % every == 0 and j < len(side): out.append(side[j]); j += 1
    return out + side[j:]

import subprocess, tempfile, os
_WIDE_OK = ("v_mov_b32", "v_add_u32", "v_sub_u32", "v_subrev_u32", "v_lshlrev_b32", "v_lshrrev_b32", "v_and_b32", "v_or_b32", "v_xor_b32",
            "v_mul_f32", "v_add_f32", "v_sub_f32", "v_fmac_f32", "v_exp_f32", "v_sin_f32", "v_cos_f32", "v_rcp_f32", "v_fract_f32",
            "v_min_u32", "v_max_u32", "v_mul_u32_u24", "v_cmp_eq_u32", "v_cmp_ne_u32", "v_cmp_gt_u32", "v_cmp_ge_u32", "v_cmp_lt_u32", "v_cmp_le_u32")
def sizes(text):
    d = tempfile.mkdtemp()
    open(d + "/a.s", "w").write(text)
    r = subprocess.run(["clang", "-x", "assembler", "-target", "amdgcn-amd-amdhsa", "-mcpu=gfx950", "-c", d + "/a.s", "-o", d + "/a.o"], capture_output=True, text=True)
    assert r.returncode == 0, r.stderr
    o = subprocess.run(["llvm-objdump", "-d", "--mcpu=gfx950", d + "/a.o"], capture_output=True, text=True).stdout
    out = []
    for ln in o.split("\n"):
        m = re.search(r"// ([0-9A-F]{12}): ((?:[0-9A-F]{8} ?)+)", ln)
        if m: out.append(4 * len(m.group(2).split()))
    return out

def align8(lines):
    idx = [i for i, l in enumerate(lines) if l.startswith("    ") and not l.strip().startswith(";")]
    sz = sizes("\n".join(lines) + "\n")[:len(idx)]
    out = list(lines); off = 0; wid = nop = 0
    for k, i in enumerate(idx):
        s = sz[k]
        if s == 4 and off % 8 == 0 and k + 1 < len(idx) and sz[k + 1] == 8:
            t = lines[i].strip(); mn = t.split()[0]
            run = 0
            while k + 1 + run < len(idx) and sz[k + 1 + run] == 8: run += 1
            heavy = sum("mfma" in lines[idx[k + 1 + j]] for j in range(run))
            if mn in _WIDE_OK:
                out[i] = "    " + t.replace(mn, mn + "_e64", 1); s = 8; wid += 1
            elif run >= 5 and not heavy and not mn.startswith(("s_cbranch", "s_branch", "s_getpc", "s_endpgm")):
                out[i] = lines[i] + "\n    s_nop 0"; s = 8; nop += 1
        off += s
    return out, wid, nop
```

```python
import sys
from asmlib import Asm, merge, align8
KN = "gated_mix__ssm_conv_s4d__ssm_conv_s4d__prompt"

class Cfg:
    stamps = False
    cycles = False
    padto = 3000
    force_slow = False
    PF = 3
    fine = False
    align = True
    red_at = 56
    tile_at = 40
    pub_at = 95
    gate_at = 170
    gload_at = 66
    touch_at = 0
    poll_at = 12
    prio = True

ROW = 272
SCRW = 57 * ROW
SCRS = 4 * SCRW
MOFS = 48000
WB = 0; WSTR = 11112
W5O, W3O, W9O, W7O = 0, 3440, 6728, 8920
RB = WB + 2 * WSTR
UB = 8 * SCRW; USTR = 4608
KB = UB + 2 * USTR; KSTR = 6656
RDS = 1344; R4O = 5376; R8O = 5888
FLAG = KB + 4 * KSTR
LDS_BYTES = FLAG + 64
P0 = 540
WS_LF, WS_HELLO, WS_UT = 0x4000, 0x6000, 0x200000

def drow_hi(rho):
    q, hh, i = rho >> 3, (rho >> 2) & 1, rho & 3
    if q == 0: return 4 * hh + i
    if q == 1: return 4 * hh + 4 + i
    if q == 2: return 256 + 4 * hh + 2 * i
    return [[520, 516, 1032, 1544], [776, 772, 1288, 1800]][hh][i]
hslot = lambda rho: rho - 4 * (rho >= 8) - (rho >= 15) - 2 * (rho >= 20)
HSLOT = {drow_hi(rho): hslot(rho) for rho in range(32) if rho not in (11, 15)}
assert len(HSLOT) == 25 and sorted(HSLOT.values()) == list(range(25))
HTREE = [(1, 0, 1), (2, 0, 2), (3, 2, 1), (4, 0, 4), (5, 4, 1), (6, 4, 2), (7, 6, 1), (8, 0, 8), (9, 8, 1), (10, 8, 2),
         (256, 0, 256), (258, 2, 256), (260, 4, 256), (262, 6, 256), (264, 8, 256), (266, 10, 256),
         (516, 4, 512), (520, 8, 512), (772, 516, 256), (776, 520, 256), (1032, 8, 1024), (1288, 264, 1024), (1544, 520, 1024), (1800, 776, 1024)]

def tables():
    comp, io = [], []
    for l in range(64):
        b, g = l & 15, l >> 4
        def frag(pred, val):
            return [(val if pred(8 * g + 2 * d) else 0) | (val if pred(8 * g + 2 * d + 1) else 0) << 16 for d in range(4)]
        comp.append(frag(lambda e: e in (b + 12, b + 13), 0xffff))
        t = []
        for tau, w in ((8, 2), (12, 1), (8, 4), (8, 3)):
            t += frag(lambda e: abs(tau + b - e) <= w, 0x3f80)
        io.append(t)
    def lay(tb):
        n = len(tb[0]) // 4
        return [tb[l][4 * k + j] & 0xffffffff for k in range(n) for l in range(64) for j in range(4)]
    return lay(comp), lay(io)

def gen(cfg=Cfg):
    A = Asm(); I = A.I
    def run(stream):
        for t in stream:
            if callable(t): t()
            else: I(t)
    head = open("cdna_kernels/" + KN + ".s.ref").read().split("; Override launch")[0]
    A.raw(head.rstrip())
    A.raw(f"; @launch grid=(256,1,1) block=(512,1,1) lds={LDS_BYTES}")
    A.raw('.amdgcn_target "amdgcn-amd-amdhsa--gfx950"\n.text')
    A.raw(f".globl {KN}_kernel\n.p2align 8\n.type {KN}_kernel,@function\n{KN}_kernel:")
    nst = [0]
    def stamp():
        if cfg.stamps:
            if nst[0] < 15: I(f"{'s_memtime' if cfg.cycles else 's_memrealtime'} s[{64+2*nst[0]}:{65+2*nst[0]}]", track=False); nst[0] += 1
    def stamp_out():
        if cfg.stamps == 3:
            lab = f"L_pad{A.nins}"
            I("s_waitcnt vmcnt(0) lgkmcnt(0)")
            A.label(lab)
            I("s_memrealtime s[96:97]", track=False)
            I(f"s_waitcnt lgkmcnt(0)\ns_sub_u32 s96, s96, s64\ns_cmp_lt_u32 s96, {cfg.padto}\ns_cbranch_scc1 {lab}")
        elif cfg.stamps:
            n = nst[0]
            I("s_waitcnt lgkmcnt(0)\ns_lshl_b32 s97, s2, 3\ns_add_u32 s97, s97, s3\ns_lshl_b32 s97, s97, 6\ns_add_u32 s97, s97, 0x100000\nv_mov_b32 v250, s97")
            I("s_mov_b64 exec, 1")
            for i in range(16):
                I(f"v_mov_b32 v251, {f's{64+2*i}' if i < n else 0}\nglobal_store_dword v250, v251, s[42:43] offset:{4*i}")

    vLR, vAI, vCR, vCI = 1, 2, 3, 4
    vDS, vCRd, vST0, vST1, vPL, vHL, vU0, vU1, vL16, vGR, vFL, vNR = range(176, 188)
    GX, GW, TR = 192, 200, 204
    vDT = 33
    stamp()
    I("s_cmp_ge_u32 s2, 0x100\ns_cbranch_scc1 L_end\ns_getpc_b64 s[6:7]")
    A.raw("L_pc:")
    I(f"""v_lshrrev_b32 v1, 6, v0
         s_andn2_b32 s4, s2, 7
         v_add_lshl_u32 v2, v1, s4, 7
         v_readfirstlane_b32 s3, v1
         v_min_u32 v2, L_fin-L_pc-4, v2
         global_load_dword v255, v2, s[6:7]
         s_bfe_u32 s4, s3, 0x10001
         s_mul_i32 s4, s4, 56
         s_add_u32 s52, s0, s4
         s_addc_u32 s53, s1, 0
         s_load_dwordx8 s[8:15], s[52:53], 8
         s_load_dwordx4 s[16:19], s[52:53], 40
         s_load_dwordx2 s[56:57], s[0:1], 0
         s_load_dwordx4 s[60:63], s[0:1], 112
         s_load_dwordx4 s[40:43], s[0:1], 128
         s_memrealtime s[50:51]
         v_and_b32 v0, 63, v0
         v_mov_b32 v28, 0
         v_mov_b32 v29, 0
         v_mov_b32 v30, 0
         v_mov_b32 v31, 0
         v_mov_b32 v{vFL}, {FLAG}
         s_and_b32 s48, s2, 7
         s_lshr_b32 s5, s2, 3
         s_lshl_b32 s44, s48, 5
         s_add_u32 s44, s44, s5
         s_and_b32 s45, s3, 3
         s_and_b32 s46, s3, 1
         s_lshl_b32 s4, s44, 1
         s_add_u32 s4, s4, s46
         s_lshl_b32 s4, s4, 8
         v_lshl_add_u32 v5, v0, 2, s4
         s_lshl_b32 s47, s44, 2
         s_mul_i32 s22, s3, {SCRW}
         s_mov_b32 m0, s22
         v_lshlrev_b32 v{vL16}, 4, v0
         s_mov_b64 exec, 7
         v_add_u32 v6, {FLAG}, v{vL16}
         ds_write_b128 v6, v[28:31]
         s_mov_b64 exec, -1
         v_lshrrev_b32 v6, 3, v0
         v_and_b32 v7, 0x70, v{vL16}
         v_lshl_add_u32 v6, v6, 10, v7
         v_and_b32 v7, 32, v0
         v_xor_b32 v6, v7, v6
         s_lshl_b32 s49, s48, 7
         s_lshl_b32 s4, s5, 16
         s_add_u32 s4, s4, s49
         s_lshl_b32 s23, s45, 14
         s_add_u32 s4, s4, s23
         v_add_u32 v{vDS}, s4, v6
         v_xor_b32 v{vGR}, 64, v{vDS}
         s_lshl_b32 s4, s46, 1
         s_add_u32 s4, s4, s47
         v_mov_b32 v7, s4
         v_mov_b32 v{vDT}, 0
         v_mov_b32 v61, 0
         s_mov_b32 s58, 0x200000
         s_mov_b32 s59, 0x20000
         s_mov_b32 s23, {8*1024 - 1024}""")
    A.wait(lg=0)
    if cfg.fine: stamp()
    I(f"""global_load_dword v{vLR}, v5, s[8:9]
         global_load_short_d16_hi v{vDT}, v7, s[16:17]
         global_load_dword v{vAI}, v5, s[10:11]
         s_cmp_ge_u32 s3, 4
         s_cbranch_scc0 L_par""")
    snap_c = A.snapshot(); nst_c = nst[0]
    I(f"""buffer_load_dwordx4 v[{TR}:{TR+3}], v{vDS}, s[56:59], 0 offen
         buffer_load_dwordx4 v[{TR+4}:{TR+7}], v{vGR}, s[56:59], s23 offen offset:1024
         s_lshl_b32 s4, s48, 5
         v_mov_b32 v188, s4
         s_or_b32 s4, s5, s45
         s_cbranch_scc1 L_io2
         s_or_b32 s50, s50, 1
         v_mov_b32 v190, s50
         s_mov_b64 exec, 1""")
    I("global_store_dword v188, v190, s[40:41] sc1", track=False)
    I("s_mov_b64 exec, -1")
    A.label("L_io2")
    I(f"""global_load_dword v{vCR}, v5, s[12:13]
         global_load_dword v{vCI}, v5, s[14:15]""")
    if cfg.fine == 2: stamp()
    I("s_branch L_io")
    snap_io = A.snapshot(); nst_io = nst[0]
    A.label("L_par", snap_c); nst[0] = nst_c
    if cfg.fine == 2: stamp()

    def consts():
        I("""s_mov_b32 s24, 0x3fb8aa3b
             s_mov_b32 s26, 0x42000000
             s_mov_b32 s27, 0x42000000
             s_mov_b32 s28, 0
             s_mov_b32 s29, 0x80000000
             v_mov_b32 v32, 0x3c00""")
    def dt_scale():
        I(f"""v_mul_f32 v{vDT}, s24, v{vDT}
             v_exp_f32 v{vDT}, v{vDT}
             v_cvt_pk_bf16_f32 v{vDT}, v{vDT}, v{vDT}
             v_lshlrev_b32 v{vDT}, 16, v{vDT}""")
    red = [f"v_and_b32 v34, 0x7fff7fff, v{vCR}", f"v_and_b32 v35, 0x7fff7fff, v{vCI}", "v_pk_max_u16 v34, v34, v35",
           "v_lshrrev_b32 v35, 16, v34", "v_and_b32 v34, 0xffff, v34", "v_max_u32 v34, v34, v35"]
    red += [f"v_max_u32_dpp v34, v34, v34 {m}" for m in
            ("row_shr:1 row_mask:0xf bank_mask:0xf", "row_shr:2 row_mask:0xf bank_mask:0xf", "row_shr:4 row_mask:0xf bank_mask:0xf",
             "row_shr:8 row_mask:0xf bank_mask:0xf", "row_bcast:15 row_mask:0xa bank_mask:0xf", "row_bcast:31 row_mask:0xc bank_mask:0xf")]
    red += ["v_readlane_b32 s34, v34, 63",
            "s_lshr_b32 s34, s34, 7\ns_max_u32 s34, s34, 11\ns_sub_u32 s36, 264, s34\ns_lshl_b32 s36, s36, 23\ns_mov_b32 s37, s36\n"
            "s_sub_u32 s35, s34, 9\ns_lshl_b32 s35, s35, 23"]
    ZA, ZB, TP = 36, 38, 40
    AB = 42
    E1, E2 = 46, 48
    Wr = {p: 50 + i for i, p in enumerate((1, 2, 4, 8, 16, 32, 64, 128, 256, 512, 1024))}
    Lr = {r: 144 + r for r in range(1, 16)}
    for p in (8, 16, 32, 64): Lr[p // 8] = Wr[p]
    TMP = [160, 161, 162, 163]
    Hk = {h: 164 + i for i, h in enumerate((0, 2, 4, 6, 8, 10, 264, 516, 520, 776))}
    def cm(dst, a, b, conj=False):
        if conj:
            return [f"v_pk_mul_f16 v{dst}, v{a}, v{b} op_sel_hi:[0,1] neg_hi:[0,1]",
                    f"v_pk_fma_f16 v{dst}, v{a}, v{b}, v{dst} op_sel:[1,1,0] op_sel_hi:[1,0,1]"]
        return [f"v_pk_mul_f16 v{dst}, v{a}, v{b} op_sel_hi:[0,1]",
                f"v_pk_fma_f16 v{dst}, v{a}, v{b}, v{dst} op_sel:[1,1,0] op_sel_hi:[1,0,1] neg_lo:[1,0,0]"]
    def sq(z):
        return [f"v_pk_mul_f32 v[{TP}:{TP+1}], v[{z}:{z+1}], v[{z}:{z+1}] op_sel_hi:[0,1]",
                f"v_pk_fma_f32 v[{z}:{z+1}], v[{z}:{z+1}], v[{z}:{z+1}], v[{TP}:{TP+1}] op_sel:[1,1,0] op_sel_hi:[1,0,1] neg_lo:[1,0,0]"]
    def half(h, ofs):
        up = (lambda d, s: f"v_and_b32 v{d}, 0xffff0000, v{s}") if h else (lambda d, s: f"v_lshlrev_b32 v{d}, 16, v{s}")
        S = [up(AB, vLR), f"v_mul_f32 v{AB}, s24, v{AB}", f"v_exp_f32 v{AB}, v{AB}", up(AB + 1, vAI),
             f"v_cvt_pk_bf16_f32 v{AB}, v{AB}, v{AB}", f"v_mul_f32 v{AB+1}, v{vDT}, v{AB+1}", f"v_lshlrev_b32 v{AB}, 16, v{AB}",
             f"v_mul_f32 v{AB+1}, 0.15915494, v{AB+1}", f"v_mul_f32_e64 v{AB}, -v{vDT}, v{AB}", f"v_fract_f32 v{TP}, v{AB+1}",
             f"v_mul_f32 v{AB}, s24, v{AB}", f"v_cos_f32 v{ZA}, v{TP}",
             f"v_pk_mul_f32 v[{AB+2}:{AB+3}], v[{AB}:{AB+1}], s[26:27]", f"v_sin_f32 v{ZA+1}, v{TP}",
             f"v_fract_f32 v{TP+1}, v{AB+3}", f"v_exp_f32 v{E1}, v{AB}", f"v_cos_f32 v{ZB}, v{TP+1}", f"v_exp_f32 v{E2}, v{AB+2}",
             f"v_sin_f32 v{ZB+1}, v{TP+1}",
             f"v_pk_mul_f32 v[{ZA}:{ZA+1}], v[{ZA}:{ZA+1}], v[{E1}:{E1+1}] op_sel_hi:[1,0]",
             f"v_pk_mul_f32 v[{ZB}:{ZB+1}], v[{ZB}:{ZB+1}], v[{E2}:{E2+1}] op_sel_hi:[1,0]"]
        cv = lambda p, z: f"v_cvt_pk_f16_f32 v{Wr[p]}, v{z}, v{z+1}"
        wl = lambda r, v: f"ds_write_addtid_b32 v{v} offset:{ofs + r*ROW}"
        wh = lambda hh, v: f"ds_write_addtid_b32 v{v} offset:{ofs + (32+HSLOT[hh])*ROW}"
        S += [cv(1, ZA), cv(32, ZB), wl(4, Wr[32])]
        for pa, pb in ((2, 64), (4, 128), (8, 256), (16, 512), (None, 1024)):
            if pa: S += sq(ZA) + [cv(pa, ZA)]
            S += sq(ZB) + [cv(pb, ZB)]
            if pa in (8, 16): S.append(wl(pa // 8, Wr[pa]))
            if pb in (64, 128): S.append(wl(pb // 8, Wr[pb]))
        if h == 0 and cfg.prio: S.append("s_setprio 0")
        k = 0
        for r in range(3, 32):
            top = 1 << (r.bit_length() - 1)
            if r == top: continue
            d = Lr[r] if r < 16 else TMP[k % 4]; k += 1
            S += cm(d, Lr[r - top], Wr[8 * top]) + [wl(r, d)]
        S += [up(TP, vCR), up(TP + 1, vCI), f"v_pk_mul_f32 v[{TP}:{TP+1}], v[{TP}:{TP+1}], s[36:37]",
              f"v_cvt_pk_f16_f32 v{Hk[0]}, v{TP}, -v{TP+1}", wh(0, Hk[0])]
        for hh, a, b in HTREE:
            d = Hk.get(hh) or TMP[k % 4]; k += 1
            S += cm(d, Hk[a], Wr[b], True) + [wh(hh, d)]
        return S

    T = 8
    aL, aH, aKW, aR4W, aR8W, aMD, aM4, aM8, aX, aW2, aW3, aR = range(T, T + 12)
    mSp = T + 12
    aW2b, aW3b = 5, 6
    FA, FB, KA = 64, 96, 128
    if cfg.prio: I("s_setprio 2")
    I(f"global_load_dword v{vCR}, v5, s[12:13]\nglobal_load_dword v{vCI}, v5, s[14:15]\nglobal_load_short_d16_hi v61, v7, s[18:19]")
    if cfg.fine == 2: stamp()
    I(f"""s_add_u32 s6, s6, L_tabc-L_pc
         s_addc_u32 s7, s7, 0
         s_mul_i32 s23, s3, {KSTR}
         s_add_u32 s23, s23, {KB}
         v_add_u32 v7, s23, v{vL16}
         v_lshl_add_u32 v6, v0, 3, s23""")
    for k in range(6): I(f"ds_write_b128 v7, v[28:31] offset:{1024*k}")
    I("ds_write_b64 v6, v[28:29] offset:6144")
    consts()
    I(f"""ds_write_addtid_b32 v32 offset:0
         s_mul_i32 s30, s46, {USTR}
         s_mul_i32 s31, s46, {WSTR}
         s_lshl_b32 s32, s3, 13
         s_lshl_b32 s4, s3, 2
         s_add_u32 s4, s4, {FLAG + 16}
         v_mov_b32 v240, s4""")
    I(f"""v_and_b32 v36, 15, v0
         v_lshrrev_b32 v37, 4, v0
         v_and_b32 v38, 31, v0
         v_lshrrev_b32 v39, 5, v0
         v_and_b32 v40, 3, v0
         v_bfe_u32 v41, v0, 2, 2
         v_lshlrev_b32 v42, 4, v37
         v_mov_b32 v43, {ROW}
         v_lshl_add_u32 v44, v39, 4, s22
         v_mad_u32_u24 v{aL}, v38, v43, v44
         v_add_u32 v45, 32, v38
         v_cmp_le_u32 vcc, 8, v38
         v_cmp_le_u32 s[8:9], 15, v38
         v_cmp_le_u32 s[10:11], 20, v38
         v_cndmask_b32_e64 v46, 0, 4, vcc
         v_cndmask_b32_e64 v47, 0, 1, s[8:9]
         v_cndmask_b32_e64 v48, 0, 2, s[10:11]
         v_add3_u32 v46, v46, v47, v48
         v_sub_u32 v45, v45, v46
         v_mad_u32_u24 v{aH}, v45, v43, v44
         v_lshlrev_b32 v44, 3, v39
         v_lshl_add_u32 v44, v38, 4, v44
         s_add_u32 s4, s23, {2*P0 - 520}
         v_sub_u32 v{aKW}, s4, v44
         v_lshlrev_b32 v44, 2, v0
         s_add_u32 s4, s23, {R4O + 380}
         v_sub_u32 v{aR4W}, s4, v44
         v_lshlrev_b32 v44, 1, v0
         s_add_u32 s4, s23, {R8O + 130}
         v_sub_u32 v{aR8W}, s4, v44
         v_mul_u32_u24 v44, {RDS + 2}, v40
         v_lshlrev_b32 v45, 1, v36
         v_sub_u32 v45, v42, v45
         s_add_u32 s4, s23, {2*(P0 - 16) - 1024}
         v_add3_u32 v{aMD}, v44, v45, s4
         v_lshlrev_b32 v45, 3, v36
         v_sub_u32 v45, v42, v45
         s_add_u32 s4, s23, {R4O + 120}
         v_add_u32 v{aM4}, s4, v45
         v_and_b32 v44, 1, v0
         v_mul_u32_u24 v44, 388, v44
         v_lshlrev_b32 v45, 2, v36
         v_sub_u32 v45, v42, v45
         s_add_u32 s4, s23, {R8O + 64}
         v_add3_u32 v{aM8}, v44, v45, s4
         v_lshl_add_u32 v44, v36, 5, v42
         s_add_u32 s4, s30, {UB}
         v_add_u32 v{aX}, s4, v44
         s_add_u32 s4, s32, {RB}
         v_add_u32 v{aR}, s4, v{vL16}
         v_and_b32 v44, 1, v41
         v_mul_u32_u24 v45, {W3O - W5O}, v44
         s_add_u32 s4, s31, {WB + W5O}
         v_add_u32 v45, s4, v45
         v_lshl_add_u32 v46, v37, 3, v41
         v_add_u32 v46, v46, v40
         v_lshrrev_b32 v47, 4, v46
         v_add_u32 v47, v47, v46
         v_lshl_add_u32 v{aW2}, v47, 3, v45
         v_add_u32 v46, 4, v46
         v_lshrrev_b32 v47, 4, v46
         v_add_u32 v47, v47, v46
         v_lshl_add_u32 v{aW2b}, v47, 3, v45
         v_mul_u32_u24 v45, {W7O - W9O}, v44
         s_add_u32 s4, s31, {WB + W9O}
         v_add_u32 v45, s4, v45
         v_lshl_add_u32 v46, v41, 1, v42
         v_add_u32 v46, v46, v40
         v_lshrrev_b32 v47, 4, v46
         v_add_u32 v47, v47, v46
         v_lshl_add_u32 v{aW3}, v47, 3, v45
         v_add_u32 v46, 8, v46
         v_lshrrev_b32 v47, 4, v46
         v_add_u32 v47, v47, v46
         v_lshl_add_u32 v{aW3b}, v47, 3, v45
         v_mov_b32 v63, s23
         s_lshl_b32 s4, s44, 2
         s_add_u32 s4, s4, s45
         s_lshl_b32 s55, s4, 11
         v_add_u32 v{vGR}, s55, v{vL16}
         s_lshr_b32 s4, s55, 8
         v_mov_b32 v217, s4
         s_lshl_b32 s4, s48, 5
         v_mov_b32 v188, s4
         s_lshl_b32 s4, s44, 13
         s_lshl_b32 s8, s45, 11
         s_add_u32 s4, s4, s8
         s_add_u32 s4, s4, {WS_UT}
         v_lshl_add_u32 v253, v36, 7, s4""")
    touch = "global_load_dword v254, v253, s[42:43]"
    if cfg.touch_at == 0: I(touch)
    gate = []
    for d in range(4):
        gate.append("\n".join(f"v_dot2_f32_bf16 v{212+rw}, v{GX+4*rw+d}, v{GW+d}, {f'v{212+rw}' if d else 0}" for rw in range(2)))
    gate += [None, "v_permlane32_swap_b32 v212, v213", "v_add_f32 v212, v212, v213"]
    gate += [f"v_add_f32_dpp v212, v212, v212 row_shr:{n} row_mask:0xf bank_mask:0xf bound_ctrl:1" for n in (1, 2, 4, 8)]
    gate += ["v_add_f32_dpp v212, v212, v212 row_bcast:15 row_mask:0xa bank_mask:0xf",
             "v_cvt_pk_bf16_f32 v212, v212, v212\nv_lshlrev_b32 v212, 16, v212\nv_mul_f32 v212, 0xbfb8aa3b, v212\nv_exp_f32 v212, v212",
             "v_add_f32 v212, 1.0, v212\nv_rcp_f32 v212, v212", "v_cvt_pk_bf16_f32 v212, v212, v212",
             "v_readlane_b32 s38, v212, 31\nv_readlane_b32 s39, v212, 63\ns_pack_ll_b32_b16 s38, s38, s39\nv_mov_b32 v214, s38"]
    gate = [t for t in gate if t]
    def gate_out():
        I("v_cmp_eq_u32 vcc, 0, v215\ns_cbranch_vccz L_c4")
        A.label("L_c3")
        I("global_load_dword v215, v188, s[40:41] sc1", track=False)
        I("s_waitcnt vmcnt(0)\nv_cmp_eq_u32 vcc, 0, v215\ns_cbranch_vccnz L_c3")
        A.label("L_c4")
        I("s_mov_b64 exec, 1\nglobal_store_dwordx2 v217, v[214:215], s[42:43] sc1\ns_mov_b64 exec, -1")
    gate.append(gate_out)
    gload = f"""buffer_load_dwordx4 v[{GX}:{GX+3}], v{vGR}, s[56:59], 0 offen
             buffer_load_dwordx4 v[{GX+4}:{GX+7}], v{vGR}, s[56:59], 0 offen offset:1024
             global_load_dwordx4 v[{GW}:{GW+3}], v{vL16}, s[60:61]
             global_load_dword v215, v188, s[40:41] sc1"""
    if cfg.fine: stamp()
    dt_scale()
    S0 = half(0, 0)
    I(S0[0]); stamp()
    S0 = merge(S0[1:], red + [f"v_mul_f32 v62, s35, v{vDT}"], cfg.red_at, 3)
    S0.insert(cfg.gload_at, gload)
    if cfg.touch_at > 0: S0.insert(cfg.touch_at, touch)
    S0 = S0[:cfg.gate_at] + merge(S0[cfg.gate_at:], gate, 0, 2)
    S0.insert(cfg.gate_at - 10, f"global_load_dwordx4 v[{mSp}:{mSp+3}], v{vL16}, s[6:7]")
    run(S0)
    def frag_reads(ofs):
        R = []
        for s in range(8):
            R += [f"ds_read_b128 v[{FA+4*s}:{FA+4*s+3}], v{aH} offset:{ofs+32*s}", f"ds_read_b128 v[{FB+4*s}:{FB+4*s+3}], v{aL} offset:{ofs+32*s}"]
        return R
    def kmf(first):
        return [f"v_mfma_f32_32x32x16_f16 v[{KA}:{KA+15}], v[{FA+4*s}:{FA+4*s+3}], v[{FB+4*s}:{FB+4*s+3}], " +
                ("0" if first and s == 0 else f"v[{KA}:{KA+15}]") for s in range(8)]
    stamp()
    run(frag_reads(0))
    run(kmf(True))
    I("s_barrier")
    stamp()
    run(frag_reads(SCRS))
    run(kmf(False))
    o = lambda i: f"v{KA+i}"
    scale = lambda i: f"v_pk_mul_f32 v[{KA+i}:{KA+i+1}], v[{KA+i}:{KA+i+1}], v[62:63] op_sel_hi:[1,0]"
    for i in range(0, 8, 2): I(scale(i))
    stamp()
    I("s_barrier")
    stamp()
    I(f"s_mov_b64 exec, 1\nv_add_f32 {o(0)}, v61, {o(0)}\ns_mov_b64 exec, s[28:29]\nv_mov_b32 {o(5)}, {o(4)}\ns_mov_b64 exec, -1")
    Q = 36
    def wcopy(q, pairs, s, lagoff):
        (a, b), (c, d) = pairs
        return [f"v_cvt_pk_bf16_f32 v{q}, {a}, {b}\nv_cvt_pk_bf16_f32 v{q+1}, {c}, {d}",
                f"ds_write_b64 v{aKW}, v[{q}:{q+1}] offset:{520 + s*RDS - (0 if s == 3 else 8) - 2*lagoff}"]
    run(wcopy(Q, ((o(3), o(2)), (o(1), o(0))), 3, 0) + wcopy(Q + 2, ((o(4), o(3)), (o(2), o(1))), 0, 0) +
        wcopy(Q + 4, ((o(5), o(4)), (o(3), o(2))), 1, 0) + wcopy(Q + 6, ((o(6), o(5)), (o(4), o(3))), 2, 0))
    I(f"""v_cvt_pk_bf16_f32 v{Q+16}, {o(0)}, 0
          s_mov_b64 exec, 1
          ds_write_b32 v63, v{Q+16} offset:{0*RDS + 2*P0}
          ds_write_b32 v63, v{Q+1} offset:{1*RDS + 2*P0}
          ds_write_b32 v63, v{Q+3} offset:{2*RDS + 2*P0}
          ds_write_b32 v63, v{Q+16} offset:{2*RDS + 2*P0 + 4}
          s_mov_b64 exec, -1""")
    stamp()
    conv_mark = len(A.lines)
    MD = lambda mu: 64 + 2 * mu if mu < 32 else 24
    M4 = lambda i, f: 144 + 8 * i + 4 * f
    M8 = lambda i: [None, 168, 36, 40, 44][i]
    ACC = lambda c: 192 + 4 * c
    PF = cfg.PF
    xbufs = [172, 176, 180, 224, 228]
    XB = lambda k: xbufs[k % 5]
    wbufs = [232, 236, 128]
    WA = lambda k: wbufs[k % 3]
    q4 = lambda r: f"v[{r}:{r+3}]"
    def rd64(r, addr, off): return [f"ds_read_b64 v[{r}:{r+1}], v{addr} offset:{off}", f"ds_read_b64 v[{r+2}:{r+3}], v{addr} offset:{off+8}"]
    def rdtr(r, ad0, ad1, off): return [f"ds_read_b64_tr_b16 v[{r}:{r+1}], v{ad0} offset:{off}", f"ds_read_b64_tr_b16 v[{r+2}:{r+3}], v{ad1} offset:{off}"]
    rdM = lambda mu: rd64(MD(mu), aMD, 1024 - 32 * mu)
    rdX = lambda r, nu: f"ds_read_b128 {q4(r)}, v{aX} offset:{32*(nu+14)}"
    touched = set()
    def mf(c, a, b):
        src = q4(ACC(c)) if c in touched else "0"; touched.add(c)
        return f"v_mfma_f32_16x16x32_bf16 {q4(ACC(c))}, {q4(a)}, {q4(b)}, {src}"
    def result(c):
        out = [f"v_mov_b32 v241, {c+1}\nds_write_b128 v{aR}, {q4(ACC(c))} offset:{1024*c}", "ds_write_b32 v240, v241"]
        if c in (0, 1, 3, 7): out.append(stamp)
        return out
    v0_, v2_, v4_, v6_ = o(8), o(9), o(10), o(11)
    post = [scale(8) + "\n" + scale(10), f"s_mov_b64 exec, s[28:29]\nv_mov_b32 {v6_}, {v4_}\ns_mov_b64 exec, -1"]
    post += (wcopy(Q + 8, ((v4_, v2_), (v0_, v0_)), 3, 256) + wcopy(Q + 10, ((v4_, v4_), (v2_, v0_)), 0, 256) +
             wcopy(Q + 12, ((v4_, v4_), (v4_, v2_)), 1, 256) + wcopy(Q + 14, ((v6_, v4_), (v4_, v4_)), 2, 256))
    post += [f"""v_cvt_pk_bf16_f32 v{Q+17}, 0, {v4_}
          s_mov_b64 exec, s[28:29]
          ds_write_b32 v63, v{Q+17} offset:{3*RDS + 56}
          ds_write_b32 v63, v{Q+10} offset:{3*RDS + 60}
          ds_write_b32 v63, v{Q+10} offset:{0*RDS + 52}
          ds_write_b32 v63, v{Q+17} offset:{1*RDS + 52}
          s_mov_b64 exec, -1"""]
    post2 = [scale(12) + "\n" + scale(14),
             f"v_cvt_pk_bf16_f32 v{Q+18}, {o(12)}, {o(13)}\nv_cvt_pk_bf16_f32 v{Q+19}, {o(14)}, {o(15)}",
             f"ds_write_b32 v{aR4W}, v{Q+18}\nv_readlane_b32 s38, v{Q+18}, 63\ns_pack_ll_b32_b16 s38, s38, s38",
             f"ds_write_b16 v{aR8W}, v{Q+19} offset:128", f"ds_write_b16_d16_hi v{aR8W}, v{Q+19} offset:0",
             f"ds_write_b16 v{aR8W}, v{Q+19} offset:{128+388}", f"ds_write_b16_d16_hi v{aR8W}, v{Q+19} offset:388",
             "\n".join(f"v_and_b32 v{mSp+d}, s38, v{mSp+d}" for d in range(4))]
    x0 = [172, 176, 180, 224, 228, 232, 236, 244]
    for n, mu in enumerate(range(14, -1, -2)):
        run(rdM(mu)); I(rdX(x0[n], -mu))
    for n, mu in enumerate(range(14, -1, -2)):
        I(mf(0, MD(mu), x0[n]))
    run(post[:4]); run(result(0)); run(post[4:])
    for mu in (30, 28, 26, 24): run(rdM(mu))
    later = []
    for mu in (22, 20, 18, 16, 32): later += rdM(mu)
    later2 = []
    for i in (2, 1, 0):
        for f in (0, 1): later2 += rd64(M4(i, f), aM4, 128 * i + 64 * f)
    for i in (4, 3, 2, 1): later2 += rd64(M8(i), aM8, 64 * (i - 1))
    items = []
    wk = [0]
    def seg2(beta):
        out = []
        for f in (0, 1):
            r = WA(wk[0]); wk[0] += 1
            out.append((rdtr(r, aW2, aW2b, 544 * beta + 272 * f), [(c, r, M4(beta - c + 4, f)) for c in range(beta + 2, min(beta + 5, 8))]))
        return out
    def seg3(beta):
        r = WA(wk[0]); wk[0] += 1
        return [(rdtr(r, aW3, aW3b, 544 * beta), [(c, r, M8(beta - c + 8)) for c in range(beta + 4, 8)])]
    extra = {2: lambda: seg2(0) + seg2(1), 3: lambda: seg2(2) + seg3(0), 4: lambda: seg2(3) + seg3(1), 5: lambda: seg2(4) + seg3(2),
             6: lambda: seg2(5) + seg3(3)}
    for n, mu in enumerate(range(14, -1, -2)):
        m = [(1, MD(mu + 16), x0[n])]
        if mu == 0: m += [(2, MD(32), x0[n]), (4, mSp, x0[n])]
        items.append((0, [], m))
    k = 0
    for c in range(1, 8):
        xs = []
        for nu in range(16 * c - 14, 16 * c + 1, 2):
            mu = 16 * c - nu; r = XB(k); k += 1
            m = [(c, MD(mu), r)]
            if c + 1 < 8: m.append((c + 1, MD(mu + 16), r))
            if mu == 0:
                if c + 2 < 8: m.append((c + 2, MD(32), r))
                if c + 4 < 8: m.append((c + 4, mSp, r))
            xs.append(([rdX(r, nu)], m))
        ex = extra[c]() if c in extra else []
        items += [(c, rd, m) for rd, m in merge(xs, ex, 0, 2)]
    side = list(post2)
    firstw = min(j for j, it in enumerate(items) if it[1] and "tr_b16" in it[1][0])
    delay = []
    for j, (c, rd, m) in enumerate(items):
        if j + PF + 2 == firstw: I(f"ds_read_b128 v[248:251], v{vFL} offset:32")
        if j + PF == firstw:
            A.label("L_wchk")
            I("v_min_u32 v248, v248, v249\nv_min3_u32 v248, v248, v250, v251\nv_cmp_eq_u32 vcc, 0, v248\ns_cbranch_vccz L_wok")
            sn = A.snapshot()
            I(f"ds_read_b128 v[248:251], v{vFL} offset:32\ns_waitcnt lgkmcnt(0)\ns_branch L_wchk")
            A.label("L_wok", sn)
        rds = list(items[j + PF][1]) if j + PF < len(items) else []
        for n in range(2):
            if later: rds.append(later.pop(0))
            elif later2 and not side and j >= 8: rds.append(later2.pop(0))
        for n, spec in enumerate(m):
            I(mf(*spec))
            share = -(-len(rds) // (len(m) - n))
            run(rds[:share]); rds = rds[share:]
            if side and (not share or n == len(m) - 1): run([side.pop(0)])
        for d in list(delay):
            d[1] -= 1
            if d[1] == 0: side += result(d[0]); delay.remove(d)
        if j + 1 == len(items): run(side + result(c)); side = []
        elif items[j + 1][0] != c and c > 0: delay.append([c, 1])
    assert not later and not later2 and not delay and not side
    from asmlib import Ins
    live = set()
    for ln in A.lines[conv_mark:]:
        if ln.endswith(":") or ln.strip().startswith(";"): continue
        q = Ins(ln.strip())
        if q.kind == "mfma": assert set(q.A + q.B) <= live, ln
        elif q.mn.startswith("ds_read") or q.mn == "v_and_b32": live |= set(q.w)
        else: live -= set(q.w)
    stamp_out()
    I("s_endpgm")

    nst[0] = nst_io
    A.label("L_io", snap_io)
    if cfg.fine == 2: stamp()
    BND = 8
    aUW, aXio, aWW, aRr, offG, offOut, aZ, aWW3 = range(24, 32)
    vCR1 = 189
    I(f"""s_getreg_b32 s54, hwreg(HW_REG_XCC_ID, 0, 4)
         v_and_b32 v34, 3, v0
         v_lshrrev_b32 v35, 4, v0
         v_lshlrev_b32 v36, 1, v34
         v_xor_b32 v35, v35, v36
         v_and_b32 v36, 12, v0
         v_lshl_add_u32 v35, v35, 4, v36
         v_lshl_add_u32 v35, v34, 9, v35
         v_xor_b32 v36, 64, v35
         v_add_u32 v{vCRd}, s22, v35
         v_add_u32 v{vCR1}, s22, v36
         v_lshrrev_b32 v35, 2, v0
         v_lshlrev_b32 v36, 4, v34
         v_lshl_add_u32 v35, v35, 13, v36
         s_lshl_b32 s4, s48, 18
         s_lshl_b32 s23, s45, 6
         s_add_u32 s4, s4, s23
         s_lshl_b32 s23, s5, 8
         s_add_u32 s4, s4, s23
         s_add_u32 s4, s4, {WS_UT}
         v_add_u32 v{vST0}, s4, v35
         v_add_u32 v{vST1}, 0x20000, v{vST0}
         s_lshl_b32 s4, s48, 9
         s_add_u32 s4, s4, {WS_LF}
         v_lshl_add_u32 v{vPL}, v0, 3, s4
         global_load_dword v{vNR}, v{vPL}, s[42:43] sc1
         v_add_u32 v223, s22, v{vL16}
         s_lshl_b32 s4, s44, 13
         s_lshl_b32 s23, s45, 10
         s_add_u32 s4, s4, s23
         s_add_u32 s4, s4, {WS_UT}
         v_add_u32 v{vU0}, s4, v{vL16}
         v_add_u32 v{vU1}, 0x1000, v{vU0}
         s_lshl_b32 s4, s44, 4
         s_lshl_b32 s23, s45, 2
         s_add_u32 s4, s4, s23
         s_add_u32 s4, s4, {WS_LF}
         v_mov_b32 v216, s4
         s_add_u32 s4, s47, {WS_HELLO}
         v_mov_b32 v218, s4
         v_and_b32 v34, 31, v0
         s_add_u32 s23, s49, {WS_HELLO}
         v_lshl_add_u32 v{vHL}, v34, 2, s23
         s_lshl_b32 s26, s45, 9
         s_add_u32 s4, s26, {UB + 480}
         v_lshl_add_u32 v{aUW}, v0, 3, s4
         v_and_b32 v34, 15, v0
         v_lshrrev_b32 v35, 4, v0
         v_lshl_add_u32 v36, v34, 1, v35
         s_add_u32 s4, s26, {UB + 448}
         v_lshl_add_u32 v{aXio}, v36, 4, s4
         v_lshl_add_u32 v36, v34, 2, v35
         s_lshl_b32 s23, s45, 10
         v_lshl_add_u32 v{offG}, v36, 4, s23
         s_add_u32 s4, s23, {RB}
         v_add_u32 v{aRr}, s4, v{vL16}
         s_lshl_b32 s4, s45, 18
         s_add_u32 s4, s4, s47
         v_lshl_add_u32 v{offOut}, v36, 12, s4
         s_mul_i32 s4, s45, 544
         v_add_u32 v36, 2, v36
         v_lshrrev_b32 v37, 4, v36
         v_add_u32 v37, v37, v36
         v_lshl_add_u32 v{aWW}, v37, 3, s4
         v_add_u32 v36, 1, v36
         v_lshrrev_b32 v37, 4, v36
         v_add_u32 v37, v37, v36
         v_lshl_add_u32 v{aWW3}, v37, 3, s4
         v_and_b32 v36, 3, v0
         v_bfe_u32 v37, v0, 2, 2
         v_min_u32 v37, 2, v37
         v_mul_u32_u24 v37, {W3O}, v37
         v_min_u32 v37, {W9O}, v37
         v_lshl_add_u32 v36, v36, 3, v37
         v_bfe_u32 v37, v0, 4, 1
         v_mul_u32_u24 v37, {WSTR}, v37
         v_add_u32 v{aZ}, v36, v37
         s_add_u32 s6, s6, L_tabi-L_pc
         s_addc_u32 s7, s7, 0
         s_mov_b32 s30, 0x05040100
         s_mov_b32 s31, 0x07060302
         s_sub_u32 s23, s22, {MOFS}""")
    consts()
    I(f"""s_mov_b32 m0, s23
         global_load_dword v215, v188, s[40:41] sc1""")
    if cfg.prio: I("s_setprio 1")
    if cfg.fine == 2: stamp()
    dt_scale()
    def tile():
        I(f"ds_write_b128 v223, v[{TR}:{TR+3}]\nds_write_b128 v223, v[{TR+4}:{TR+7}] offset:1024")
        stamp()
        for Jp in range(2):
            for i in (0, 2): I(f"ds_read2_b32 v[{TR+4*Jp+i}:{TR+4*Jp+i+1}], v{(vCRd, vCR1)[Jp]} offset0:{32*i} offset1:{32*(i+1)}")
        I(f"ds_write_addtid_b32 v32 offset:{MOFS}")
    def tile2():
        I(f"""global_store_dwordx4 v{vST0}, v[{TR}:{TR+3}], s[42:43]
             global_store_dwordx4 v{vST1}, v[{TR+4}:{TR+7}], s[42:43]""")
    def publish():
        stamp()
        I("s_waitcnt vmcnt(0)"); A.vm = []
        I("v_cmp_eq_u32 vcc, 0, v215\ns_cbranch_vccz L_io4")
        A.label("L_io3")
        I("global_load_dword v215, v188, s[40:41] sc1", track=False)
        I("s_waitcnt vmcnt(0)\nv_cmp_eq_u32 vcc, 0, v215\ns_cbranch_vccnz L_io3")
        A.label("L_io4")
        I(f"""v_lshl_add_u32 v219, s54, 1, v215
             s_mov_b64 exec, 1
             global_store_dword v216, v219, s[42:43]
             s_cmp_lg_u32 s45, 0
             s_cbranch_scc1 L_io4b""")
        I("global_store_dword v218, v219, s[42:43] sc1", track=False)
        A.label("L_io4b")
        I("s_mov_b64 exec, -1")
        stamp()
    tabl = [f"global_load_dwordx4 v[{BND+4*k}:{BND+4*k+3}], v{vL16}, s[6:7] offset:{1024*k}" for k in range(4)]
    U1, U2 = 224, 228
    def fetch_u():
        if cfg.fine == 3: stamp()
        I("s_mov_b32 s33, 0")
        A.label("L_poll")
        I("s_waitcnt vmcnt(0)"); A.vm = []
        I("v_cmp_ne_u32 vcc, v220, v219\nv_cmp_ne_u32 s[12:13], v221, v219\ns_add_u32 s33, s33, 1\ns_or_b64 vcc, vcc, s[12:13]")
        if not cfg.force_slow: I("s_cbranch_vccz L_fast")
        I(f"""global_load_dwordx2 v[220:221], v{vPL}, s[42:43] sc1
             s_and_b32 s4, s33, 15
             s_cbranch_scc1 L_poll
             global_load_dword v222, v{vHL}, s[42:43] sc1
             s_cmp_gt_u32 s33, 0x40000
             s_cbranch_scc1 L_slow
             v_cmp_ne_u32 s[12:13], v222, v219
             v_sub_u32 v222, v222, v215
             v_and_b32 v222, 0xffffffe1, v222
             v_cmp_ne_u32 vcc, 0, v222
             s_cbranch_vccnz L_poll""")
        if not cfg.force_slow: I("s_cmp_eq_u64 s[12:13], 0\ns_cbranch_scc1 L_poll")
        A.label("L_slow")
        I(f"""s_lshl_b32 s4, s45, 18
             s_add_u32 s4, s4, s47
             v_lshl_add_u32 v222, v0, 12, s4
             s_mov_b32 s23, 0x100000""")
        for base, so in ((U1, "0"), (U2, "s23")):
            for j in range(4): I(f"buffer_load_dword v{base+j}, v222, s[56:59], {so} offen offset:{1024*j}")
        I("s_waitcnt vmcnt(0)\ns_branch L_have")
        A.vm = []
        A.label("L_fast")
        I(f"""global_load_dwordx4 v[{U1}:{U1+3}], v{vU0}, s[42:43] sc1
             global_load_dwordx4 v[{U2}:{U2+3}], v{vU1}, s[42:43] sc1""")
        A.label("L_have")
        stamp()
    S1 = merge(half(1, MOFS), red, cfg.red_at, 3)
    first_w = min(i for i, t in enumerate(S1) if "addtid" in t)
    held = []
    if cfg.tile_at > first_w:
        held = [t for t in S1[:cfg.tile_at] if "addtid" in t]
        S1 = [t for t in S1[:cfg.tile_at] if "addtid" not in t] + S1[cfg.tile_at:]
    ta = cfg.tile_at - len(held)
    S1 = S1[:ta] + [tile] + held + S1[ta:ta + 6] + [tile2] + S1[ta + 6:]
    S1.insert(cfg.pub_at, publish)
    S1 = S1[:cfg.pub_at + 10] + merge(S1[cfg.pub_at + 10:], tabl, 0, 6)
    S1.insert(len(S1) - cfg.poll_at, f"global_load_dwordx2 v[220:221], v{vPL}, s[42:43] sc1")
    run(S1)
    I("s_waitcnt lgkmcnt(0)"); A.lg = []
    stamp()
    I("s_barrier")
    fetch_u()
    I(f"""v_add_u32 v76, 0x1000, v{offG}
         s_lshl_b32 s4, s45, 5
         v_mov_b32 v78, s4""")
    GQ = 128
    def gather():
        I(f"""global_load_dword v{GQ+8}, v78, s[40:41] sc1
              global_load_dword v{GQ+9}, v78, s[40:41] offset:128 sc1
              global_load_dwordx4 v[{GQ}:{GQ+3}], v{offG}, s[42:43] sc1
              global_load_dwordx4 v[{GQ+4}:{GQ+7}], v76, s[42:43] sc1""")
    gather()
    I("v_mov_b32 v34, 0\nv_mov_b32 v35, 0\ns_cmp_lg_u32 s45, 0\ns_cbranch_scc1 L_io5")
    I(f"v_subrev_u32 v72, 480, v{aUW}\nds_write_b64 v72, v[34:35]\nds_write_b64 v72, v[34:35] offset:{USTR}")
    A.label("L_io5")
    for base, off in ((U1, 0), (U2, 2048)):
        I(f"""v_perm_b32 v72, v{base+1}, v{base}, s30
              v_perm_b32 v73, v{base+3}, v{base+2}, s30
              v_perm_b32 v74, v{base+1}, v{base}, s31
              v_perm_b32 v75, v{base+3}, v{base+2}, s31
              ds_write_b64 v{aUW}, v[72:73] offset:{off}
              ds_write_b64 v{aUW}, v[74:75] offset:{off+USTR}""")
    I("s_waitcnt lgkmcnt(0)"); A.lg = []
    stamp()
    I("s_barrier")
    I(f"""ds_read_b128 v[80:83], v{aXio}
         ds_read_b128 v[84:87], v{aXio} offset:{USTR}
         s_lshr_b32 s4, s45, 1
         s_add_u32 s4, s4, 4
         s_sub_u32 s4, s4, s45
         s_mul_i32 s23, s46, {USTR}
         s_lshl_b32 s8, s4, 9
         s_add_u32 s23, s23, s8
         v_add_u32 v72, s23, v{aXio}
         ds_read_b128 v[88:91], v72
         s_mul_i32 s23, s46, {WSTR}
         s_mul_i32 s8, s4, 544
         s_add_u32 s23, s23, s8
         v_add_u32 v73, s23, v{aWW}
         v_add_u32 v75, s23, v{aWW3}
         s_lshl_b32 s4, s45, 2
         s_add_u32 s4, s4, {FLAG + 32}
         v_mov_b32 v79, s4
         v_mov_b32 v74, 1
         s_mov_b32 s33, 0
         s_cmp_lg_u32 s45, 0
         s_cbranch_scc1 L_wz
         ds_write_b64 v{aZ}, v[34:35]""")
    A.label("L_wz")
    units = [(0, (aWW, aWW3), 0, a) for a in range(4)] + [(1, (aWW, aWW3), WSTR, a) for a in range(4)] + [(2, (73, 75), 0, a) for a in range(2)]
    for u, (n, ad, off, a) in enumerate(units):
        I(f"v_mfma_f32_16x16x32_bf16 v[{140+4*u}:{143+4*u}], v[{BND+4*a}:{BND+4*a+3}], v[{80+4*n}:{83+4*n}], 0")
    for u, (n, ad, off, a) in enumerate(units):
        r = 140 + 4 * u
        I(f"v_cvt_pk_bf16_f32 v{r}, v{r}, v{r+1}\nv_cvt_pk_bf16_f32 v{r+1}, v{r+2}, v{r+3}")
        I(f"ds_write_b64 v{ad[a == 1]}, v[{r}:{r+1}] offset:{WB + off + (W5O, W3O, W9O, W7O)[a]}")
    I("ds_write_b32 v79, v74")
    stamp()
    A.label("L_gchk")
    I("s_waitcnt vmcnt(0)"); A.vm = []
    I(f"""v_cmp_eq_u32 s[34:35], v{GQ+1}, v{GQ+8}
         v_cmp_eq_u32 s[36:37], v{GQ+3}, v{GQ+8}
         v_cmp_eq_u32 s[38:39], v{GQ+5}, v{GQ+9}
         v_cmp_eq_u32 s[52:53], v{GQ+7}, v{GQ+9}
         v_cmp_ne_u32 s[8:9], 0, v{GQ+8}
         v_cmp_ne_u32 vcc, 0, v{GQ+9}
         s_add_u32 s33, s33, 1
         s_and_b64 s[34:35], s[34:35], s[36:37]
         s_and_b64 s[38:39], s[38:39], s[52:53]
         s_and_b64 s[8:9], s[8:9], vcc
         s_and_b64 s[34:35], s[34:35], s[38:39]
         s_and_b64 s[34:35], s[34:35], s[8:9]
         s_cmp_eq_u64 s[34:35], exec
         s_cbranch_scc1 L_gok
         s_cmp_gt_u32 s33, 0x40000
         s_cbranch_scc1 L_gok""")
    gather()
    I("s_branch L_gchk")
    A.label("L_gok")
    A.vm = []
    stamp()
    I("s_mov_b32 s27, s45")
    A.label("L_fin_loop")
    gq = GQ
    for i in range(4):
        I(f"v_and_b32 v{96+i}, 0xffff0000, v{gq+2*(i>>1)}" if i & 1 else f"v_lshlrev_b32 v{96+i}, 16, v{gq+2*(i>>1)}")
    for i in range(4): I(f"v_sub_f32 v{100+i}, 1.0, v{96+i}")
    I("v_cvt_pk_bf16_f32 v101, v100, v101\nv_cvt_pk_bf16_f32 v103, v102, v103")
    I("v_lshlrev_b32 v100, 16, v101\nv_and_b32 v101, 0xffff0000, v101\nv_lshlrev_b32 v102, 16, v103\nv_and_b32 v103, 0xffff0000, v103")
    I("s_branch L_prog1")
    A.label("L_prog")
    I("s_sleep 1")
    A.label("L_prog1")
    I(f"ds_read_b128 v[116:119], v{vFL} offset:16")
    I("v_min_u32 v116, v116, v117\nv_min3_u32 v116, v116, v118, v119\nv_cmp_ge_u32 vcc, s27, v116\ns_cbranch_vccnz L_prog")
    for n in range(4): I(f"ds_read_b128 v[{80+4*n}:{83+4*n}], v{aRr} offset:{8192*n}")
    for ch in range(2):
        for i in range(4): I(f"v_mul_f32 v{80+4*ch+i}, v{96+i}, v{80+4*ch+i}")
    for i in range(4):
        for ch in range(2): I(f"v_fmac_f32 v{80+4*ch+i}, v{100+i}, v{88+4*ch+i}")
        if i == 0 and cfg.stamps: I(f"{'s_memtime' if cfg.cycles else 's_memrealtime'} s[94:95]", track=False)
        I(f"v_cvt_pk_bf16_f32 v{112+i}, v{80+i}, v{84+i}")
        I(f"global_store_dword v{offOut}, v{112+i}, s[62:63] offset:{1024*i}")
    I(f"""v_mov_b32 v{gq}, v{gq+4}
         v_mov_b32 v{gq+2}, v{gq+6}
         v_add_u32 v{aRr}, 4096, v{aRr}
         v_add_u32 v{offOut}, 0x100000, v{offOut}
         s_add_u32 s27, s27, 4""")
    if cfg.stamps:
        I("s_cmp_lt_u32 s27, 8\ns_cbranch_scc0 L_fin_out")
        if nst[0] < 15: I(f"s_waitcnt lgkmcnt(0)\ns_mov_b32 s{64+2*nst[0]}, s94"); nst[0] += 1
        stamp(); I("s_branch L_fin_loop"); A.label("L_fin_out")
        if nst[0] < 15: I(f"s_waitcnt lgkmcnt(0)\ns_mov_b32 s{64+2*nst[0]}, s94"); nst[0] += 1
        stamp(); I("s_waitcnt vmcnt(0)"); stamp()
    else:
        I("s_cmp_lt_u32 s27, 8\ns_cbranch_scc1 L_fin_loop")
    stamp_out()
    A.label("L_end")
    I("s_endpgm")
    tc, ti = tables()
    A.raw(".p2align 7\nL_tabc:")
    for i in range(0, len(tc), 8): A.raw(".long " + ", ".join("0x%x" % x for x in tc[i:i + 8]))
    A.raw("L_tabi:")
    for i in range(0, len(ti), 8): A.raw(".long " + ", ".join("0x%x" % x for x in ti[i:i + 8]))
    A.raw("L_fin:")
    A.raw(f""".section .rodata,"a"
.p2align 6
.amdhsa_kernel {KN}_kernel
  .amdhsa_next_free_vgpr 256
  .amdhsa_next_free_sgpr 102
  .amdhsa_accum_offset 256
  .amdhsa_group_segment_fixed_size 0
  .amdhsa_kernarg_size 144
  .amdhsa_user_sgpr_count 2
  .amdhsa_user_sgpr_kernarg_segment_ptr 1
  .amdhsa_system_sgpr_workgroup_id_x 1
.end_amdhsa_kernel""")
    sys.stderr.write(f"instructions {A.nins}, nops {A.nops}, lds {LDS_BYTES}\n")
    if cfg.align:
        A.lines, wid, nop = align8(A.text().split("\n"))
        sys.stderr.write(f"alignment: {wid} widened, {nop} nops\n")
    return A.text()

if __name__ == "__main__":
    out = sys.argv[1]
    for kv in sys.argv[2:]:
        k, v = kv.split("="); setattr(Cfg, k, eval(v))
    open(out, "w").write(gen())
```

```python
import sys
from asmlib import Asm, merge, align8
KN = "gated_mix__ssm_conv_s4d__ssm_conv_s4d__prompt"

class Cfg:
    stamps = False
    cycles = False
    padto = 1500
    probe = (0, 0)
    force_slow = False
    PF = 3
    fine = False
    align = True
    red_at = 56
    tile_at = 40
    pub_at = 100
    gate_at = 25
    gate_sp = 1
    gload_at = -1
    gather_at = 0
    wlow = False
    gmode = "b"
    gsleep = 4
    touch_at = 0
    poll_at = 65
    fetch_at = 35
    prio = True

ROW = 272
SCRW = 57 * ROW
SCRS = 4 * SCRW
MOFS = 48000
WB = 0; WSTR = 11112
W5O, W3O, W9O, W7O = 0, 3440, 6728, 8920
RB = WB + 2 * WSTR
UB = 8 * SCRW; USTR = 4608
KB = UB + 2 * USTR; KSTR = 6656
RDS = 1344; R4O = 5376; R8O = 5888
FLAG = KB + 4 * KSTR
LDS_BYTES = FLAG + 64
P0 = 540
WS_LF, WS_HELLO, WS_G, WS_UT = 0x4000, 0x6000, 0x8000, 0x200000

def drow_hi(rho):
    q, hh, i = rho >> 3, (rho >> 2) & 1, rho & 3
    if q == 0: return 4 * hh + i
    if q == 1: return 4 * hh + 4 + i
    if q == 2: return 256 + 4 * hh + 2 * i
    return [[520, 516, 1032, 1544], [776, 772, 1288, 1800]][hh][i]
hslot = lambda rho: rho - 4 * (rho >= 8) - (rho >= 15) - 2 * (rho >= 20)
HSLOT = {drow_hi(rho): hslot(rho) for rho in range(32) if rho not in (11, 15)}
assert len(HSLOT) == 25 and sorted(HSLOT.values()) == list(range(25))
HTREE = [(1, 0, 1), (2, 0, 2), (3, 2, 1), (4, 0, 4), (5, 4, 1), (6, 4, 2), (7, 6, 1), (8, 0, 8), (9, 8, 1), (10, 8, 2),
         (256, 0, 256), (258, 2, 256), (260, 4, 256), (262, 6, 256), (264, 8, 256), (266, 10, 256),
         (516, 4, 512), (520, 8, 512), (772, 516, 256), (776, 520, 256), (1032, 8, 1024), (1288, 264, 1024), (1544, 520, 1024), (1800, 776, 1024)]

def tables():
    comp, io = [], []
    for l in range(64):
        b, g = l & 15, l >> 4
        def frag(pred, val):
            return [(val if pred(8 * g + 2 * d) else 0) | (val if pred(8 * g + 2 * d + 1) else 0) << 16 for d in range(4)]
        comp.append(frag(lambda e: e in (b + 12, b + 13), 0xffff))
        t = []
        for tau, w in ((8, 2), (12, 1), (8, 4), (8, 3)):
            t += frag(lambda e: abs(tau + b - e) <= w, 0x3f80)
        io.append(t)
    def lay(tb):
        n = len(tb[0]) // 4
        return [tb[l][4 * k + j] & 0xffffffff for k in range(n) for l in range(64) for j in range(4)]
    return lay(comp), lay(io)

def gen(cfg=Cfg):
    A = Asm(); I = A.I
    def run(stream):
        for t in stream:
            if callable(t): t()
            else: I(t)
    head = open("cdna_kernels/" + KN + ".s.ref").read().split("; Override launch")[0]
    A.raw(head.rstrip())
    A.raw(f"; @launch grid=(256,1,1) block=(512,1,1) lds={LDS_BYTES}")
    A.raw('.amdgcn_target "amdgcn-amd-amdhsa--gfx950"\n.text')
    A.raw(f".globl {KN}_kernel\n.p2align 8\n.type {KN}_kernel,@function\n{KN}_kernel:")
    nst = [0]
    def stamp():
        if cfg.stamps:
            if nst[0] < 15: I(f"{'s_memtime' if cfg.cycles else 's_memrealtime'} s[{64+2*nst[0]}:{65+2*nst[0]}]", track=False); nst[0] += 1
    def stamp_out():
        if cfg.stamps == 3:
            lab = f"L_pad{A.nins}"
            pw, pk = cfg.probe
            I(f"s_waitcnt vmcnt(0) lgkmcnt(0)\ns_sub_u32 s98, s{64+2*pk}, s64\ns_mul_i32 s98, s98, 10\ns_lshl_b32 s97, s2, 3\ns_add_u32 s97, s97, s3")
            I(f"s_cmp_eq_u32 s97, {77*8+pw}\ns_cselect_b32 s98, s98, 0\ns_add_u32 s98, s98, {cfg.padto}")
            A.label(lab)
            I("s_memrealtime s[96:97]", track=False)
            I(f"s_waitcnt lgkmcnt(0)\ns_sub_u32 s96, s96, s64\ns_cmp_lt_u32 s96, s98\ns_cbranch_scc1 {lab}")
        elif cfg.stamps:
            n = nst[0]
            I("s_waitcnt lgkmcnt(0)\ns_lshl_b32 s97, s2, 3\ns_add_u32 s97, s97, s3\ns_lshl_b32 s97, s97, 6\ns_add_u32 s97, s97, 0x100000\nv_mov_b32 v250, s97")
            I("s_mov_b64 exec, 1")
            for i in range(16):
                I(f"v_mov_b32 v251, {f's{64+2*i}' if i < n else 0}\nglobal_store_dword v250, v251, s[42:43] offset:{4*i}")

    vLR, vAI, vCR, vCI = 1, 2, 3, 4
    vDS, vCRd, vST0, vST1, vPL, vHL, vU0, vU1, vL16, vGR, vFL, vNR = range(176, 188)
    GX, GW, TR = 192, 200, 204
    vDT = 33
    stamp()
    I("s_cmp_ge_u32 s2, 0x100\ns_cbranch_scc1 L_end\ns_getpc_b64 s[6:7]")
    A.raw("L_pc:")
    I(f"""v_lshrrev_b32 v1, 6, v0
         s_andn2_b32 s4, s2, 7
         v_add_lshl_u32 v2, v1, s4, 7
         v_readfirstlane_b32 s3, v1
         v_min_u32 v2, L_fin-L_pc-4, v2
         global_load_dword v255, v2, s[6:7]
         s_bfe_u32 s4, s3, 0x10001
         s_mul_i32 s4, s4, 56
         s_add_u32 s52, s0, s4
         s_addc_u32 s53, s1, 0
         s_load_dwordx8 s[8:15], s[52:53], 8
         s_load_dwordx4 s[16:19], s[52:53], 40
         s_load_dwordx2 s[56:57], s[0:1], 0
         s_load_dwordx4 s[60:63], s[0:1], 112
         s_load_dwordx4 s[40:43], s[0:1], 128
         s_memrealtime s[50:51]
         v_and_b32 v0, 63, v0
         v_mov_b32 v28, 0
         v_mov_b32 v29, 0
         v_mov_b32 v30, 0
         v_mov_b32 v31, 0
         v_mov_b32 v{vFL}, {FLAG}
         s_and_b32 s48, s2, 7
         s_lshr_b32 s5, s2, 3
         s_lshl_b32 s44, s48, 5
         s_add_u32 s44, s44, s5
         s_and_b32 s45, s3, 3
         s_and_b32 s46, s3, 1
         s_lshl_b32 s4, s44, 1
         s_add_u32 s4, s4, s46
         s_lshl_b32 s4, s4, 8
         v_lshl_add_u32 v5, v0, 2, s4
         s_lshl_b32 s47, s44, 2
         s_mul_i32 s22, s3, {SCRW}
         s_mov_b32 m0, s22
         v_lshlrev_b32 v{vL16}, 4, v0
         v_lshrrev_b32 v6, 3, v0
         v_and_b32 v7, 0x70, v{vL16}
         v_lshl_add_u32 v6, v6, 10, v7
         v_and_b32 v7, 32, v0
         v_xor_b32 v6, v7, v6
         s_lshl_b32 s49, s48, 7
         s_lshl_b32 s4, s5, 16
         s_add_u32 s4, s4, s49
         s_lshl_b32 s23, s45, 14
         s_add_u32 s4, s4, s23
         v_add_u32 v{vDS}, s4, v6
         v_xor_b32 v{vGR}, 64, v{vDS}
         s_lshl_b32 s4, s46, 1
         s_add_u32 s4, s4, s47
         v_mov_b32 v7, s4
         v_mov_b32 v{vDT}, 0
         v_mov_b32 v61, 0
         s_mov_b32 s58, 0x200000
         s_mov_b32 s59, 0x20000
         s_mov_b32 s23, {8*1024 - 1024}""")
    A.wait(lg=0)
    if cfg.fine: stamp()
    I(f"""global_load_dword v{vLR}, v5, s[8:9]
         global_load_short_d16_hi v{vDT}, v7, s[16:17]
         global_load_dword v{vAI}, v5, s[10:11]
         s_cmp_ge_u32 s3, 4
         s_cbranch_scc0 L_par""")
    snap_c = A.snapshot(); nst_c = nst[0]
    I(f"""buffer_load_dwordx4 v[{TR}:{TR+3}], v{vDS}, s[56:59], 0 offen
         buffer_load_dwordx4 v[{TR+4}:{TR+7}], v{vGR}, s[56:59], s23 offen offset:1024
         s_lshl_b32 s4, s48, 5
         v_mov_b32 v188, s4
         s_or_b32 s4, s5, s45
         s_cbranch_scc1 L_io2
         s_or_b32 s50, s50, 1
         v_mov_b32 v190, s50
         s_mov_b64 exec, 1""")
    I("global_store_dword v188, v190, s[40:41] sc1", track=False)
    I("s_mov_b64 exec, -1")
    A.label("L_io2")
    I(f"""global_load_dword v{vCR}, v5, s[12:13]
         global_load_dword v{vCI}, v5, s[14:15]""")
    if cfg.fine == 2: stamp()
    I("s_branch L_io")
    snap_io = A.snapshot(); nst_io = nst[0]
    A.label("L_par", snap_c); nst[0] = nst_c
    if cfg.fine == 2: stamp()

    def consts():
        I("""s_mov_b32 s24, 0x3fb8aa3b
             s_mov_b32 s26, 0x42000000
             s_mov_b32 s27, 0x42000000
             s_mov_b32 s28, 0
             s_mov_b32 s29, 0x80000000
             v_mov_b32 v32, 0x3c00""")
    def dt_scale():
        I(f"""v_mul_f32 v{vDT}, s24, v{vDT}
             v_exp_f32 v{vDT}, v{vDT}
             v_cvt_pk_bf16_f32 v{vDT}, v{vDT}, v{vDT}
             v_lshlrev_b32 v{vDT}, 16, v{vDT}""")
    red = [f"v_and_b32 v34, 0x7fff7fff, v{vCR}", f"v_and_b32 v35, 0x7fff7fff, v{vCI}", "v_pk_max_u16 v34, v34, v35",
           "v_lshrrev_b32 v35, 16, v34", "v_and_b32 v34, 0xffff, v34", "v_max_u32 v34, v34, v35"]
    red += [f"v_max_u32_dpp v34, v34, v34 {m}" for m in
            ("row_shr:1 row_mask:0xf bank_mask:0xf", "row_shr:2 row_mask:0xf bank_mask:0xf", "row_shr:4 row_mask:0xf bank_mask:0xf",
             "row_shr:8 row_mask:0xf bank_mask:0xf", "row_bcast:15 row_mask:0xa bank_mask:0xf", "row_bcast:31 row_mask:0xc bank_mask:0xf")]
    red += ["v_readlane_b32 s34, v34, 63",
            "s_lshr_b32 s34, s34, 7\ns_max_u32 s34, s34, 11\ns_sub_u32 s36, 264, s34\ns_lshl_b32 s36, s36, 23\ns_mov_b32 s37, s36\n"
            "s_sub_u32 s35, s34, 9\ns_lshl_b32 s35, s35, 23"]
    ZA, ZB, TP = 36, 38, 40
    AB = 42
    E1, E2 = 46, 48
    Wr = {p: 50 + i for i, p in enumerate((1, 2, 4, 8, 16, 32, 64, 128, 256, 512, 1024))}
    Lr = {r: 144 + r for r in range(1, 16)}
    for p in (8, 16, 32, 64): Lr[p // 8] = Wr[p]
    TMP = [160, 161, 162, 163]
    Hk = {h: 164 + i for i, h in enumerate((0, 2, 4, 6, 8, 10, 264, 516, 520, 776))}
    def cm(dst, a, b, conj=False):
        if conj:
            return [f"v_pk_mul_f16 v{dst}, v{a}, v{b} op_sel_hi:[0,1] neg_hi:[0,1]",
                    f"v_pk_fma_f16 v{dst}, v{a}, v{b}, v{dst} op_sel:[1,1,0] op_sel_hi:[1,0,1]"]
        return [f"v_pk_mul_f16 v{dst}, v{a}, v{b} op_sel_hi:[0,1]",
                f"v_pk_fma_f16 v{dst}, v{a}, v{b}, v{dst} op_sel:[1,1,0] op_sel_hi:[1,0,1] neg_lo:[1,0,0]"]
    def sq(z):
        return [f"v_pk_mul_f32 v[{TP}:{TP+1}], v[{z}:{z+1}], v[{z}:{z+1}] op_sel_hi:[0,1]",
                f"v_pk_fma_f32 v[{z}:{z+1}], v[{z}:{z+1}], v[{z}:{z+1}], v[{TP}:{TP+1}] op_sel:[1,1,0] op_sel_hi:[1,0,1] neg_lo:[1,0,0]"]
    def half(h, ofs):
        up = (lambda d, s: f"v_and_b32 v{d}, 0xffff0000, v{s}") if h else (lambda d, s: f"v_lshlrev_b32 v{d}, 16, v{s}")
        S = [up(AB, vLR), f"v_mul_f32 v{AB}, s24, v{AB}", f"v_exp_f32 v{AB}, v{AB}", up(AB + 1, vAI),
             f"v_cvt_pk_bf16_f32 v{AB}, v{AB}, v{AB}", f"v_mul_f32 v{AB+1}, v{vDT}, v{AB+1}", f"v_lshlrev_b32 v{AB}, 16, v{AB}",
             f"v_mul_f32 v{AB+1}, 0.15915494, v{AB+1}", f"v_mul_f32_e64 v{AB}, -v{vDT}, v{AB}", f"v_fract_f32 v{TP}, v{AB+1}",
             f"v_mul_f32 v{AB}, s24, v{AB}", f"v_cos_f32 v{ZA}, v{TP}",
             f"v_pk_mul_f32 v[{AB+2}:{AB+3}], v[{AB}:{AB+1}], s[26:27]", f"v_sin_f32 v{ZA+1}, v{TP}",
             f"v_fract_f32 v{TP+1}, v{AB+3}", f"v_exp_f32 v{E1}, v{AB}", f"v_cos_f32 v{ZB}, v{TP+1}", f"v_exp_f32 v{E2}, v{AB+2}",
             f"v_sin_f32 v{ZB+1}, v{TP+1}",
             f"v_pk_mul_f32 v[{ZA}:{ZA+1}], v[{ZA}:{ZA+1}], v[{E1}:{E1+1}] op_sel_hi:[1,0]",
             f"v_pk_mul_f32 v[{ZB}:{ZB+1}], v[{ZB}:{ZB+1}], v[{E2}:{E2+1}] op_sel_hi:[1,0]"]
        cv = lambda p, z: f"v_cvt_pk_f16_f32 v{Wr[p]}, v{z}, v{z+1}"
        wl = lambda r, v: f"ds_write_addtid_b32 v{v} offset:{ofs + r*ROW}"
        wh = lambda hh, v: f"ds_write_addtid_b32 v{v} offset:{ofs + (32+HSLOT[hh])*ROW}"
        S += [cv(1, ZA), cv(32, ZB), wl(4, Wr[32])]
        for pa, pb in ((2, 64), (4, 128), (8, 256), (16, 512), (None, 1024)):
            if pa: S += sq(ZA) + [cv(pa, ZA)]
            S += sq(ZB) + [cv(pb, ZB)]
            if pa in (8, 16): S.append(wl(pa // 8, Wr[pa]))
            if pb in (64, 128): S.append(wl(pb // 8, Wr[pb]))
        if h == 0 and cfg.prio: S.append("s_setprio 0")
        k = 0
        for r in range(3, 32):
            top = 1 << (r.bit_length() - 1)
            if r == top: continue
            d = Lr[r] if r < 16 else TMP[k % 4]; k += 1
            S += cm(d, Lr[r - top], Wr[8 * top]) + [wl(r, d)]
        S += [up(TP, vCR), up(TP + 1, vCI), f"v_pk_mul_f32 v[{TP}:{TP+1}], v[{TP}:{TP+1}], s[36:37]",
              f"v_cvt_pk_f16_f32 v{Hk[0]}, v{TP}, -v{TP+1}", wh(0, Hk[0])]
        for hh, a, b in HTREE:
            d = Hk.get(hh) or TMP[k % 4]; k += 1
            S += cm(d, Hk[a], Wr[b], True) + [wh(hh, d)]
        return S

    T = 8
    aL, aH, aKW, aR4W, aR8W, aMD, aM4, aM8, aX, aW2, aW3, aR = range(T, T + 12)
    mSp = T + 12
    aW2b, aW3b = 5, 6
    FA, FB, KA = 64, 96, 128
    if cfg.prio: I("s_setprio 2")
    I(f"global_load_dword v{vCR}, v5, s[12:13]\nglobal_load_dword v{vCI}, v5, s[14:15]\nglobal_load_short_d16_hi v61, v7, s[18:19]")
    if cfg.fine == 2: stamp()
    I(f"""s_add_u32 s6, s6, L_tabc-L_pc
         s_addc_u32 s7, s7, 0
         s_mul_i32 s23, s3, {KSTR}
         s_add_u32 s23, s23, {KB}
         v_add_u32 v7, s23, v{vL16}
         v_lshl_add_u32 v6, v0, 3, s23""")
    for k in range(6): I(f"ds_write_b128 v7, v[28:31] offset:{1024*k}")
    I("ds_write_b64 v6, v[28:29] offset:6144")
    consts()
    I(f"""ds_write_addtid_b32 v32 offset:0
         s_mul_i32 s30, s46, {USTR}
         s_mul_i32 s31, s46, {WSTR}
         s_lshl_b32 s32, s3, 13
         s_lshl_b32 s4, s3, 2
         s_add_u32 s4, s4, {FLAG + 16}
         v_mov_b32 v240, s4
         ds_write_b32 v240, v28""")
    I(f"""v_and_b32 v36, 15, v0
         v_lshrrev_b32 v37, 4, v0
         v_and_b32 v38, 31, v0
         v_lshrrev_b32 v39, 5, v0
         v_and_b32 v40, 3, v0
         v_bfe_u32 v41, v0, 2, 2
         v_lshlrev_b32 v42, 4, v37
         v_mov_b32 v43, {ROW}
         v_lshl_add_u32 v44, v39, 4, s22
         v_mad_u32_u24 v{aL}, v38, v43, v44
         v_add_u32 v45, 32, v38
         v_cmp_le_u32 vcc, 8, v38
         v_cmp_le_u32 s[8:9], 15, v38
         v_cmp_le_u32 s[10:11], 20, v38
         v_cndmask_b32_e64 v46, 0, 4, vcc
         v_cndmask_b32_e64 v47, 0, 1, s[8:9]
         v_cndmask_b32_e64 v48, 0, 2, s[10:11]
         v_add3_u32 v46, v46, v47, v48
         v_sub_u32 v45, v45, v46
         v_mad_u32_u24 v{aH}, v45, v43, v44
         v_lshlrev_b32 v44, 3, v39
         v_lshl_add_u32 v44, v38, 4, v44
         s_add_u32 s4, s23, {2*P0 - 520}
         v_sub_u32 v{aKW}, s4, v44
         v_lshlrev_b32 v44, 2, v0
         s_add_u32 s4, s23, {R4O + 380}
         v_sub_u32 v{aR4W}, s4, v44
         v_lshlrev_b32 v44, 1, v0
         s_add_u32 s4, s23, {R8O + 130}
         v_sub_u32 v{aR8W}, s4, v44
         v_mul_u32_u24 v44, {RDS + 2}, v40
         v_lshlrev_b32 v45, 1, v36
         v_sub_u32 v45, v42, v45
         s_add_u32 s4, s23, {2*(P0 - 16) - 1024}
         v_add3_u32 v{aMD}, v44, v45, s4
         v_lshlrev_b32 v45, 3, v36
         v_sub_u32 v45, v42, v45
         s_add_u32 s4, s23, {R4O + 120}
         v_add_u32 v{aM4}, s4, v45
         v_and_b32 v44, 1, v0
         v_mul_u32_u24 v44, 388, v44
         v_lshlrev_b32 v45, 2, v36
         v_sub_u32 v45, v42, v45
         s_add_u32 s4, s23, {R8O + 64}
         v_add3_u32 v{aM8}, v44, v45, s4
         v_lshl_add_u32 v44, v36, 5, v42
         s_add_u32 s4, s30, {UB}
         v_add_u32 v{aX}, s4, v44
         v_bfe_u32 v44, v0, 1, 2
         v_xor_b32 v44, v44, v37
         v_lshl_add_u32 v44, v36, 2, v44
         s_add_u32 s4, s32, {RB}
         v_lshl_add_u32 v{aR}, v44, 4, s4
         v_and_b32 v44, 1, v41
         v_mul_u32_u24 v45, {W3O - W5O}, v44
         s_add_u32 s4, s31, {WB + W5O}
         v_add_u32 v45, s4, v45
         v_lshl_add_u32 v46, v37, 3, v41
         v_add_u32 v46, v46, v40
         v_lshrrev_b32 v47, 4, v46
         v_add_u32 v47, v47, v46
         v_lshl_add_u32 v{aW2}, v47, 3, v45
         v_add_u32 v46, 4, v46
         v_lshrrev_b32 v47, 4, v46
         v_add_u32 v47, v47, v46
         v_lshl_add_u32 v{aW2b}, v47, 3, v45
         v_mul_u32_u24 v45, {W7O - W9O}, v44
         s_add_u32 s4, s31, {WB + W9O}
         v_add_u32 v45, s4, v45
         v_lshl_add_u32 v46, v41, 1, v42
         v_add_u32 v46, v46, v40
         v_lshrrev_b32 v47, 4, v46
         v_add_u32 v47, v47, v46
         v_lshl_add_u32 v{aW3}, v47, 3, v45
         v_add_u32 v46, 8, v46
         v_lshrrev_b32 v47, 4, v46
         v_add_u32 v47, v47, v46
         v_lshl_add_u32 v{aW3b}, v47, 3, v45
         v_mov_b32 v63, s23
         s_lshl_b32 s4, s44, 2
         s_add_u32 s4, s4, s45
         s_lshl_b32 s55, s4, 11
         v_add_u32 v{vGR}, s55, v{vL16}
         s_lshl_b32 s4, s44, 7
         s_lshl_b32 s8, s45, 3
         s_add_u32 s4, s4, s8
         s_add_u32 s4, s4, {WS_G}
         v_mov_b32 v217, s4
         s_lshl_b32 s4, s48, 5
         v_mov_b32 v188, s4
         s_lshl_b32 s4, s44, 13
         s_lshl_b32 s8, s45, 11
         s_add_u32 s4, s4, s8
         s_add_u32 s4, s4, {WS_UT}
         v_lshl_add_u32 v253, v36, 7, s4""")
    touch = "global_load_dword v254, v253, s[42:43]"
    if cfg.touch_at == 0: I(touch)
    gate = []
    for d in range(4):
        gate.append("\n".join(f"v_dot2_f32_bf16 v{212+rw}, v{GX+4*rw+d}, v{GW+d}, {f'v{212+rw}' if d else 0}" for rw in range(2)))
    gate += [None, "v_permlane32_swap_b32 v212, v213", "v_add_f32 v212, v212, v213"]
    gate += [f"v_add_f32_dpp v212, v212, v212 row_shr:{n} row_mask:0xf bank_mask:0xf bound_ctrl:1" for n in (1, 2, 4, 8)]
    gate += ["v_add_f32_dpp v212, v212, v212 row_bcast:15 row_mask:0xa bank_mask:0xf",
             "v_cvt_pk_bf16_f32 v212, v212, v212\nv_lshlrev_b32 v212, 16, v212\nv_mul_f32 v212, 0xbfb8aa3b, v212\nv_exp_f32 v212, v212",
             "v_add_f32 v212, 1.0, v212\nv_rcp_f32 v212, v212", "v_cvt_pk_bf16_f32 v212, v212, v212",
             "v_readlane_b32 s38, v212, 31\nv_readlane_b32 s39, v212, 63\ns_pack_ll_b32_b16 s38, s38, s39\nv_mov_b32 v214, s38"]
    gate = [t for t in gate if t]
    def gate_out():
        I("v_cmp_eq_u32 vcc, 0, v215\ns_cbranch_vccz L_c4")
        A.label("L_c3")
        I("global_load_dword v215, v188, s[40:41] sc1", track=False)
        I("s_waitcnt vmcnt(0)\nv_cmp_eq_u32 vcc, 0, v215\ns_cbranch_vccnz L_c3")
        A.label("L_c4")
        I("s_mov_b64 exec, 1\nglobal_store_dwordx2 v217, v[214:215], s[42:43] sc1\ns_mov_b64 exec, -1")
    gate.append(gate_out if cfg.gmode == "a" else "ds_write_b32 v240, v214 offset:32")
    gload = f"""buffer_load_dwordx4 v[{GX}:{GX+3}], v{vGR}, s[56:59], 0 offen
             buffer_load_dwordx4 v[{GX+4}:{GX+7}], v{vGR}, s[56:59], 0 offen offset:1024
             global_load_dwordx4 v[{GW}:{GW+3}], v{vL16}, s[60:61]
             """ + ("global_load_dword v215, v188, s[40:41] sc1" if cfg.gmode == "a" else "")
    if cfg.gload_at < 0: I(gload)
    if cfg.fine: stamp()
    dt_scale()
    S0 = half(0, 0)
    I(S0[0]); stamp()
    S0 = merge(S0[1:], red + [f"v_mul_f32 v62, s35, v{vDT}"], cfg.red_at, 3)
    if cfg.gload_at >= 0: S0.insert(cfg.gload_at, gload)
    if cfg.touch_at > 0: S0.insert(cfg.touch_at, touch)
    S0 = S0[:cfg.gate_at] + merge(S0[cfg.gate_at:], gate, 0, cfg.gate_sp)
    S0.append(f"global_load_dwordx4 v[{mSp}:{mSp+3}], v{vL16}, s[6:7]")
    run(S0)
    def frag_reads(ofs):
        R = []
        for s in range(8):
            R += [f"ds_read_b128 v[{FA+4*s}:{FA+4*s+3}], v{aH} offset:{ofs+32*s}", f"ds_read_b128 v[{FB+4*s}:{FB+4*s+3}], v{aL} offset:{ofs+32*s}"]
        return R
    def kmf(first):
        return [f"v_mfma_f32_32x32x16_f16 v[{KA}:{KA+15}], v[{FA+4*s}:{FA+4*s+3}], v[{FB+4*s}:{FB+4*s+3}], " +
                ("0" if first and s == 0 else f"v[{KA}:{KA+15}]") for s in range(8)]
    stamp()
    run(frag_reads(0))
    A.wait(lg=0)
    I("s_barrier")
    stamp()
    R2 = frag_reads(SCRS)
    for n, t in enumerate(kmf(True)):
        I(t); run(R2[2 * n:2 * n + 2])
    run(kmf(False))
    o = lambda i: f"v{KA+i}"
    scale = lambda i: f"v_pk_mul_f32 v[{KA+i}:{KA+i+1}], v[{KA+i}:{KA+i+1}], v[62:63] op_sel_hi:[1,0]"
    for i in range(0, 8, 2): I(scale(i))
    stamp()
    def flagwait(name, off):
        A.label(f"L_{name}chk")
        I(f"v_min_u32 v248, v248, v249\nv_min3_u32 v248, v248, v250, v251\nv_cmp_eq_u32 vcc, 0, v248\ns_cbranch_vccz L_{name}ok")
        sn = A.snapshot()
        I(f"ds_read_b128 v[248:251], v{vFL} offset:{off}\ns_waitcnt lgkmcnt(0)\ns_branch L_{name}chk")
        A.label(f"L_{name}ok", sn)
    I(f"s_mov_b64 exec, 1\nv_add_f32 {o(0)}, v61, {o(0)}\ns_mov_b64 exec, s[28:29]\nv_mov_b32 {o(5)}, {o(4)}\ns_mov_b64 exec, -1")
    Q = 36
    def wcopy(q, pairs, s, lagoff):
        (a, b), (c, d) = pairs
        return [f"v_cvt_pk_bf16_f32 v{q}, {a}, {b}\nv_cvt_pk_bf16_f32 v{q+1}, {c}, {d}",
                f"ds_write_b64 v{aKW}, v[{q}:{q+1}] offset:{520 + s*RDS - (0 if s == 3 else 8) - 2*lagoff}"]
    run(wcopy(Q, ((o(3), o(2)), (o(1), o(0))), 3, 0) + wcopy(Q + 2, ((o(4), o(3)), (o(2), o(1))), 0, 0) +
        wcopy(Q + 4, ((o(5), o(4)), (o(3), o(2))), 1, 0) + wcopy(Q + 6, ((o(6), o(5)), (o(4), o(3))), 2, 0))
    I(f"""v_cvt_pk_bf16_f32 v{Q+16}, {o(0)}, 0
          s_mov_b64 exec, 1
          ds_write_b32 v63, v{Q+16} offset:{0*RDS + 2*P0}
          ds_write_b32 v63, v{Q+1} offset:{1*RDS + 2*P0}
          ds_write_b32 v63, v{Q+3} offset:{2*RDS + 2*P0}
          ds_write_b32 v63, v{Q+16} offset:{2*RDS + 2*P0 + 4}
          s_mov_b64 exec, -1
          ds_read_b128 v[248:251], v{vFL}""")
    stamp()
    conv_mark = len(A.lines)
    MD = lambda mu: 64 + 2 * mu if mu < 32 else 24
    M4 = lambda i, f: 144 + 8 * i + 4 * f
    M8 = lambda i: [None, 168, 36, 40, 44][i]
    ACC = lambda c: 192 + 4 * c
    PF = cfg.PF
    xbufs = [172, 176, 180, 224, 228]
    XB = lambda k: xbufs[k % 5]
    wbufs = [232, 236, 128]
    WA = lambda k: wbufs[k % 3]
    q4 = lambda r: f"v[{r}:{r+3}]"
    def rd64(r, addr, off): return [f"ds_read_b64 v[{r}:{r+1}], v{addr} offset:{off}", f"ds_read_b64 v[{r+2}:{r+3}], v{addr} offset:{off+8}"]
    def rdtr(r, ad0, ad1, off): return [f"ds_read_b64_tr_b16 v[{r}:{r+1}], v{ad0} offset:{off}", f"ds_read_b64_tr_b16 v[{r+2}:{r+3}], v{ad1} offset:{off}"]
    rdM = lambda mu: rd64(MD(mu), aMD, 1024 - 32 * mu)
    rdX = lambda r, nu: f"ds_read_b128 {q4(r)}, v{aX} offset:{32*(nu+14)}"
    touched = set()
    def mf(c, a, b):
        src = q4(ACC(c)) if c in touched else "0"; touched.add(c)
        return f"v_mfma_f32_16x16x32_bf16 {q4(ACC(c))}, {q4(a)}, {q4(b)}, {src}"
    def result(c):
        out = [f"v_mov_b32 v241, {c+1}\nds_write_b128 v{aR}, {q4(ACC(c))} offset:{1024*c}", "ds_write_b32 v240, v241"]
        if c in (0, 1, 3, 7): out.append(stamp)
        return out
    v0_, v2_, v4_, v6_ = o(8), o(9), o(10), o(11)
    scale1 = lambda i: "\n".join(f"v_mul_f32 v{KA+j}, v62, v{KA+j}" for j in range(i, i + 4))
    post = [scale1(8), f"s_mov_b64 exec, s[28:29]\nv_mov_b32 {v6_}, {v4_}\ns_mov_b64 exec, -1"]
    post += (wcopy(Q + 8, ((v4_, v2_), (v0_, v0_)), 3, 256) + wcopy(Q + 10, ((v4_, v4_), (v2_, v0_)), 0, 256) +
             wcopy(Q + 12, ((v4_, v4_), (v4_, v2_)), 1, 256) + wcopy(Q + 14, ((v6_, v4_), (v4_, v4_)), 2, 256))
    post += [f"""v_cvt_pk_bf16_f32 v{Q+17}, 0, {v4_}
          s_mov_b64 exec, s[28:29]
          ds_write_b32 v63, v{Q+17} offset:{3*RDS + 56}
          ds_write_b32 v63, v{Q+10} offset:{3*RDS + 60}
          ds_write_b32 v63, v{Q+10} offset:{0*RDS + 52}
          ds_write_b32 v63, v{Q+17} offset:{1*RDS + 52}
          s_mov_b64 exec, -1"""]
    post2 = [scale1(12),
             f"v_cvt_pk_bf16_f32 v{Q+18}, {o(12)}, {o(13)}\nv_cvt_pk_bf16_f32 v{Q+19}, {o(14)}, {o(15)}",
             f"ds_write_b32 v{aR4W}, v{Q+18}\nv_readlane_b32 s38, v{Q+18}, 63\ns_pack_ll_b32_b16 s38, s38, s38",
             f"ds_write_b16 v{aR8W}, v{Q+19} offset:128", f"ds_write_b16_d16_hi v{aR8W}, v{Q+19} offset:0",
             f"ds_write_b16 v{aR8W}, v{Q+19} offset:{128+388}", f"ds_write_b16_d16_hi v{aR8W}, v{Q+19} offset:388",
             "\n".join(f"v_and_b32 v{mSp+d}, s38, v{mSp+d}" for d in range(4))]
    x0 = [172, 176, 180, 224, 228, 232, 236, 244]
    x1 = [144, 148, 152, 156, 160, 164, 168, 28]
    for mu in range(14, 6, -2): run(rdM(mu))
    flagwait("u", 0)
    stamp()
    for n, mu in enumerate(range(14, -1, -2)):
        I(rdX(x0[n], -mu))
        if n < 4: run(rdM(mu - 8))
    for n, mu in enumerate(range(14, -1, -2)):
        I(mf(0, MD(mu), x0[n]))
        if n >= 4: I(rdX(x1[2 * n - 8], 16 - 14 + 4 * (n - 4))); I(rdX(x1[2 * n - 7], 16 - 12 + 4 * (n - 4)))
    side = post[:2] + result(0) + post[2:]
    for n, mu in enumerate(range(14, -1, -2)):
        I(mf(1, MD(mu), x1[n]))
        k = -(-len(side) // (8 - n)); run(side[:k]); side = side[k:]
    for mu in (30, 28, 26, 24, 22): run(rdM(mu))
    later = []
    for mu in (20, 18, 16, 32): later += rdM(mu)
    later2 = []
    for i in (2, 1, 0):
        for f in (0, 1): later2 += rd64(M4(i, f), aM4, 128 * i + 64 * f)
    for i in (4, 3, 2, 1): later2 += rd64(M8(i), aM8, 64 * (i - 1))
    items = []
    wk = [0]
    def seg2(beta):
        out = []
        for f in (0, 1):
            r = WA(wk[0]); wk[0] += 1
            out.append((rdtr(r, aW2, aW2b, 544 * beta + 272 * f), [(c, r, M4(beta - c + 4, f)) for c in range(beta + 2, min(beta + 5, 8))]))
        return out
    def seg3(beta):
        r = WA(wk[0]); wk[0] += 1
        return [(rdtr(r, aW3, aW3b, 544 * beta), [(c, r, M8(beta - c + 8)) for c in range(beta + 4, 8)])]
    extra = {2: lambda: seg2(0), 3: lambda: seg2(1), 4: lambda: seg2(2) + seg3(0), 5: lambda: seg2(3) + seg3(1),
             6: lambda: seg2(4) + seg3(2), 7: lambda: seg2(5) + seg3(3)}
    for n, mu in enumerate(range(14, -1, -2)): items.append((1, [], [(1, MD(mu + 16), x0[n])]))
    items.append((2, [], [(2, MD(32), x0[7])]))
    for n, mu in enumerate(range(14, -1, -2)): items.append((2, [], [(2, MD(mu + 16), x1[n])]))
    items.append((2, [], [(3, MD(32), x1[7]), (4, mSp, x0[7]), (5, mSp, x1[7])]))
    nreg = len(items)
    k = 0
    for c in range(2, 8):
        xs = []
        for nu in range(16 * c - 14, 16 * c + 1, 2):
            mu = 16 * c - nu; r = XB(k); k += 1
            m = [(c, MD(mu), r)]
            if c + 1 < 8: m.append((c + 1, MD(mu + 16), r))
            if mu == 0:
                if c + 2 < 8: m.append((c + 2, MD(32), r))
                if c + 4 < 8: m.append((c + 4, mSp, r))
            xs.append(([rdX(r, nu)], m))
        items += [(c, rd, m) for rd, m in merge(xs, extra[c](), 4 if c == 2 else 0, 2)]
    side = list(post2)
    firstw = min(j for j, it in enumerate(items) if it[1] and "tr_b16" in it[1][0])
    delay = []
    for j, (c, rd, m) in enumerate(items):
        if j + PF + 2 == firstw: I(f"ds_read_b128 v[248:251], v{vFL} offset:32")
        if j + PF == firstw: flagwait("w", 32)
        rds = list(items[j + PF][1]) if j + PF < len(items) else []
        for n in range(3 if j >= nreg - 1 else 2):
            if later: rds.append(later.pop(0))
            elif later2 and j >= nreg - 1: rds.append(later2.pop(0))
        for n, spec in enumerate(m):
            I(mf(*spec))
            share = -(-len(rds) // (len(m) - n))
            run(rds[:share]); rds = rds[share:]
            if side and (not share or n == len(m) - 1): run([side.pop(0)])
        for d in list(delay):
            d[1] -= 1
            if d[1] == 0: side += result(d[0]); delay.remove(d)
        if j + 1 == len(items): run(side + result(c)); side = []
        elif items[j + 1][0] != c: delay.append([c, 2 if len(items[j + 1][2]) < 2 else 1])
    assert not later and not later2 and not delay and not side
    from asmlib import Ins
    live = set()
    for ln in A.lines[conv_mark:]:
        if ln.endswith(":") or ln.strip().startswith(";"): continue
        q = Ins(ln.strip())
        if q.kind == "mfma": assert set(q.A + q.B) <= live, ln
        elif q.mn.startswith("ds_read") or q.mn == "v_and_b32": live |= set(q.w)
        else: live -= set(q.w)
    stamp_out()
    I("s_endpgm")

    nst[0] = nst_io
    A.label("L_io", snap_io)
    if cfg.fine == 2: stamp()
    BND = 8
    aUW, aXio, aWW, aRr, offG, offOut, aZ, aWW3 = range(24, 32)
    vCR1 = 189
    I(f"""s_getreg_b32 s54, hwreg(HW_REG_XCC_ID, 0, 4)
         v_and_b32 v34, 3, v0
         v_lshrrev_b32 v35, 4, v0
         v_lshlrev_b32 v36, 1, v34
         v_xor_b32 v35, v35, v36
         v_and_b32 v36, 12, v0
         v_lshl_add_u32 v35, v35, 4, v36
         v_lshl_add_u32 v35, v34, 9, v35
         v_xor_b32 v36, 64, v35
         v_add_u32 v{vCRd}, s22, v35
         v_add_u32 v{vCR1}, s22, v36
         v_lshrrev_b32 v35, 2, v0
         v_lshlrev_b32 v36, 4, v34
         v_lshl_add_u32 v35, v35, 13, v36
         s_lshl_b32 s4, s48, 18
         s_lshl_b32 s23, s45, 6
         s_add_u32 s4, s4, s23
         s_lshl_b32 s23, s5, 8
         s_add_u32 s4, s4, s23
         s_add_u32 s4, s4, {WS_UT}
         v_add_u32 v{vST0}, s4, v35
         v_add_u32 v{vST1}, 0x20000, v{vST0}
         s_lshl_b32 s4, s48, 9
         s_lshl_b32 s23, s45, 7
         s_add_u32 s4, s4, s23
         s_add_u32 s4, s4, {WS_LF}
         v_and_b32 v34, 31, v0
         v_lshl_add_u32 v{vPL}, v34, 2, s4
         global_load_dword v{vNR}, v{vPL}, s[42:43] sc1
         v_add_u32 v223, s22, v{vL16}
         s_lshl_b32 s4, s44, 13
         s_lshl_b32 s23, s45, 10
         s_add_u32 s4, s4, s23
         s_add_u32 s4, s4, {WS_UT}
         v_add_u32 v{vU0}, s4, v{vL16}
         v_add_u32 v{vU1}, 0x1000, v{vU0}
         s_lshl_b32 s4, s48, 9
         s_bfe_u32 s23, s5, 0x20002
         s_lshl_b32 s23, s23, 7
         s_add_u32 s4, s4, s23
         s_lshr_b32 s23, s5, 4
         s_lshl_b32 s23, s23, 6
         s_add_u32 s4, s4, s23
         s_and_b32 s23, s5, 3
         s_lshl_b32 s23, s23, 4
         s_add_u32 s4, s4, s23
         s_lshl_b32 s23, s45, 2
         s_add_u32 s4, s4, s23
         s_add_u32 s4, s4, {WS_LF}
         v_mov_b32 v216, s4
         s_add_u32 s4, s47, {WS_HELLO}
         v_mov_b32 v218, s4
         v_and_b32 v34, 31, v0
         s_add_u32 s23, s49, {WS_HELLO}
         v_lshl_add_u32 v{vHL}, v34, 2, s23
         s_lshl_b32 s26, s45, 9
         s_add_u32 s4, s26, {UB + 480}
         v_lshl_add_u32 v{aUW}, v0, 3, s4
         v_and_b32 v34, 15, v0
         v_lshrrev_b32 v35, 4, v0
         v_lshl_add_u32 v36, v34, 1, v35
         s_add_u32 s4, s26, {UB + 448}
         v_lshl_add_u32 v{aXio}, v36, 4, s4
         s_lshl_b32 s23, s45, 12
         s_add_u32 s23, s23, {WS_G}
         v_lshrrev_b32 v36, 2, v0
         v_and_b32 v37, 3, v0
         v_lshl_add_u32 v36, v36, 4, v37
         v_lshl_add_u32 v{offG}, v36, 3, s23
         s_lshl_b32 s23, s45, 10
         v_bfe_u32 v36, v0, 1, 2
         v_xor_b32 v36, v36, v35
         v_lshrrev_b32 v37, 3, v0
         v_lshl_add_u32 v36, v37, 2, v36
         v_and_b32 v37, 1, v0
         v_lshl_add_u32 v36, v36, 1, v37
         s_add_u32 s4, s23, {RB}
         v_lshl_add_u32 v{aRr}, v36, 3, s4
         s_lshl_b32 s4, s45, 18
         s_add_u32 s4, s4, s47
         v_lshl_add_u32 v{offOut}, v0, 11, s4
         v_lshl_add_u32 v36, v34, 2, v35
         s_mul_i32 s4, s45, 544
         v_add_u32 v36, 2, v36
         v_lshrrev_b32 v37, 4, v36
         v_add_u32 v37, v37, v36
         v_lshl_add_u32 v{aWW}, v37, 3, s4
         v_add_u32 v36, 1, v36
         v_lshrrev_b32 v37, 4, v36
         v_add_u32 v37, v37, v36
         v_lshl_add_u32 v{aWW3}, v37, 3, s4
         v_and_b32 v36, 3, v0
         v_bfe_u32 v37, v0, 2, 2
         v_min_u32 v37, 2, v37
         v_mul_u32_u24 v37, {W3O}, v37
         v_min_u32 v37, {W9O}, v37
         v_lshl_add_u32 v36, v36, 3, v37
         v_bfe_u32 v37, v0, 4, 1
         v_mul_u32_u24 v37, {WSTR}, v37
         v_add_u32 v{aZ}, v36, v37
         s_lshl_b32 s4, s45, 2
         s_add_u32 s4, s4, {FLAG}
         v_mov_b32 v79, s4
         v_mov_b32 v77, 1
         v_mov_b32 v70, 0
         v_mov_b32 v71, 0
         ds_write_b32 v79, v70
         ds_write_b32 v79, v70 offset:32
         s_cmp_lg_u32 s45, 0
         s_cbranch_scc1 L_io5
         v_subrev_u32 v72, 480, v{aUW}
         ds_write_b64 v72, v[70:71]
         ds_write_b64 v72, v[70:71] offset:{USTR}""")
    A.label("L_io5")
    I(f"""s_add_u32 s6, s6, L_tabi-L_pc
         s_addc_u32 s7, s7, 0
         s_mov_b32 s30, 0x05040100
         s_mov_b32 s31, 0x07060302
         s_sub_u32 s23, s22, {MOFS}""")
    consts()
    I(f"""s_mov_b32 m0, s23
         global_load_dword v215, v188, s[40:41] sc1""")
    if cfg.prio: I("s_setprio 1")
    if cfg.fine == 2: stamp()
    dt_scale()
    def tile():
        I(f"ds_write_b128 v223, v[{TR}:{TR+3}]\nds_write_b128 v223, v[{TR+4}:{TR+7}] offset:1024")
        stamp()
        for Jp in range(2):
            for i in (0, 2): I(f"ds_read2_b32 v[{TR+4*Jp+i}:{TR+4*Jp+i+1}], v{(vCRd, vCR1)[Jp]} offset0:{32*i} offset1:{32*(i+1)}")
        I(f"ds_write_addtid_b32 v32 offset:{MOFS}")
    def tile2():
        I(f"""global_store_dwordx4 v{vST0}, v[{TR}:{TR+3}], s[42:43]
             global_store_dwordx4 v{vST1}, v[{TR+4}:{TR+7}], s[42:43]""")
    def publish():
        stamp()
        I("s_waitcnt vmcnt(0)"); A.vm = []
        I("v_cmp_eq_u32 vcc, 0, v215\ns_cbranch_vccz L_io4")
        A.label("L_io3")
        I("global_load_dword v215, v188, s[40:41] sc1", track=False)
        I("s_waitcnt vmcnt(0)\nv_cmp_eq_u32 vcc, 0, v215\ns_cbranch_vccnz L_io3")
        A.label("L_io4")
        I(f"""v_lshl_add_u32 v219, s54, 1, v215
             s_mov_b64 exec, 1
             global_store_dword v216, v219, s[42:43]
             s_mov_b64 exec, -1""")
        stamp()
    tabl = [f"global_load_dwordx4 v[{BND+4*k}:{BND+4*k+3}], v{vL16}, s[6:7] offset:{1024*k}" for k in range(4)]
    U1, U2 = 224, 228
    uload = f"""global_load_dwordx4 v[{U1}:{U1+3}], v{vU0}, s[42:43] sc1
             global_load_dwordx4 v[{U2}:{U2+3}], v{vU1}, s[42:43] sc1"""
    def hello(tag):
        I(f"s_cmp_lg_u32 s45, 0\ns_cbranch_scc1 L_hi{tag}\ns_mov_b64 exec, 1")
        I("global_store_dword v218, v219, s[42:43] sc1", track=False)
        I("s_mov_b64 exec, -1")
        A.label(f"L_hi{tag}")
    def try_u():
        I("s_waitcnt vmcnt(0)"); A.vm = []
        I(f"v_cmp_ne_u32 vcc, v221, v219\ns_mov_b32 s25, 0")
        I("s_branch L_try0" if cfg.force_slow else "s_cbranch_vccnz L_try0")
        I(uload + "\ns_mov_b32 s25, 1")
        A.label("L_try0")
        stamp()
    def fetch_u():
        I("s_mov_b32 s33, 0")
        A.label("L_poll")
        I(f"global_load_dword v221, v{vPL}, s[42:43] sc1\ns_add_u32 s33, s33, 1\nv_cmp_ne_u32 vcc, v221, v219")
        if not cfg.force_slow: I("s_cbranch_vccz L_fast")
        I(f"""s_and_b32 s4, s33, 15
             s_cbranch_scc1 L_poll""")
        hello("a")
        I(f"""global_load_dword v222, v{vHL}, s[42:43] sc1
             s_cmp_gt_u32 s33, 0x40000
             s_cbranch_scc1 L_slow
             v_cmp_ne_u32 s[12:13], v222, v219
             v_sub_u32 v222, v222, v215
             v_and_b32 v222, 0xffffffe1, v222
             v_cmp_ne_u32 vcc, 0, v222
             s_cbranch_vccnz L_poll""")
        if not cfg.force_slow: I("s_cmp_eq_u64 s[12:13], 0\ns_cbranch_scc1 L_poll")
        A.label("L_slow")
        I(f"""s_lshl_b32 s4, s45, 18
             s_add_u32 s4, s4, s47
             v_lshl_add_u32 v222, v0, 12, s4
             s_mov_b32 s23, 0x100000""")
        for base, so in ((U1, "0"), (U2, "s23")):
            for j in range(4): I(f"buffer_load_dword v{base+j}, v222, s[56:59], {so} offen offset:{1024*j}")
        I("s_waitcnt vmcnt(0)\ns_branch L_have")
        A.vm = []
        A.label("L_fast")
        I(uload)
        A.label("L_have")
    def stage():
        for base, off in ((U1, 0), (U2, 2048)):
            I(f"""v_perm_b32 v72, v{base+1}, v{base}, s30
                  v_perm_b32 v73, v{base+3}, v{base+2}, s30
                  v_perm_b32 v74, v{base+1}, v{base}, s31
                  v_perm_b32 v75, v{base+3}, v{base+2}, s31
                  ds_write_b64 v{aUW}, v[72:73] offset:{off}
                  ds_write_b64 v{aUW}, v[74:75] offset:{off+USTR}""")
        I("ds_write_b32 v79, v77")
    S1 = merge(half(1, MOFS), red, cfg.red_at, 3)
    first_w = min(i for i, t in enumerate(S1) if "addtid" in t)
    held = []
    if cfg.tile_at > first_w:
        held = [t for t in S1[:cfg.tile_at] if "addtid" in t]
        S1 = [t for t in S1[:cfg.tile_at] if "addtid" not in t] + S1[cfg.tile_at:]
    ta = cfg.tile_at - len(held)
    S1 = S1[:ta] + [tile] + held + S1[ta:ta + 6] + [tile2] + S1[ta + 6:]
    S1.insert(cfg.pub_at, publish)
    S1.insert(len(S1) - cfg.poll_at, f"global_load_dword v221, v{vPL}, s[42:43] sc1")
    if cfg.fine == 5: S1.insert(len(S1) - cfg.poll_at - 1, stamp); S1.insert(len(S1) - cfg.fetch_at, stamp)
    S1.insert(len(S1) - cfg.fetch_at, try_u)
    run(S1)
    run(tabl)
    if cfg.fine == 5: stamp()
    I("s_cmp_eq_u32 s25, 0\ns_cbranch_scc1 L_late")
    sn = A.snapshot()
    stage()
    I("s_waitcnt lgkmcnt(0)\ns_barrier\ns_branch L_join")
    vm_early = list(A.vm)
    A.label("L_late", sn); A.vm = []
    I("s_waitcnt lgkmcnt(0)\ns_barrier"); A.lg = []
    fetch_u()
    stage()
    A.label("L_join")
    A.vm = vm_early
    stamp()
    if cfg.gmode == "b":
        I(f"""s_cmp_lg_u32 s45, 0
             s_cbranch_scc1 L_hib
             s_mov_b64 exec, 15
             v_lshl_add_u32 v72, v0, 2, v79
             ds_read_b32 v214, v72 offset:48
             s_lshl_b32 s4, s44, 7
             s_add_u32 s4, s4, {WS_G}
             v_lshl_add_u32 v217, v0, 3, s4
             s_waitcnt lgkmcnt(0)""")
        A.lg = []
        I("global_store_dwordx2 v217, v[214:215], s[42:43] sc1\ns_mov_b64 exec, 1\nglobal_store_dword v218, v219, s[42:43] sc1", track=False)
        I("s_mov_b64 exec, -1")
        A.label("L_hib")
    else: hello("b")
    if cfg.prio and cfg.wlow: I("s_setprio 0")
    I(f"""v_add_u32 v76, 0x4000, v{offG}
         s_lshl_b32 s4, s45, 5
         v_mov_b32 v78, s4""")
    GQ = 128
    def gather(second=True):
        I(f"""global_load_dword v{GQ+4}, v78, s[40:41] sc1
              global_load_dwordx2 v[{GQ}:{GQ+1}], v{offG}, s[42:43] sc1
              global_load_dwordx2 v[{GQ+2}:{GQ+3}], v{offG}, s[42:43] offset:2048 sc1""")
        if second:
            I(f"""global_load_dword v{GQ+10}, v78, s[40:41] offset:128 sc1
                  global_load_dwordx2 v[{GQ+6}:{GQ+7}], v76, s[42:43] sc1
                  global_load_dwordx2 v[{GQ+8}:{GQ+9}], v76, s[42:43] offset:2048 sc1""")
    I(f"s_cmp_lg_u32 s45, 0\ns_cbranch_scc1 L_uall\nds_write_b64 v{aZ}, v[70:71]")
    A.label("L_uall")
    I(f"ds_read_b128 v[116:119], v{vFL}")
    I("v_min_u32 v116, v116, v117\nv_min3_u32 v116, v116, v118, v119\nv_cmp_eq_u32 vcc, 0, v116\ns_cbranch_vccnz L_uall")
    I(f"""ds_read_b128 v[80:83], v{aXio}
         ds_read_b128 v[84:87], v{aXio} offset:{USTR}
         s_lshr_b32 s4, s45, 1
         s_add_u32 s4, s4, 4
         s_sub_u32 s4, s4, s45
         s_mul_i32 s23, s46, {USTR}
         s_lshl_b32 s8, s4, 9
         s_add_u32 s23, s23, s8
         v_add_u32 v72, s23, v{aXio}
         ds_read_b128 v[88:91], v72
         s_mul_i32 s23, s46, {WSTR}
         s_mul_i32 s8, s4, 544
         s_add_u32 s23, s23, s8
         v_add_u32 v73, s23, v{aWW}
         v_add_u32 v75, s23, v{aWW3}
         s_mov_b32 s33, 0""")
    units = [(0, (aWW, aWW3), 0, a) for a in range(4)] + [(1, (aWW, aWW3), WSTR, a) for a in range(4)] + [(2, (73, 75), 0, a) for a in range(2)]
    for u, (n, ad, off, a) in enumerate(units):
        I(f"v_mfma_f32_16x16x32_bf16 v[{140+4*u}:{143+4*u}], v[{BND+4*a}:{BND+4*a+3}], v[{80+4*n}:{83+4*n}], 0")
    if cfg.prio: I("s_setprio 1")
    for u, (n, ad, off, a) in enumerate(units):
        if u == cfg.gather_at: gather()
        r = 140 + 4 * u
        I(f"v_cvt_pk_bf16_f32 v{r}, v{r}, v{r+1}\nv_cvt_pk_bf16_f32 v{r+1}, v{r+2}, v{r+3}")
        I(f"ds_write_b64 v{ad[a == 1]}, v[{r}:{r+1}] offset:{WB + off + (W5O, W3O, W9O, W7O)[a]}")
    I("ds_write_b32 v79, v77 offset:32")
    stamp()
    I("s_mov_b32 s27, s45")
    I("s_waitcnt vmcnt(0)"); A.vm = []
    A.label("L_fin_loop")
    I(f"""v_cmp_ne_u32 s[34:35], v{GQ+1}, v{GQ+4}
         v_cmp_ne_u32 s[36:37], v{GQ+3}, v{GQ+4}
         v_cmp_eq_u32 vcc, 0, v{GQ+4}
         s_or_b64 s[34:35], s[34:35], s[36:37]
         s_or_b64 vcc, vcc, s[34:35]
         s_cbranch_vccz L_gok
         s_add_u32 s33, s33, 1
         s_cmp_gt_u32 s33, 0x40000
         s_cbranch_scc1 L_gok
         s_sleep {cfg.gsleep}""")
    gather(False)
    I("s_waitcnt vmcnt(0)\ns_branch L_fin_loop")
    A.label("L_gok")
    A.vm = []
    if cfg.stamps:
        I("s_cmp_ge_u32 s27, 4\ns_cbranch_scc1 L_gok2"); stamp(); A.label("L_gok2")
    gq = GQ
    for i in range(4):
        I(f"v_and_b32 v{96+i}, 0xffff0000, v{gq+2*(i>>1)}" if i & 1 else f"v_lshlrev_b32 v{96+i}, 16, v{gq+2*(i>>1)}")
    for i in range(4): I(f"v_sub_f32 v{100+i}, 1.0, v{96+i}")
    I("v_cvt_pk_bf16_f32 v101, v100, v101\nv_cvt_pk_bf16_f32 v103, v102, v103")
    I("v_lshlrev_b32 v100, 16, v101\nv_and_b32 v101, 0xffff0000, v101\nv_lshlrev_b32 v102, 16, v103\nv_and_b32 v103, 0xffff0000, v103")
    I(f"v_add_u32 v104, 0x20000, v{offOut}\ns_branch L_prog1")
    A.label("L_prog")
    I("s_sleep 2")
    A.label("L_prog1")
    I(f"ds_read_b128 v[116:119], v{vFL} offset:16")
    I("v_min_u32 v116, v116, v117\nv_min3_u32 v116, v116, v118, v119\nv_cmp_gt_u32 vcc, s27, v116\ns_cbranch_vccnz L_prog")
    A.label("L_prog2")
    I(f"ds_read_b128 v[116:119], v{vFL} offset:16")
    for h in range(2):
        for n in range(4): I(f"ds_read_b64 v[{80+4*n+2*h}:{81+4*n+2*h}], v{aRr} offset:{8192*n + 512*h}")
    I("v_min_u32 v116, v116, v117\nv_min3_u32 v116, v116, v118, v119\nv_cmp_ge_u32 vcc, s27, v116\ns_cbranch_vccnz L_prog2")
    for i in range(4):
        for ch in range(2): I(f"v_mul_f32 v{80+4*ch+i}, v{96+i}, v{80+4*ch+i}")
        for ch in range(2): I(f"v_fmac_f32 v{80+4*ch+i}, v{100+i}, v{88+4*ch+i}")
        if i == 0 and cfg.stamps: I(f"{'s_memtime' if cfg.cycles else 's_memrealtime'} s[94:95]", track=False)
        I(f"v_cvt_pk_bf16_f32 v{112+i}, v{80+i}, v{84+i}")
        I(f"global_store_dword v{(offOut, 104)[i >> 1]}, v{112+i}, s[62:63] offset:{1024*(i & 1)}")
    for i in range(5): I(f"v_mov_b32 v{gq+i}, v{gq+6+i}")
    I(f"""v_mov_b32 v{offG}, v76
         v_add_u32 v78, 128, v78
         v_add_u32 v{aRr}, 4096, v{aRr}
         v_add_u32 v{offOut}, 0x100000, v{offOut}
         s_add_u32 s27, s27, 4""")
    if cfg.stamps:
        I("s_cmp_lt_u32 s27, 8\ns_cbranch_scc0 L_fin_out")
        if nst[0] < 15: I(f"s_waitcnt lgkmcnt(0)\ns_mov_b32 s{64+2*nst[0]}, s94"); nst[0] += 1
        stamp(); I("s_branch L_fin_loop"); A.label("L_fin_out")
        if nst[0] < 15: I(f"s_waitcnt lgkmcnt(0)\ns_mov_b32 s{64+2*nst[0]}, s94"); nst[0] += 1
        stamp(); I("s_waitcnt vmcnt(0)"); stamp()
    else:
        I("s_cmp_lt_u32 s27, 8\ns_cbranch_scc1 L_fin_loop")
    stamp_out()
    A.label("L_end")
    I("s_endpgm")
    tc, ti = tables()
    A.raw(".p2align 7\nL_tabc:")
    for i in range(0, len(tc), 8): A.raw(".long " + ", ".join("0x%x" % x for x in tc[i:i + 8]))
    A.raw("L_tabi:")
    for i in range(0, len(ti), 8): A.raw(".long " + ", ".join("0x%x" % x for x in ti[i:i + 8]))
    A.raw("L_fin:")
    A.raw(f""".section .rodata,"a"
.p2align 6
.amdhsa_kernel {KN}_kernel
  .amdhsa_next_free_vgpr 256
  .amdhsa_next_free_sgpr 102
  .amdhsa_accum_offset 256
  .amdhsa_group_segment_fixed_size 0
  .amdhsa_kernarg_size 144
  .amdhsa_user_sgpr_count 2
  .amdhsa_user_sgpr_kernarg_segment_ptr 1
  .amdhsa_system_sgpr_workgroup_id_x 1
.end_amdhsa_kernel""")
    sys.stderr.write(f"instructions {A.nins}, nops {A.nops}, lds {LDS_BYTES}\n")
    if cfg.align:
        A.lines, wid, nop = align8(A.text().split("\n"))
        sys.stderr.write(f"alignment: {wid} widened, {nop} nops\n")
    return A.text()

if __name__ == "__main__":
    out = sys.argv[1]
    for kv in sys.argv[2:]:
        k, v = kv.split("="); setattr(Cfg, k, eval(v))
    open(out, "w").write(gen())
```

```python
import sys
from asmlib import Asm, merge, align8
KN = "gated_mix__ssm_conv_s4d__ssm_conv_s4d__prompt"

class Cfg:
    stamps = False
    cycles = False
    padto = 1500
    probe = (0, 0)
    force_slow = False
    PF = 3
    fine = False
    align = True
    red_at = 56
    tile_at = 40
    pub_at = 100
    gate_at = 150
    gate_sp = 2
    gload_at = 60
    gather_at = 0
    wlow = True
    gmode = "b"
    gsleep = 4
    nofinal = False
    touch_at = 0
    touch2_at = 110
    lag01 = 5
    sprio = 1
    wout_hi = True
    lat = 5
    psleep = 1
    ptile = 6
    rlag = 6
    horizon = 1000
    poll_at = 65
    fetch_at = 35
    prio = True

ROW = 272
SCRW = 57 * ROW
SCRS = 4 * SCRW
MOFS = 48000
WB = 0; WSTR = 11112
W5O, W3O, W9O, W7O = 0, 3440, 6728, 8920
RB = WB + 2 * WSTR
UB = 8 * SCRW; USTR = 4608
KB = UB + 2 * USTR; KSTR = 6656
RDS = 1344; R4O = 5376; R8O = 5888
FLAG = KB + 4 * KSTR
PRG = FLAG + 64
LDS_BYTES = PRG + 128
P0 = 540
WS_OF, WS_CL = 0x10000, 0x7000
WS_LF, WS_HELLO, WS_G = 0x4000, 0x6000, 0x8000

def drow_hi(rho):
    q, hh, i = rho >> 3, (rho >> 2) & 1, rho & 3
    if q == 0: return 4 * hh + i
    if q == 1: return 4 * hh + 4 + i
    if q == 2: return 256 + 4 * hh + 2 * i
    return [[520, 516, 1032, 1544], [776, 772, 1288, 1800]][hh][i]
hslot = lambda rho: rho - 4 * (rho >= 8) - (rho >= 15) - 2 * (rho >= 20)
HSLOT = {drow_hi(rho): hslot(rho) for rho in range(32) if rho not in (11, 15)}
assert len(HSLOT) == 25 and sorted(HSLOT.values()) == list(range(25))
HTREE = [(1, 0, 1), (2, 0, 2), (3, 2, 1), (4, 0, 4), (5, 4, 1), (6, 4, 2), (7, 6, 1), (8, 0, 8), (9, 8, 1), (10, 8, 2),
         (256, 0, 256), (258, 2, 256), (260, 4, 256), (262, 6, 256), (264, 8, 256), (266, 10, 256),
         (516, 4, 512), (520, 8, 512), (772, 516, 256), (776, 520, 256), (1032, 8, 1024), (1288, 264, 1024), (1544, 520, 1024), (1800, 776, 1024)]

def tables():
    comp, io = [], []
    for l in range(64):
        b, g = l & 15, l >> 4
        def frag(pred, val):
            return [(val if pred(8 * g + 2 * d) else 0) | (val if pred(8 * g + 2 * d + 1) else 0) << 16 for d in range(4)]
        comp.append(frag(lambda e: e in (b + 12, b + 13), 0xffff))
        t = []
        for tau, w in ((8, 2), (12, 1), (8, 4), (8, 3)):
            t += frag(lambda e: abs(tau + b - e) <= w, 0x3f80)
        io.append(t)
    def lay(tb):
        n = len(tb[0]) // 4
        return [tb[l][4 * k + j] & 0xffffffff for k in range(n) for l in range(64) for j in range(4)]
    return lay(comp), lay(io)

def gen(cfg=Cfg):
    A = Asm(); I = A.I
    def run(stream):
        for t in stream:
            if callable(t): t()
            else: I(t)
    head = open("cdna_kernels/" + KN + ".s.ref").read().split("; Override launch")[0]
    A.raw(head.rstrip())
    A.raw(f"; @launch grid=(256,1,1) block=(512,1,1) lds={LDS_BYTES}")
    A.raw('.amdgcn_target "amdgcn-amd-amdhsa--gfx950"\n.text')
    A.raw(f".globl {KN}_kernel\n.p2align 8\n.type {KN}_kernel,@function\n{KN}_kernel:")
    nst = [0]
    def stamp():
        if cfg.stamps:
            if nst[0] < 15: I(f"{'s_memtime' if cfg.cycles else 's_memrealtime'} s[{64+2*nst[0]}:{65+2*nst[0]}]", track=False); nst[0] += 1
    def stamp_out():
        if cfg.stamps == 3:
            lab = f"L_pad{A.nins}"
            pw, pk = cfg.probe
            I(f"s_waitcnt vmcnt(0) lgkmcnt(0)\ns_sub_u32 s98, s{64+2*pk}, s64\ns_mul_i32 s98, s98, 10\ns_lshl_b32 s97, s2, 3\ns_add_u32 s97, s97, s3")
            I(f"s_cmp_eq_u32 s97, {77*8+pw}\ns_cselect_b32 s98, s98, 0\ns_add_u32 s98, s98, {cfg.padto}")
            A.label(lab)
            I("s_memrealtime s[96:97]", track=False)
            I(f"s_waitcnt lgkmcnt(0)\ns_sub_u32 s96, s96, s64\ns_cmp_lt_u32 s96, s98\ns_cbranch_scc1 {lab}")
        elif cfg.stamps:
            n = nst[0]
            I("s_waitcnt lgkmcnt(0)\ns_lshl_b32 s97, s2, 3\ns_add_u32 s97, s97, s3\ns_lshl_b32 s97, s97, 6\ns_add_u32 s97, s97, 0x100000\nv_mov_b32 v250, s97")
            I("s_mov_b64 exec, 1")
            for i in range(16):
                I(f"v_mov_b32 v251, {f's{64+2*i}' if i < n else 0}\nglobal_store_dword v250, v251, s[42:43] offset:{4*i}")

    vLR, vAI, vCR, vCI = 1, 2, 3, 4
    vDS, vCRd, vST0, vST1, vPL, vHL, vU0, vU1, vL16, vGR, vFL, vNR = range(176, 188)
    GX, GW, TR = 192, 200, 204
    vDT = 33
    stamp()
    I("s_cmp_ge_u32 s2, 0x100\ns_cbranch_scc1 L_end\ns_getpc_b64 s[6:7]")
    A.raw("L_pc:")
    I(f"""v_lshrrev_b32 v1, 6, v0
         s_andn2_b32 s4, s2, 7
         v_add_lshl_u32 v2, v1, s4, 7
         v_readfirstlane_b32 s3, v1
         v_min_u32 v2, L_fin-L_pc-4, v2
         global_load_dword v255, v2, s[6:7]
         s_bfe_u32 s4, s3, 0x10001
         s_mul_i32 s4, s4, 56
         s_add_u32 s52, s0, s4
         s_addc_u32 s53, s1, 0
         s_load_dwordx8 s[8:15], s[52:53], 8
         s_load_dwordx4 s[16:19], s[52:53], 40
         s_load_dwordx2 s[56:57], s[0:1], 0
         s_load_dwordx4 s[60:63], s[0:1], 112
         s_load_dwordx4 s[40:43], s[0:1], 128
         s_memrealtime s[50:51]
         v_and_b32 v0, 63, v0
         v_mov_b32 v28, 0
         v_mov_b32 v29, 0
         v_mov_b32 v30, 0
         v_mov_b32 v31, 0
         v_mov_b32 v{vFL}, {FLAG}
         s_and_b32 s48, s2, 7
         s_lshr_b32 s5, s2, 3
         s_lshl_b32 s44, s48, 5
         s_add_u32 s44, s44, s5
         s_and_b32 s45, s3, 3
         s_and_b32 s46, s3, 1
         s_lshl_b32 s4, s44, 1
         s_add_u32 s4, s4, s46
         s_lshl_b32 s4, s4, 8
         v_lshl_add_u32 v5, v0, 2, s4
         s_lshl_b32 s47, s44, 2
         s_mul_i32 s22, s3, {SCRW}
         s_mov_b32 m0, s22
         v_lshlrev_b32 v{vL16}, 4, v0
         v_lshrrev_b32 v6, 3, v0
         v_and_b32 v7, 0x70, v{vL16}
         v_lshl_add_u32 v6, v6, 10, v7
         v_and_b32 v7, 32, v0
         v_xor_b32 v6, v7, v6
         s_lshl_b32 s49, s48, 7
         s_lshl_b32 s4, s5, 16
         s_add_u32 s4, s4, s49
         s_lshl_b32 s23, s45, 14
         s_add_u32 s4, s4, s23
         v_add_u32 v{vDS}, s4, v6
         v_xor_b32 v{vGR}, 64, v{vDS}
         s_lshl_b32 s4, s46, 1
         s_add_u32 s4, s4, s47
         v_mov_b32 v7, s4
         v_mov_b32 v{vDT}, 0
         v_mov_b32 v61, 0
         s_mov_b32 s58, 0x200000
         s_mov_b32 s59, 0x20000
         s_mov_b32 s23, {8*1024 - 1024}""")
    A.wait(lg=0)
    if cfg.fine and cfg.fine < 6: stamp()
    I(f"""global_load_dword v{vLR}, v5, s[8:9]
         global_load_short_d16_hi v{vDT}, v7, s[16:17]
         global_load_dword v{vAI}, v5, s[10:11]
         s_cmp_ge_u32 s3, 4
         s_cbranch_scc0 L_par""")
    snap_c = A.snapshot(); nst_c = nst[0]
    I(f"""buffer_load_dwordx4 v[{TR}:{TR+3}], v{vDS}, s[56:59], 0 offen
         buffer_load_dwordx4 v[{TR+4}:{TR+7}], v{vGR}, s[56:59], s23 offen offset:1024
         s_lshl_b32 s4, s48, 5
         v_mov_b32 v188, s4
         s_or_b32 s4, s5, s45
         s_cbranch_scc1 L_io2
         s_or_b32 s50, s50, 1
         v_mov_b32 v190, s50
         s_mov_b64 exec, 1""")
    I("global_store_dword v188, v190, s[40:41] sc1", track=False)
    I("s_mov_b64 exec, -1")
    A.label("L_io2")
    I(f"""global_load_dword v{vCR}, v5, s[12:13]
         global_load_dword v{vCI}, v5, s[14:15]""")
    if cfg.fine == 2: stamp()
    I("s_branch L_io")
    snap_io = A.snapshot(); nst_io = nst[0]
    A.label("L_par", snap_c); nst[0] = nst_c
    if cfg.fine == 2: stamp()

    def consts():
        I("""s_mov_b32 s24, 0x3fb8aa3b
             s_mov_b32 s26, 0x42000000
             s_mov_b32 s27, 0x42000000
             s_mov_b32 s28, 0
             s_mov_b32 s29, 0x80000000
             v_mov_b32 v32, 0x3c00""")
    def dt_scale():
        I(f"""v_mul_f32 v{vDT}, s24, v{vDT}
             v_exp_f32 v{vDT}, v{vDT}
             v_cvt_pk_bf16_f32 v{vDT}, v{vDT}, v{vDT}
             v_lshlrev_b32 v{vDT}, 16, v{vDT}""")
    red = [f"v_and_b32 v34, 0x7fff7fff, v{vCR}", f"v_and_b32 v35, 0x7fff7fff, v{vCI}", "v_pk_max_u16 v34, v34, v35",
           "v_lshrrev_b32 v35, 16, v34", "v_and_b32 v34, 0xffff, v34", "v_max_u32 v34, v34, v35"]
    red += [f"v_max_u32_dpp v34, v34, v34 {m}" for m in
            ("row_shr:1 row_mask:0xf bank_mask:0xf", "row_shr:2 row_mask:0xf bank_mask:0xf", "row_shr:4 row_mask:0xf bank_mask:0xf",
             "row_shr:8 row_mask:0xf bank_mask:0xf", "row_bcast:15 row_mask:0xa bank_mask:0xf", "row_bcast:31 row_mask:0xc bank_mask:0xf")]
    red += ["v_readlane_b32 s34, v34, 63",
            "s_lshr_b32 s34, s34, 7\ns_max_u32 s34, s34, 11\ns_sub_u32 s36, 264, s34\ns_lshl_b32 s36, s36, 23\ns_mov_b32 s37, s36\n"
            "s_sub_u32 s35, s34, 9\ns_lshl_b32 s35, s35, 23"]
    ZA, ZB, TP = 36, 38, 40
    AB = 42
    E1, E2 = 46, 48
    Wr = {p: 50 + i for i, p in enumerate((1, 2, 4, 8, 16, 32, 64, 128, 256, 512, 1024))}
    Lr = {r: 144 + r for r in range(1, 16)}
    for p in (8, 16, 32, 64): Lr[p // 8] = Wr[p]
    TMP = [160, 161, 162, 163]
    Hk = {h: 164 + i for i, h in enumerate((0, 2, 4, 6, 8, 10, 264, 516, 520, 776))}
    def cm(dst, a, b, conj=False):
        if conj:
            return [f"v_pk_mul_f16 v{dst}, v{a}, v{b} op_sel_hi:[0,1] neg_hi:[0,1]",
                    f"v_pk_fma_f16 v{dst}, v{a}, v{b}, v{dst} op_sel:[1,1,0] op_sel_hi:[1,0,1]"]
        return [f"v_pk_mul_f16 v{dst}, v{a}, v{b} op_sel_hi:[0,1]",
                f"v_pk_fma_f16 v{dst}, v{a}, v{b}, v{dst} op_sel:[1,1,0] op_sel_hi:[1,0,1] neg_lo:[1,0,0]"]
    def sq(z):
        return [f"v_pk_mul_f32 v[{TP}:{TP+1}], v[{z}:{z+1}], v[{z}:{z+1}] op_sel_hi:[0,1]",
                f"v_pk_fma_f32 v[{z}:{z+1}], v[{z}:{z+1}], v[{z}:{z+1}], v[{TP}:{TP+1}] op_sel:[1,1,0] op_sel_hi:[1,0,1] neg_lo:[1,0,0]"]
    def half(h, ofs):
        up = (lambda d, s: f"v_and_b32 v{d}, 0xffff0000, v{s}") if h else (lambda d, s: f"v_lshlrev_b32 v{d}, 16, v{s}")
        S = [up(AB, vLR), f"v_mul_f32 v{AB}, s24, v{AB}", f"v_exp_f32 v{AB}, v{AB}", up(AB + 1, vAI),
             f"v_cvt_pk_bf16_f32 v{AB}, v{AB}, v{AB}", f"v_mul_f32 v{AB+1}, v{vDT}, v{AB+1}", f"v_lshlrev_b32 v{AB}, 16, v{AB}",
             f"v_mul_f32 v{AB+1}, 0.15915494, v{AB+1}", f"v_mul_f32_e64 v{AB}, -v{vDT}, v{AB}", f"v_fract_f32 v{TP}, v{AB+1}",
             f"v_mul_f32 v{AB}, s24, v{AB}", f"v_cos_f32 v{ZA}, v{TP}",
             f"v_pk_mul_f32 v[{AB+2}:{AB+3}], v[{AB}:{AB+1}], s[26:27]", f"v_sin_f32 v{ZA+1}, v{TP}",
             f"v_fract_f32 v{TP+1}, v{AB+3}", f"v_exp_f32 v{E1}, v{AB}", f"v_cos_f32 v{ZB}, v{TP+1}", f"v_exp_f32 v{E2}, v{AB+2}",
             f"v_sin_f32 v{ZB+1}, v{TP+1}",
             f"v_pk_mul_f32 v[{ZA}:{ZA+1}], v[{ZA}:{ZA+1}], v[{E1}:{E1+1}] op_sel_hi:[1,0]",
             f"v_pk_mul_f32 v[{ZB}:{ZB+1}], v[{ZB}:{ZB+1}], v[{E2}:{E2+1}] op_sel_hi:[1,0]"]
        cv = lambda p, z: f"v_cvt_pk_f16_f32 v{Wr[p]}, v{z}, v{z+1}"
        wl = lambda r, v: f"ds_write_addtid_b32 v{v} offset:{ofs + r*ROW}"
        wh = lambda hh, v: f"ds_write_addtid_b32 v{v} offset:{ofs + (32+HSLOT[hh])*ROW}"
        S += [cv(1, ZA), cv(32, ZB), wl(4, Wr[32])]
        for pa, pb in ((2, 64), (4, 128), (8, 256), (16, 512), (None, 1024)):
            if pa: S += sq(ZA) + [cv(pa, ZA)]
            S += sq(ZB) + [cv(pb, ZB)]
            if pa in (8, 16): S.append(wl(pa // 8, Wr[pa]))
            if pb in (64, 128): S.append(wl(pb // 8, Wr[pb]))
        if h == 0 and cfg.prio == 1: S.append("s_setprio 0")
        k = 0
        for r in range(3, 32):
            top = 1 << (r.bit_length() - 1)
            if r == top: continue
            d = Lr[r] if r < 16 else TMP[k % 4]; k += 1
            S += cm(d, Lr[r - top], Wr[8 * top]) + [wl(r, d)]
        S += [up(TP, vCR), up(TP + 1, vCI), f"v_pk_mul_f32 v[{TP}:{TP+1}], v[{TP}:{TP+1}], s[36:37]",
              f"v_cvt_pk_f16_f32 v{Hk[0]}, v{TP}, -v{TP+1}", wh(0, Hk[0])]
        for hh, a, b in HTREE:
            d = Hk.get(hh) or TMP[k % 4]; k += 1
            S += cm(d, Hk[a], Wr[b], True) + [wh(hh, d)]
        return S

    T = 8
    aL, aH, aKW, aR4W, aR8W, aMD, aM4, aM8, aX, aW2, aW3, aR = range(T, T + 12)
    mSp = T + 12
    aW2b, aW3b = 5, 6
    FA, FB, KA = 64, 96, 128
    if cfg.prio == 1: I("s_setprio 2")
    I(f"global_load_dword v{vCR}, v5, s[12:13]\nglobal_load_dword v{vCI}, v5, s[14:15]\nglobal_load_short_d16_hi v61, v7, s[18:19]")
    if cfg.fine == 2: stamp()
    I(f"""s_add_u32 s6, s6, L_tabc-L_pc
         s_addc_u32 s7, s7, 0
         s_mul_i32 s23, s3, {KSTR}
         s_add_u32 s23, s23, {KB}
         v_add_u32 v7, s23, v{vL16}
         v_lshl_add_u32 v6, v0, 3, s23""")
    for k in range(6): I(f"ds_write_b128 v7, v[28:31] offset:{1024*k}")
    I("ds_write_b64 v6, v[28:29] offset:6144")
    consts()
    I(f"""ds_write_addtid_b32 v32 offset:0
         s_mul_i32 s30, s46, {USTR}
         s_mul_i32 s31, s46, {WSTR}
         s_lshl_b32 s32, s3, 13
         s_lshl_b32 s4, s3, 2
         s_add_u32 s4, s4, {PRG}
         v_mov_b32 v240, s4
         v_and_b32 v241, 0x70, v{vL16}
         v_add_u32 v241, s4, v241
         ds_write_b32 v241, v28
         v_subrev_u32 v241, 16, v240""")
    I(f"""v_and_b32 v36, 15, v0
         v_lshrrev_b32 v37, 4, v0
         v_and_b32 v38, 31, v0
         v_lshrrev_b32 v39, 5, v0
         v_and_b32 v40, 3, v0
         v_bfe_u32 v41, v0, 2, 2
         v_lshlrev_b32 v42, 4, v37
         v_mov_b32 v43, {ROW}
         v_lshl_add_u32 v44, v39, 4, s22
         v_mad_u32_u24 v{aL}, v38, v43, v44
         v_add_u32 v45, 32, v38
         v_cmp_le_u32 vcc, 8, v38
         v_cmp_le_u32 s[8:9], 15, v38
         v_cmp_le_u32 s[10:11], 20, v38
         v_cndmask_b32_e64 v46, 0, 4, vcc
         v_cndmask_b32_e64 v47, 0, 1, s[8:9]
         v_cndmask_b32_e64 v48, 0, 2, s[10:11]
         v_add3_u32 v46, v46, v47, v48
         v_sub_u32 v45, v45, v46
         v_mad_u32_u24 v{aH}, v45, v43, v44
         v_lshlrev_b32 v44, 3, v39
         v_lshl_add_u32 v44, v38, 4, v44
         s_add_u32 s4, s23, {2*P0 - 520}
         v_sub_u32 v{aKW}, s4, v44
         v_lshlrev_b32 v44, 2, v0
         s_add_u32 s4, s23, {R4O + 380}
         v_sub_u32 v{aR4W}, s4, v44
         v_lshlrev_b32 v44, 1, v0
         s_add_u32 s4, s23, {R8O + 130}
         v_sub_u32 v{aR8W}, s4, v44
         v_mul_u32_u24 v44, {RDS + 2}, v40
         v_lshlrev_b32 v45, 1, v36
         v_sub_u32 v45, v42, v45
         s_add_u32 s4, s23, {2*(P0 - 16) - 1024}
         v_add3_u32 v{aMD}, v44, v45, s4
         v_lshlrev_b32 v45, 3, v36
         v_sub_u32 v45, v42, v45
         s_add_u32 s4, s23, {R4O + 120}
         v_add_u32 v{aM4}, s4, v45
         v_and_b32 v44, 1, v0
         v_mul_u32_u24 v44, 388, v44
         v_lshlrev_b32 v45, 2, v36
         v_sub_u32 v45, v42, v45
         s_add_u32 s4, s23, {R8O + 64}
         v_add3_u32 v{aM8}, v44, v45, s4
         v_lshl_add_u32 v44, v36, 5, v42
         s_add_u32 s4, s30, {UB}
         v_add_u32 v{aX}, s4, v44
         v_bfe_u32 v44, v0, 1, 2
         v_xor_b32 v44, v44, v37
         v_lshl_add_u32 v44, v36, 2, v44
         s_add_u32 s4, s32, {RB}
         v_lshl_add_u32 v{aR}, v44, 4, s4
         ; transposing reads of the box sums: granule v -> byte 8*(v + (v>>4)); odd rows come from W3 / W7
         v_and_b32 v44, 1, v41
         v_mul_u32_u24 v45, {W3O - W5O}, v44
         s_add_u32 s4, s31, {WB + W5O}
         v_add_u32 v45, s4, v45
         v_lshl_add_u32 v46, v37, 3, v41
         v_add_u32 v46, v46, v40
         v_lshrrev_b32 v47, 4, v46
         v_add_u32 v47, v47, v46
         v_lshl_add_u32 v{aW2}, v47, 3, v45
         v_add_u32 v46, 4, v46
         v_lshrrev_b32 v47, 4, v46
         v_add_u32 v47, v47, v46
         v_lshl_add_u32 v{aW2b}, v47, 3, v45
         v_mul_u32_u24 v45, {W7O - W9O}, v44
         s_add_u32 s4, s31, {WB + W9O}
         v_add_u32 v45, s4, v45
         v_lshl_add_u32 v46, v41, 1, v42
         v_add_u32 v46, v46, v40
         v_lshrrev_b32 v47, 4, v46
         v_add_u32 v47, v47, v46
         v_lshl_add_u32 v{aW3}, v47, 3, v45
         v_add_u32 v46, 8, v46
         v_lshrrev_b32 v47, 4, v46
         v_add_u32 v47, v47, v46
         v_lshl_add_u32 v{aW3b}, v47, 3, v45
         v_mov_b32 v63, s23
         s_lshl_b32 s4, s44, 2
         s_add_u32 s4, s4, s45
         s_lshl_b32 s55, s4, 11
         v_add_u32 v{vGR}, s55, v{vL16}
         s_lshl_b32 s4, s44, 7
         s_lshl_b32 s8, s45, 3
         s_add_u32 s4, s4, s8
         s_add_u32 s4, s4, {WS_G}
         v_mov_b32 v217, s4
         s_lshl_b32 s4, s48, 5
         v_mov_b32 v188, s4
         s_lshl_b32 s4, s5, 14
         s_lshl_b32 s8, s45, 19
         s_add_u32 s4, s4, s8
         s_add_u32 s4, s4, s49
         v_lshl_add_u32 v253, v36, 10, s4""")
    I(f"""s_lshl_b32 s4, s48, 10
         s_lshl_b32 s8, s45, 8
         s_add_u32 s4, s4, s8
         s_lshr_b32 s8, s5, 4
         s_lshl_b32 s8, s8, 7
         s_add_u32 s4, s4, s8
         s_add_u32 s4, s4, {WS_OF}
         v_mov_b32 v252, s4""")
    touch = "global_load_dword v254, v253, s[62:63]"
    if cfg.touch_at == 0: I(touch)
    gate = []
    for d in range(4):
        gate.append("\n".join(f"v_dot2_f32_bf16 v{212+rw}, v{GX+4*rw+d}, v{GW+d}, {f'v{212+rw}' if d else 0}" for rw in range(2)))
    gate += [None, "v_permlane32_swap_b32 v212, v213", "v_add_f32 v212, v212, v213"]
    gate += [f"v_add_f32_dpp v212, v212, v212 row_shr:{n} row_mask:0xf bank_mask:0xf bound_ctrl:1" for n in (1, 2, 4, 8)]
    gate += ["v_add_f32_dpp v212, v212, v212 row_bcast:15 row_mask:0xa bank_mask:0xf",
             "v_cvt_pk_bf16_f32 v212, v212, v212\nv_lshlrev_b32 v212, 16, v212\nv_mul_f32 v212, 0xbfb8aa3b, v212\nv_exp_f32 v212, v212",
             "v_add_f32 v212, 1.0, v212\nv_rcp_f32 v212, v212", "v_cvt_pk_bf16_f32 v212, v212, v212",
             "v_readlane_b32 s38, v212, 31\nv_readlane_b32 s39, v212, 63\ns_pack_ll_b32_b16 s38, s38, s39\nv_mov_b32 v214, s38"]
    gate = [t for t in gate if t]
    def gate_out():
        I("v_cmp_eq_u32 vcc, 0, v215\ns_cbranch_vccz L_c4")
        A.label("L_c3")
        I("global_load_dword v215, v188, s[40:41] sc1", track=False)
        I("s_waitcnt vmcnt(0)\nv_cmp_eq_u32 vcc, 0, v215\ns_cbranch_vccnz L_c3")
        A.label("L_c4")
        I("s_mov_b64 exec, 1\nglobal_store_dwordx2 v217, v[214:215], s[42:43] sc1\ns_mov_b64 exec, -1")
    gate.append(gate_out if cfg.gmode == "a" else "ds_write_b32 v241, v214")
    gload = f"""buffer_load_dwordx4 v[{GX}:{GX+3}], v{vGR}, s[56:59], 0 offen
             buffer_load_dwordx4 v[{GX+4}:{GX+7}], v{vGR}, s[56:59], 0 offen offset:1024
             global_load_dwordx4 v[{GW}:{GW+3}], v{vL16}, s[60:61]
             """ + ("global_load_dword v215, v188, s[40:41] sc1" if cfg.gmode == "a" else "")
    if cfg.gload_at < 0: I(gload)
    if cfg.fine and cfg.fine < 6: stamp()
    dt_scale()
    S0 = half(0, 0)
    I(S0[0]); stamp()
    S0 = merge(S0[1:], red + [f"v_mul_f32 v62, s35, v{vDT}"], cfg.red_at, 3)
    if cfg.gload_at >= 0: S0.insert(cfg.gload_at, gload)
    if cfg.touch_at > 0: S0.insert(cfg.touch_at, touch)
    S0.insert(cfg.touch2_at, "global_load_dword v252, v252, s[42:43]")
    S0 = S0[:cfg.gate_at] + merge(S0[cfg.gate_at:], gate, 0, cfg.gate_sp)
    S0.append(f"global_load_dwordx4 v[{mSp}:{mSp+3}], v{vL16}, s[6:7]")
    rdH = lambda ofs, s_: f"ds_read_b128 v[{FA+4*s_}:{FA+4*s_+3}], v{aH} offset:{ofs+32*s_}"
    rdL = lambda ofs, s_: f"ds_read_b128 v[{FB+4*s_}:{FB+4*s_+3}], v{aL} offset:{ofs+32*s_}"
    lastL = max(i for i, t in enumerate(S0) if isinstance(t, str) and t.endswith(f"offset:{31*ROW}"))
    S0 = S0[:lastL + 1] + merge(S0[lastL + 1:], [rdL(0, s_) for s_ in range(8)], 4, 6)
    run(S0)
    def kmf(first):
        return [f"v_mfma_f32_32x32x16_f16 v[{KA}:{KA+15}], v[{FA+4*s_}:{FA+4*s_+3}], v[{FB+4*s_}:{FB+4*s_+3}], " +
                ("0" if first and s_ == 0 else f"v[{KA}:{KA+15}]") for s_ in range(8)]
    stamp()
    run([rdH(0, s_) for s_ in range(8)])
    A.wait(lg=0)
    I("s_barrier")
    stamp()
    conv_mark = len(A.lines)
    q4 = lambda r: f"v[{r}:{r+3}]"
    XS = [[28, 32, 36, 40, 44, 48, 52, 56], [168, 172, 176, 180, 224, 228, 232, 236]]
    rdX = lambda c, n: f"ds_read_b128 {q4(XS[c & 1][n])}, v{aX} offset:{32*(16*c + 2*n)}"
    def flagwait(name, off, first=True):
        A.label(f"L_{name}chk")
        I("v_min3_u32 v249, v249, v250, v251")
        if first: I("v_min_u32 v249, v248, v249")
        I(f"v_cmp_eq_u32 vcc, 0, v249\ns_cbranch_vccz L_{name}ok")
        sn = A.snapshot()
        I(f"ds_read_b128 v[248:251], v{vFL} offset:{off}\ns_waitcnt lgkmcnt(0)\ns_branch L_{name}chk")
        A.label(f"L_{name}ok", sn)
    for n, t in enumerate(kmf(True)):
        I(t); I(rdH(SCRS, n)); I(rdL(SCRS, n))
        if n == 4: I(f"ds_read_b128 v[248:251], v{vFL}")
    flagwait("u", 0)
    for n, t in enumerate(kmf(False)):
        I(t); I(rdX(n >> 2, (2 * n) & 7)); I(rdX(n >> 2, (2 * n + 1) & 7))
    o = lambda i: f"v{KA+i}"
    I("s_nop 3")
    for i in range(0, 8, 2): I(f"v_pk_mul_f32 v[{KA+i}:{KA+i+1}], v[{KA+i}:{KA+i+1}], v[62:63] op_sel_hi:[1,0]")
    stamp()
    I(f"s_mov_b64 exec, 1\nv_add_f32 {o(0)}, v61, {o(0)}\ns_mov_b64 exec, s[28:29]\nv_mov_b32 {o(5)}, {o(4)}\ns_mov_b64 exec, -1")
    Q = 144
    def wcopy(q, pairs, s_, lagoff):
        (a, b), (c, d) = pairs
        return [f"v_cvt_pk_bf16_f32 v{q}, {a}, {b}\nv_cvt_pk_bf16_f32 v{q+1}, {c}, {d}",
                f"ds_write_b64 v{aKW}, v[{q}:{q+1}] offset:{520 + s_*RDS - (0 if s_ == 3 else 8) - 2*lagoff}"]
    run(wcopy(Q, ((o(3), o(2)), (o(1), o(0))), 3, 0) + wcopy(Q + 2, ((o(4), o(3)), (o(2), o(1))), 0, 0) +
        wcopy(Q + 4, ((o(5), o(4)), (o(3), o(2))), 1, 0) + wcopy(Q + 6, ((o(6), o(5)), (o(4), o(3))), 2, 0))
    I(f"""v_cvt_pk_bf16_f32 v{Q+16}, {o(0)}, 0
          s_mov_b64 exec, 1
          ds_write_b32 v63, v{Q+16} offset:{0*RDS + 2*P0}
          ds_write_b32 v63, v{Q+1} offset:{1*RDS + 2*P0}
          ds_write_b32 v63, v{Q+3} offset:{2*RDS + 2*P0}
          ds_write_b32 v63, v{Q+16} offset:{2*RDS + 2*P0 + 4}
          s_mov_b64 exec, -1""")
    stamp()
    ACC = lambda c: 192 + 4 * c
    WAB = [244, 252, 188]
    reg = {}
    for mu in range(0, 34, 2): reg["M", mu] = 64 + 2 * mu if mu < 32 else 24
    for i in range(3):
        for f in range(2): reg["M4", i, f] = 144 + 8 * i + 4 * f
    for i in range(1, 5): reg["M8", i] = 128 + 4 * (i - 1)
    for c in range(8):
        for n in range(8): reg["X", c, n] = XS[c & 1][n]
    reg["Sp",] = mSp
    near = lambda c: [(c, ("M", 14 - 2 * n), ("X", c, n)) for n in range(8)]
    far = lambda c: [(c, ("M", 30 - 2 * n), ("X", c - 1, n)) for n in range(8)]
    tail = lambda c: ([(c + 2, ("M", 32), ("X", c, 7))] if c < 6 else []) + ([(c + 4, ("Sp",), ("X", c, 7))] if c < 4 else [])
    wk = [0]
    def wtok(*t):
        reg[t] = WAB[wk[0] % 3]; wk[0] += 1
        if t[0] == "W2": return [(c, t, ("M4", t[1] - c + 4, t[2])) for c in range(t[1] + 2, min(t[1] + 5, 8))]
        return [(c, t, ("M8", t[1] - c + 8)) for c in range(t[1] + 4, 8)]
    def zipm(a, b):
        out = []
        for n in range(max(len(a), len(b))): out += a[n:n + 1] + b[n:n + 1]
        return out
    MM = zipm(near(0), near(1)) + zipm(far(1), far(2)) + [tail(0)[0], tail(1)[0]]
    wplan = {3: [("W2", 0, 0), ("W2", 0, 1), ("W2", 1, 0), ("W2", 1, 1)], 4: [("W2", 2, 0), ("W2", 2, 1), ("W3", 0)],
             5: [("W2", 3, 0), ("W2", 3, 1), ("W3", 1)], 6: [("W2", 4, 0), ("W2", 4, 1), ("W3", 2)], 7: [("W2", 5, 0), ("W2", 5, 1), ("W3", 3)]}
    for c in range(2, 8):
        body = zipm(near(c), far(c + 1) if c < 7 else [])
        pairs = [body[k:k + (2 if c < 7 else 1)] for k in range(0, len(body), 2 if c < 7 else 1)]
        ws = [wtok(*t) for t in wplan.get(c, [])]
        if c == 2: MM += pairs[0] + [tail(0)[1], tail(1)[1]]; pairs = pairs[1:]
        for grp in merge(pairs, ws, 1, 2): MM += grp
        MM += tail(c)
    first, lastu, lastacc = {}, {}, {}
    for k, (c, a, b) in enumerate(MM):
        for t in (a, b): first.setdefault(t, k); lastu[t] = k
        lastacc[c] = k
    LAT = cfg.lat
    ops = []
    class Op:
        def __init__(o, text, kind, early=-1, late=10 ** 6, after=()):
            o.text, o.kind, o.early, o.late, o.after, o.done = text, kind, early, late, list(after), None
            ops.append(o)
    def chain(items, after=()):
        prev = list(after); out = []
        for text, kind in items:
            o = Op(text, kind, after=prev); prev = [o]; out.append(o)
        return out
    def load(tok, texts, after=()):
        prevs = [lastu[t] for t in lastu if t != tok and reg[t] == reg[tok] and lastu[t] < first[tok]]
        return [Op(t, "r", early=max(prevs, default=-1), late=first[tok] - LAT, after=after) for t in texts]
    def rd64(r, addr, off): return [f"ds_read_b64 v[{r}:{r+1}], v{addr} offset:{off}", f"ds_read_b64 v[{r+2}:{r+3}], v{addr} offset:{off+8}"]
    def rdtr(r, ad0, ad1, off): return [f"ds_read_b64_tr_b16 v[{r}:{r+1}], v{ad0} offset:{off}", f"ds_read_b64_tr_b16 v[{r+2}:{r+3}], v{ad1} offset:{off}"]
    for mu in range(14, -1, -2): load(("M", mu), rd64(reg["M", mu], aMD, 1024 - 32 * mu))
    v0_, v2_, v4_, v6_ = o(8), o(9), o(10), o(11)
    mul2 = lambda i: (f"v_mul_f32 v{KA+i}, v62, v{KA+i}\nv_mul_f32 v{KA+i+1}, v62, v{KA+i+1}", "v")
    seg1 = (wcopy(Q + 8, ((v4_, v2_), (v0_, v0_)), 3, 256) + wcopy(Q + 10, ((v4_, v4_), (v2_, v0_)), 0, 256) +
            wcopy(Q + 12, ((v4_, v4_), (v4_, v2_)), 1, 256) + wcopy(Q + 14, ((v6_, v4_), (v4_, v4_)), 2, 256))
    p1 = chain([mul2(8), mul2(10), (f"v_cndmask_b32_e64 {v6_}, {v6_}, {v4_}, s[28:29]\nv_cvt_pk_bf16_f32 v{Q+17}, 0, {v4_}", "v")] +
               [(t, "w64" if t.startswith("ds") else "v") for t in seg1])
    for mu in range(30, 14, -2): load(("M", mu), rd64(reg["M", mu], aMD, 1024 - 32 * mu), [p1[-1]])
    one = lambda t: (f"s_mov_b64 exec, s[28:29]\n{t}\ns_mov_b64 exec, -1", "w32")
    hi = chain([one(f"ds_write_b32 v63, v{Q+17} offset:{3*RDS + 56}"), one(f"ds_write_b32 v63, v{Q+10} offset:{3*RDS + 60}"),
                one(f"ds_write_b32 v63, v{Q+10} offset:{0*RDS + 52}"), one(f"ds_write_b32 v63, v{Q+17} offset:{1*RDS + 52}")], [p1[-1]])
    load(("M", 32), rd64(reg["M", 32], aMD, 0), [hi[-1]])
    p2 = chain([mul2(12), mul2(14), (f"v_cvt_pk_bf16_f32 v{Q+18}, {o(12)}, {o(13)}\nv_cvt_pk_bf16_f32 v{Q+19}, {o(14)}, {o(15)}", "v")])
    sp = chain([(f"v_readlane_b32 s38, v{Q+18}, 63\ns_pack_ll_b32_b16 s38, s38, s38", "v"),
                (f"v_and_b32 v{mSp}, s38, v{mSp}\nv_and_b32 v{mSp+1}, s38, v{mSp+1}", "v"),
                (f"v_and_b32 v{mSp+2}, s38, v{mSp+2}\nv_and_b32 v{mSp+3}, s38, v{mSp+3}", "v")], [p2[-1]])
    sp[-1].late = first["Sp",] - 2
    r4 = chain([(f"ds_write_b32 v{aR4W}, v{Q+18}", "w32")], [p2[-1]])
    r8 = chain([(f"ds_write_b16 v{aR8W}, v{Q+19} offset:128", "w32"), (f"ds_write_b16_d16_hi v{aR8W}, v{Q+19} offset:0", "w32"),
                (f"ds_write_b16 v{aR8W}, v{Q+19} offset:{128+388}", "w32"), (f"ds_write_b16_d16_hi v{aR8W}, v{Q+19} offset:388", "w32")], [p2[-1]])
    for i in (2, 1, 0):
        for f in (0, 1): load(("M4", i, f), rd64(reg["M4", i, f], aM4, 128 * i + 64 * f), [r4[-1], r8[-1], hi[-1], sp[0]])
    for i in (4, 3, 2, 1): load(("M8", i), rd64(reg["M8", i], aM8, 64 * (i - 1)), [r8[-1], p1[-1]])
    for c in range(2, 8):
        for n in range(8): load(("X", c, n), [rdX(c, n)])
    fr = Op(f"ds_read_b128 v[248:251], v{vFL} offset:32", "r")
    fc = Op(lambda: flagwait("w", 32), "v", after=[fr]); fr.gap = 4
    for t in [t for t in first if t[0] in ("W2", "W3")]:
        load(t, rdtr(reg[t], aW2, aW2b, 544 * t[1] + 272 * t[2]) if t[0] == "W2" else rdtr(reg[t], aW3, aW3b, 544 * t[1]), [fc])
    def flagw(c):
        I(f"ds_write_b32 v240, v240 offset:{16*c}")
        if cfg.stamps and (c in (0, 1, 3, 7) or cfg.fine == 6): stamp()
    for c in range(8):
        a = Op(f"ds_write_b64 v{aR}, v[{ACC(c)}:{ACC(c)+1}] offset:{1024*c}", "w64", early=lastacc[c] + 2, late=lastacc[c] + cfg.rlag)
        a2 = Op(f"ds_write_b64 v{aR}, v[{ACC(c)+2}:{ACC(c)+3}] offset:{1024*c+8}", "w64", after=[a], late=lastacc[c] + cfg.rlag + 2)
        Op(lambda c=c: flagw(c), "w32", after=[a2], late=lastacc[c] + cfg.rlag + 4)
    for _ in range(len(ops)):
        for x in ops:
            for p in x.after: p.late = min(p.late, x.late - getattr(p, "gap", 1))
    touched = set(); busy = -1; extra = 0
    def ready(x, g): return x.done is None and x.early <= g and all(p.done is not None and p.done + getattr(p, "gap", 0) <= g for p in x.after)
    for g in range(-1, len(MM)):
        if g >= 0:
            c, a, b = MM[g]
            src = q4(ACC(c)) if c in touched else "0"; touched.add(c)
            I(f"v_mfma_f32_16x16x32_bf16 {q4(ACC(c))}, {q4(reg[a])}, {q4(reg[b])}, {src}")
        n = 0
        while True:
            cand = sorted((x for x in ops if ready(x, g)), key=lambda x: x.late)
            due = [x for x in cand if x.late <= g]
            if n == 0 and g >= 0 and not due:
                cand = [x for x in cand if not (x.kind[0] == "w" and g < busy) and x.late - g < cfg.horizon]
                pick = cand[0] if cand else None
            else: pick = due[0] if due else None
            if pick is None: break
            run([pick.text]); pick.done = g; n += 1
            if pick.kind == "w128": busy = g + 4
            elif pick.kind == "w64": busy = max(busy, g + 2)
        if g >= 0: extra += max(0, n - 1)
    for x in sorted((x for x in ops if x.done is None), key=lambda x: x.late): run([x.text])
    sys.stderr.write(f"conv: {len(MM)} MFMAs, {len(ops)} side ops, {extra} share a gap\n")
    from asmlib import Ins
    live = set()
    for ln in A.lines[conv_mark:]:
        if ln.endswith(":") or ln.strip().startswith(";"): continue
        q = Ins(ln.strip())
        if q.kind == "mfma": assert "32x32" in q.mn or set(q.A + q.B) <= live, ln
        elif q.mn.startswith("ds_read") or q.mn == "v_and_b32": live |= set(q.w)
        else: live -= set(q.w)
    stamp_out()
    I("s_endpgm")

    nst[0] = nst_io
    A.label("L_io", snap_io)
    if cfg.fine == 2: stamp()
    BND = 8
    aUW, aXio, aWW, aRr, offG, offOut, aZ, aWW3 = range(24, 32)
    vCR1 = 189
    I(f"""s_getreg_b32 s54, hwreg(HW_REG_XCC_ID, 0, 4)
         ; column reads / transposed stores: lane = 4*j + q
         v_and_b32 v34, 3, v0
         v_lshrrev_b32 v35, 4, v0
         v_lshlrev_b32 v36, 1, v34
         v_xor_b32 v35, v35, v36
         v_and_b32 v36, 12, v0
         v_lshl_add_u32 v35, v35, 4, v36
         v_lshl_add_u32 v35, v34, 9, v35
         v_xor_b32 v36, 64, v35
         v_add_u32 v{vCRd}, s22, v35
         v_add_u32 v{vCR1}, s22, v36
         v_lshrrev_b32 v35, 2, v0
         v_lshlrev_b32 v36, 4, v34
         v_lshl_add_u32 v35, v35, 14, v36
         s_lshr_b32 s4, s5, 3
         s_lshl_b32 s4, s4, 9
         s_and_b32 s23, s5, 7
         s_lshl_b32 s23, s23, 1
         s_add_u32 s4, s4, s23
         s_lshr_b32 s23, s45, 1
         s_add_u32 s4, s4, s23
         s_lshl_b32 s4, s4, 10
         s_lshl_b32 s23, s46, 6
         s_add_u32 s4, s4, s23
         s_add_u32 s4, s4, s49
         v_add_u32 v{vST0}, s4, v35
         v_add_u32 v{vST1}, 0x40000, v{vST0}
         s_lshl_b32 s4, s48, 9
         s_lshl_b32 s23, s45, 7
         s_add_u32 s4, s4, s23
         s_add_u32 s4, s4, {WS_LF}
         v_and_b32 v34, 31, v0
         v_lshl_add_u32 v{vPL}, v34, 2, s4
         global_load_dword v{vNR}, v{vPL}, s[42:43] sc1
         v_add_u32 v223, s22, v{vL16}
         v_lshrrev_b32 v35, 3, v0
         v_and_b32 v36, 0x70, v{vL16}
         v_lshl_add_u32 v213, v35, 10, v36
         s_lshl_b32 s4, s5, 14
         s_add_u32 s4, s4, s49
         s_lshr_b32 s23, s45, 1
         s_lshl_b32 s23, s23, 19
         s_add_u32 s23, s23, s4
         s_lshl_b32 s8, s46, 13
         s_add_u32 s23, s23, s8
         v_add_u32 v{vU0}, s23, v213
         v_add_u32 v{vU1}, 0x100000, v{vU0}
         s_lshl_b32 s23, s45, 19
         s_add_u32 s4, s4, s23
         v_add_u32 v213, s4, v213
         ; own flag word, hello words
         s_lshl_b32 s4, s48, 9
         s_bfe_u32 s23, s5, 0x20002
         s_lshl_b32 s23, s23, 7
         s_add_u32 s4, s4, s23
         s_lshr_b32 s23, s5, 4
         s_lshl_b32 s23, s23, 6
         s_add_u32 s4, s4, s23
         s_and_b32 s23, s5, 3
         s_lshl_b32 s23, s23, 4
         s_add_u32 s4, s4, s23
         s_lshl_b32 s23, s45, 2
         s_add_u32 s4, s4, s23
         s_add_u32 s4, s4, {WS_LF}
         v_mov_b32 v216, s4
         s_add_u32 s4, s47, {WS_HELLO}
         v_mov_b32 v218, s4
         v_and_b32 v34, 31, v0
         s_add_u32 s23, s49, {WS_HELLO}
         v_lshl_add_u32 v{vHL}, v34, 2, s23
         s_lshl_b32 s26, s45, 9
         s_add_u32 s4, s26, {UB + 480}
         v_lshl_add_u32 v{aUW}, v0, 3, s4
         v_and_b32 v34, 15, v0
         v_lshrrev_b32 v35, 4, v0
         v_lshl_add_u32 v36, v34, 1, v35
         s_add_u32 s9, s45, 3
         s_and_b32 s9, s9, 3
         s_lshl_b32 s4, s9, 9
         s_add_u32 s4, s4, {UB + 448}
         v_lshl_add_u32 v{aXio}, v36, 4, s4
         s_lshl_b32 s23, s45, 12
         s_add_u32 s23, s23, {WS_G}
         v_lshrrev_b32 v36, 2, v0
         v_and_b32 v37, 3, v0
         v_lshl_add_u32 v36, v36, 4, v37
         v_lshl_add_u32 v{offG}, v36, 3, s23
         s_lshl_b32 s23, s45, 10
         v_bfe_u32 v36, v0, 1, 2
         v_xor_b32 v36, v36, v35
         v_lshrrev_b32 v37, 3, v0
         v_lshl_add_u32 v36, v37, 2, v36
         v_and_b32 v37, 1, v0
         v_lshl_add_u32 v36, v36, 1, v37
         s_add_u32 s4, s23, {RB}
         v_lshl_add_u32 v{aRr}, v36, 3, s4
         s_lshl_b32 s4, s45, 18
         s_add_u32 s4, s4, s47
         v_lshl_add_u32 v{offOut}, v0, 11, s4
         v_lshl_add_u32 v36, v34, 2, v35
         s_mul_i32 s4, s9, 544
         v_add_u32 v36, 2, v36
         v_lshrrev_b32 v37, 4, v36
         v_add_u32 v37, v37, v36
         v_lshl_add_u32 v{aWW}, v37, 3, s4
         v_add_u32 v36, 1, v36
         v_lshrrev_b32 v37, 4, v36
         v_add_u32 v37, v37, v36
         v_lshl_add_u32 v{aWW3}, v37, 3, s4
         ; zero pads in front of W5, W3, W9 of both channels
         v_and_b32 v36, 3, v0
         v_bfe_u32 v37, v0, 2, 2
         v_min_u32 v37, 2, v37
         v_mul_u32_u24 v37, {W3O}, v37
         v_min_u32 v37, {W9O}, v37
         v_lshl_add_u32 v36, v36, 3, v37
         v_bfe_u32 v37, v0, 4, 1
         v_mul_u32_u24 v37, {WSTR}, v37
         v_add_u32 v{aZ}, v36, v37
         s_lshl_b32 s4, s45, 2
         s_add_u32 s4, s4, {FLAG}
         v_mov_b32 v79, s4
         v_mov_b32 v77, 1
         v_mov_b32 v70, 0
         v_mov_b32 v71, 0
         ds_write_b32 v79, v70
         ds_write_b32 v79, v70 offset:32
         s_cmp_lg_u32 s45, 0
         s_cbranch_scc1 L_io5
         v_subrev_u32 v72, 480, v{aUW}
         ds_write_b64 v72, v[70:71]
         ds_write_b64 v72, v[70:71] offset:{USTR}""")
    A.label("L_io5")
    I(f"""s_add_u32 s6, s6, L_tabi-L_pc
         s_addc_u32 s7, s7, 0
         s_mov_b32 s30, 0x05040100
         s_mov_b32 s31, 0x07060302
         s_sub_u32 s23, s22, {MOFS}""")
    consts()
    I(f"""s_mov_b32 m0, s23
         global_load_dword v215, v188, s[40:41] sc1""")
    if cfg.prio: I("s_setprio 1")
    if cfg.fine == 2: stamp()
    dt_scale()
    def tile():
        I(f"ds_write_b128 v223, v[{TR}:{TR+3}]\nds_write_b128 v223, v[{TR+4}:{TR+7}] offset:1024")
        stamp()
        for Jp in range(2):
            for i in (0, 2): I(f"ds_read2_b32 v[{TR+4*Jp+i}:{TR+4*Jp+i+1}], v{(vCRd, vCR1)[Jp]} offset0:{32*i} offset1:{32*(i+1)}")
        I(f"ds_write_addtid_b32 v32 offset:{MOFS}")
    def tile2():
        I(f"""global_store_dwordx4 v{vST0}, v[{TR}:{TR+3}], s[62:63]
             global_store_dwordx4 v{vST1}, v[{TR+4}:{TR+7}], s[62:63]""")
    def publish():
        stamp()
        I("s_waitcnt vmcnt(0)"); A.vm = []
        I("v_cmp_eq_u32 vcc, 0, v215\ns_cbranch_vccz L_io4")
        A.label("L_io3")
        I("global_load_dword v215, v188, s[40:41] sc1", track=False)
        I("s_waitcnt vmcnt(0)\nv_cmp_eq_u32 vcc, 0, v215\ns_cbranch_vccnz L_io3")
        A.label("L_io4")
        I(f"""v_lshl_add_u32 v219, s54, 1, v215
             s_mov_b64 exec, 1
             global_store_dword v216, v219, s[42:43]
             s_mov_b64 exec, -1""")
        stamp()
    tabl = [f"global_load_dwordx4 v[{BND+4*k}:{BND+4*k+3}], v{vL16}, s[6:7] offset:{1024*k}" for k in range(4)]
    U1, U2 = 224, 228
    uload = f"""global_load_dwordx4 v[{U1}:{U1+3}], v{vU0}, s[62:63] sc1
             global_load_dwordx4 v[{U2}:{U2+3}], v{vU1}, s[62:63] sc1"""
    def hello(tag):
        I(f"s_cmp_lg_u32 s45, 0\ns_cbranch_scc1 L_hi{tag}\ns_mov_b64 exec, 1\nv_add_u32 v222, {32 if tag == 'a' else 0}, v219")
        I("global_store_dword v218, v222, s[42:43] sc1", track=False)
        I("s_mov_b64 exec, -1")
        A.label(f"L_hi{tag}")
    def try_u():
        I("s_waitcnt vmcnt(0)"); A.vm = []
        I(f"v_cmp_ne_u32 vcc, v221, v219\ns_mov_b32 s25, 0")
        I("s_branch L_try0" if cfg.force_slow else "s_cbranch_vccnz L_try0")
        I(uload + "\ns_mov_b32 s25, 1")
        A.label("L_try0")
        stamp()
    def fetch_u():
        I("s_mov_b32 s33, 0")
        A.label("L_poll")
        I(f"global_load_dword v221, v{vPL}, s[42:43] sc1\ns_add_u32 s33, s33, 1\nv_cmp_ne_u32 vcc, v221, v219")
        if not cfg.force_slow: I("s_cbranch_vccz L_fast")
        I(f"""s_and_b32 s4, s33, 15
             s_cbranch_scc1 L_poll""")
        hello("a")
        I(f"""global_load_dword v222, v{vHL}, s[42:43] sc1
             s_cmp_gt_u32 s33, 0x40000
             s_cbranch_scc1 L_slow
             v_sub_u32 v222, v222, v215
             v_bfe_u32 v220, v222, 1, 4
             v_and_b32 v222, 0xffffffc1, v222
             v_cmp_ne_u32 s[12:13], s54, v220
             v_cmp_ne_u32 vcc, 0, v222
             s_cbranch_vccnz L_poll""")
        if not cfg.force_slow: I("s_cmp_eq_u64 s[12:13], 0\ns_cbranch_scc1 L_poll")
        A.label("L_slow")
        I(f"""s_lshl_b32 s4, s45, 18
             s_add_u32 s4, s4, s47
             v_lshl_add_u32 v222, v0, 12, s4
             s_mov_b32 s23, 0x100000""")
        for base, so in ((U1, "0"), (U2, "s23")):
            for j in range(4): I(f"buffer_load_dword v{base+j}, v222, s[56:59], {so} offen offset:{1024*j}")
        I("s_waitcnt vmcnt(0)\ns_branch L_have")
        A.vm = []
        A.label("L_fast")
        I(uload)
        A.label("L_have")
    def stage():
        for base, off in ((U1, 0), (U2, 2048)):
            I(f"""v_perm_b32 v72, v{base+1}, v{base}, s30
                  v_perm_b32 v73, v{base+3}, v{base+2}, s30
                  v_perm_b32 v74, v{base+1}, v{base}, s31
                  v_perm_b32 v75, v{base+3}, v{base+2}, s31
                  ds_write_b64 v{aUW}, v[72:73] offset:{off}
                  ds_write_b64 v{aUW}, v[74:75] offset:{off+USTR}""")
        I("ds_write_b32 v79, v77")
    S1 = merge(half(1, MOFS), red, cfg.red_at, 3)
    first_w = min(i for i, t in enumerate(S1) if "addtid" in t)
    held = []
    if cfg.tile_at > first_w:
        held = [t for t in S1[:cfg.tile_at] if "addtid" in t]
        S1 = [t for t in S1[:cfg.tile_at] if "addtid" not in t] + S1[cfg.tile_at:]
    ta = cfg.tile_at - len(held)
    S1 = S1[:ta] + [tile] + held + S1[ta:ta + 6] + [tile2] + S1[ta + 6:]
    S1.insert(cfg.pub_at, publish)
    S1.insert(len(S1) - cfg.poll_at, f"global_load_dword v221, v{vPL}, s[42:43] sc1")
    if cfg.fine == 5: S1.insert(len(S1) - cfg.poll_at - 1, stamp); S1.insert(len(S1) - cfg.fetch_at, stamp)
    S1.insert(len(S1) - cfg.fetch_at, try_u)
    run(S1)
    run(tabl)
    if cfg.fine == 5: stamp()
    I("s_cmp_eq_u32 s25, 0\ns_cbranch_scc1 L_late")
    sn = A.snapshot()
    stage()
    I("s_waitcnt lgkmcnt(0)\ns_barrier\ns_branch L_join")
    A.label("L_late", sn); A.vm = []
    I("s_waitcnt lgkmcnt(0)\ns_barrier"); A.lg = []
    fetch_u()
    stage()
    A.label("L_join")
    I("s_waitcnt vmcnt(0)"); A.vm = []
    stamp()
    if cfg.prio and cfg.wlow: I("s_setprio 0")
    I(f"""v_add_u32 v76, 0x4000, v{offG}
         s_lshl_b32 s4, s45, 5
         v_mov_b32 v78, s4""")
    GQ = 128
    def gather(second=True):
        I(f"""global_load_dword v{GQ+4}, v78, s[40:41] sc1
              global_load_dwordx2 v[{GQ}:{GQ+1}], v{offG}, s[42:43] sc1
              global_load_dwordx2 v[{GQ+2}:{GQ+3}], v{offG}, s[42:43] offset:2048 sc1""")
        if second:
            I(f"""global_load_dword v{GQ+10}, v78, s[40:41] offset:128 sc1
                  global_load_dwordx2 v[{GQ+6}:{GQ+7}], v76, s[42:43] sc1
                  global_load_dwordx2 v[{GQ+8}:{GQ+9}], v76, s[42:43] offset:2048 sc1""")
    I(f"s_cmp_lg_u32 s45, 1\ns_cbranch_scc1 L_uall\nds_write_b64 v{aZ}, v[70:71]")
    A.label("L_uall")
    I(f"ds_read_b128 v[116:119], v{vFL}")
    I("v_min_u32 v116, v116, v117\nv_min3_u32 v116, v116, v118, v119\nv_cmp_eq_u32 vcc, 0, v116\ns_cbranch_vccnz L_uall")
    if cfg.gmode == "b":
        I(f"""s_cmp_lg_u32 s45, 0
             s_cbranch_scc1 L_hib
             s_mov_b64 exec, 15
             v_lshl_add_u32 v72, v0, 2, v79
             ds_read_b32 v214, v72 offset:48
             s_lshl_b32 s4, s44, 7
             s_add_u32 s4, s4, {WS_G}
             v_lshl_add_u32 v217, v0, 3, s4
             s_waitcnt lgkmcnt(0)""")
        A.lg = []
        I("global_store_dwordx2 v217, v[214:215], s[42:43] sc1\ns_mov_b64 exec, 1\nglobal_store_dword v218, v219, s[42:43] sc1", track=False)
        I("s_mov_b64 exec, -1")
        A.label("L_hib")
    else: hello("b")
    I(f"""ds_read_b128 v[80:83], v{aXio}
         ds_read_b128 v[84:87], v{aXio} offset:{USTR}
         s_lshr_b32 s4, s45, 1
         s_sub_u32 s4, 5, s4
         s_sub_u32 s4, s4, s9
         s_mul_i32 s23, s46, {USTR}
         s_lshl_b32 s8, s4, 9
         s_add_u32 s23, s23, s8
         v_add_u32 v72, s23, v{aXio}
         ds_read_b128 v[88:91], v72
         s_mul_i32 s23, s46, {WSTR}
         s_mul_i32 s8, s4, 544
         s_add_u32 s23, s23, s8
         v_add_u32 v73, s23, v{aWW}
         v_add_u32 v75, s23, v{aWW3}
         s_mov_b32 s33, 0""")
    units = [(0, (aWW, aWW3), 0, a) for a in range(4)] + [(1, (aWW, aWW3), WSTR, a) for a in range(4)] + [(2, (73, 75), 0, a) for a in range(2)]
    for u, (n, ad, off, a) in enumerate(units):
        I(f"v_mfma_f32_16x16x32_bf16 v[{140+4*u}:{143+4*u}], v[{BND+4*a}:{BND+4*a+3}], v[{80+4*n}:{83+4*n}], 0")
    gather()
    I(f"global_load_dword v139, v{vHL}, s[42:43] sc1")
    I("s_mov_b32 s27, s45")
    if cfg.prio and cfg.wout_hi: I("s_setprio 1")
    for u, (n, ad, off, a) in enumerate(units):
        r = 140 + 4 * u
        I(f"v_cvt_pk_bf16_f32 v{r}, v{r}, v{r+1}\nv_cvt_pk_bf16_f32 v{r+1}, v{r+2}, v{r+3}")
        I(f"ds_write_b64 v{ad[a == 1]}, v[{r}:{r+1}] offset:{WB + off + (W5O, W3O, W9O, W7O)[a]}")
    I("ds_write_b32 v79, v77 offset:32")
    if cfg.prio: I(f"s_setprio {cfg.sprio}")
    stamp()
    if cfg.nofinal: I("s_endpgm")
    I(f"""; send addresses: rows 2*lane.. of tile w -> 16-row units, gathered by workgroup 16*(w&1) + 8*h + (lane>>3)
         v_lshrrev_b32 v116, 3, v0
         v_and_b32 v117, 7, v0
         v_lshlrev_b32 v117, 3, v117
         v_lshl_add_u32 v116, v116, 14, v117
         s_lshl_b32 s4, s46, 18
         s_lshr_b32 s8, s45, 1
         s_lshl_b32 s8, s8, 19
         s_add_u32 s4, s4, s8
         s_lshr_b32 s8, s5, 1
         s_lshl_b32 s8, s8, 10
         s_add_u32 s4, s4, s8
         s_and_b32 s8, s5, 1
         s_lshl_b32 s8, s8, 6
         s_add_u32 s4, s4, s8
         s_add_u32 s4, s4, s49
         v_add_u32 v105, s4, v116
         v_add_u32 v106, 0x20000, v105
         s_lshl_b32 s4, s48, 10
         s_lshl_b32 s8, s45, 7
         s_add_u32 s4, s4, s8
         s_lshl_b32 s8, s5, 2
         s_add_u32 s4, s4, s8
         s_add_u32 s4, s4, {WS_OF}
         v_mov_b32 v107, s4
         s_lshl_b32 s4, s48, 10
         s_lshl_b32 s8, s45, 8
         s_add_u32 s4, s4, s8
         s_lshr_b32 s8, s5, 4
         s_lshl_b32 s8, s8, 7
         s_add_u32 s4, s4, s8
         s_add_u32 s4, s4, {WS_OF}
         v_and_b32 v116, 31, v0
         v_lshl_add_u32 v108, v116, 2, s4
         v_lshrrev_b32 v116, 4, v0
         v_mul_u32_u24 v116, 272, v116
         v_and_b32 v117, 0xf0, v{vL16}
         v_add3_u32 v110, v116, v117, s22
         v_and_b32 v116, 7, v0
         v_mul_u32_u24 v117, 272, v116
         v_lshrrev_b32 v118, 3, v0
         v_lshl_add_u32 v117, v118, 2, v117
         v_add_u32 v111, s22, v117
         v_add_u32 v121, 0x2000, v213
         s_mov_b32 s25, 0
         s_waitcnt vmcnt(0)""")
    A.vm = []
    A.label("L_mode")
    I(f"""v_cmp_ne_u32 vcc, v139, v219
         s_cbranch_vccz L_mode1
         v_sub_u32 v116, v139, v215
         v_bfe_u32 v117, v116, 1, 4
         v_and_b32 v116, 0xffffffc1, v116
         v_cmp_ne_u32 s[34:35], s54, v117
         v_cmp_eq_u32 vcc, 0, v116
         s_and_b64 vcc, vcc, s[34:35]
         s_cbranch_vccnz L_spread
         s_add_u32 s33, s33, 1
         s_cmp_gt_u32 s33, 0x40000
         s_cbranch_scc1 L_spread
         s_sleep 2
         global_load_dword v139, v{vHL}, s[42:43] sc1
         s_waitcnt vmcnt(0)
         s_branch L_mode""")
    A.vm = []
    A.label("L_mode1")
    if not cfg.force_slow: I("s_mov_b32 s25, 1\ns_branch L_fin_loop")
    A.label("L_spread")
    I(f"""v_add_u32 v116, {WS_CL - WS_HELLO}, v218
         v_add_u32 v117, {WS_CL - WS_HELLO}, v{vHL}
         s_cmp_lg_u32 s45, 0
         s_cbranch_scc1 L_clean
         buffer_wbl2 sc1
         s_waitcnt vmcnt(0)
         s_mov_b64 exec, 1
         global_store_dword v116, v215, s[42:43] sc1
         s_mov_b64 exec, -1""")
    A.label("L_clean")
    I(f"""global_load_dword v118, v117, s[42:43] sc1
         s_add_u32 s33, s33, 1
         s_cmp_gt_u32 s33, 0x80000
         s_cbranch_scc1 L_fin_loop
         s_waitcnt vmcnt(0)
         v_cmp_ne_u32 vcc, v118, v215
         s_cbranch_vccnz L_clean""")
    A.vm = []
    A.label("L_fin_loop")
    I(f"""v_cmp_ne_u32 s[34:35], v{GQ+1}, v{GQ+4}
         v_cmp_ne_u32 s[36:37], v{GQ+3}, v{GQ+4}
         v_cmp_eq_u32 vcc, 0, v{GQ+4}
         s_or_b64 s[34:35], s[34:35], s[36:37]
         s_or_b64 vcc, vcc, s[34:35]
         s_cbranch_vccz L_gok
         s_add_u32 s33, s33, 1
         s_cmp_gt_u32 s33, 0x40000
         s_cbranch_scc1 L_gok
         s_sleep {cfg.gsleep}""")
    gather(False)
    I("s_waitcnt vmcnt(0)\ns_branch L_fin_loop")
    A.label("L_gok")
    A.vm = []
    if cfg.stamps:
        I("s_cmp_ge_u32 s27, 4\ns_cbranch_scc1 L_gok2"); stamp(); A.label("L_gok2")
    gq = GQ
    for i in range(4):
        I(f"v_and_b32 v{96+i}, 0xffff0000, v{gq+2*(i>>1)}" if i & 1 else f"v_lshlrev_b32 v{96+i}, 16, v{gq+2*(i>>1)}")
    for i in range(4): I(f"v_sub_f32 v{100+i}, 1.0, v{96+i}")
    I("v_cvt_pk_bf16_f32 v101, v100, v101\nv_cvt_pk_bf16_f32 v103, v102, v103")
    I("v_lshlrev_b32 v100, 16, v101\nv_and_b32 v101, 0xffff0000, v101\nv_lshlrev_b32 v102, 16, v103\nv_and_b32 v103, 0xffff0000, v103")
    I(f"""v_add_u32 v104, 0x20000, v{offOut}
         s_lshl_b32 s4, s27, 4
         s_add_u32 s4, s4, {PRG}
         v_mov_b32 v122, s4
         s_min_u32 s4, s4, {PRG + 16*cfg.ptile}
         v_mov_b32 v123, s4
         s_branch L_prog1""")
    A.label("L_prog")
    I(f"s_sleep {cfg.psleep}")
    A.label("L_prog1")
    I("""ds_read_b128 v[116:119], v123
         v_min_u32 v116, v116, v117
         v_min3_u32 v116, v116, v118, v119
         v_cmp_eq_u32 vcc, 0, v116
         s_cbranch_vccnz L_prog""")
    A.label("L_prog2")
    I("ds_read_b128 v[116:119], v122")
    for h in range(2):
        for n in range(4): I(f"ds_read_b64 v[{80+4*n+2*h}:{81+4*n+2*h}], v{aRr} offset:{8192*n + 512*h}")
    I("v_min_u32 v116, v116, v117\nv_min3_u32 v116, v116, v118, v119\nv_cmp_eq_u32 vcc, 0, v116\ns_cbranch_vccnz L_prog2")
    I("s_cmp_eq_u32 s25, 1\ns_cbranch_scc1 L_send")
    sn = A.snapshot()
    def mix(i):
        for ch in range(2): I(f"v_mul_f32 v{80+4*ch+i}, v{96+i}, v{80+4*ch+i}")
        for ch in range(2): I(f"v_fmac_f32 v{80+4*ch+i}, v{100+i}, v{88+4*ch+i}")
        if i == 0 and cfg.stamps: I(f"{'s_memtime' if cfg.cycles else 's_memrealtime'} s[94:95]", track=False)
        I(f"v_cvt_pk_bf16_f32 v{112+i}, v{80+i}, v{84+i}")
    for i in range(4):
        mix(i)
        I(f"global_store_dword v{(offOut, 104)[i >> 1]}, v{112+i}, s[62:63] offset:{1024*(i & 1)} sc0 sc1")
    I("s_branch L_next")
    A.label("L_send", sn)
    for i in range(4):
        mix(i)
        if i & 1: I(f"global_store_dwordx2 v{105 + (i >> 1)}, v[{111+i}:{112+i}], s[62:63]")
    I("""s_mov_b64 exec, 1
         s_waitcnt vmcnt(0)
         global_store_dword v107, v219, s[42:43]
         s_mov_b64 exec, -1""")
    A.vm = []
    A.label("L_next")
    for i in range(5): I(f"v_mov_b32 v{gq+i}, v{gq+6+i}")
    I(f"""v_mov_b32 v{offG}, v76
         v_add_u32 v78, 128, v78
         v_add_u32 v{aRr}, 4096, v{aRr}
         v_add_u32 v{offOut}, 0x100000, v{offOut}
         v_add_u32 v105, 0x100000, v105
         v_add_u32 v106, 0x100000, v106
         v_add_u32 v107, 512, v107
         s_add_u32 s27, s27, 4
         s_cmp_lt_u32 s27, 8""")
    if cfg.stamps:
        I("s_cbranch_scc0 L_two")
        if nst[0] < 15: I(f"s_waitcnt lgkmcnt(0)\ns_mov_b32 s{64+2*nst[0]}, s94"); nst[0] += 1
        stamp()
        I("s_branch L_fin_loop")
        A.label("L_two")
        if nst[0] < 15: I(f"s_waitcnt lgkmcnt(0)\ns_mov_b32 s{64+2*nst[0]}, s94"); nst[0] += 1
        stamp()
    else: I("s_cbranch_scc1 L_fin_loop")
    I("s_cmp_eq_u32 s25, 0\ns_cbranch_scc1 L_fin_out")
    A.label("L_recv")
    I(f"""global_load_dword v116, v108, s[42:43] sc1
         s_add_u32 s33, s33, 1
         s_cmp_gt_u32 s33, 0x100000
         s_cbranch_scc1 L_fin_out
         v_cmp_ne_u32 vcc, v116, v219
         s_cbranch_vccnz L_recv""")
    stamp()
    I(f"""global_load_dwordx4 v[80:83], v213, s[62:63] sc1
         global_load_dwordx4 v[84:87], v121, s[62:63] sc1
         ds_write_b128 v110, v[80:83]
         ds_write_b128 v110, v[84:87] offset:1088""")
    for m in range(2):
        for i in (0, 2): I(f"ds_read2_b32 v[{88+4*m+i}:{89+4*m+i}], v111 offset0:{16*i + 8*m} offset1:{16*i + 16 + 8*m}")
    I("global_store_dwordx4 v213, v[88:91], s[62:63]\nglobal_store_dwordx4 v121, v[92:95], s[62:63]")
    A.label("L_fin_out")
    if cfg.stamps:
        stamp(); I("s_waitcnt vmcnt(0)"); stamp()
    stamp_out()
    A.label("L_end")
    I("s_endpgm")
    tc, ti = tables()
    A.raw(".p2align 7\nL_tabc:")
    for i in range(0, len(tc), 8): A.raw(".long " + ", ".join("0x%x" % x for x in tc[i:i + 8]))
    A.raw("L_tabi:")
    for i in range(0, len(ti), 8): A.raw(".long " + ", ".join("0x%x" % x for x in ti[i:i + 8]))
    A.raw("L_fin:")
    A.raw(f""".section .rodata,"a"
.p2align 6
.amdhsa_kernel {KN}_kernel
  .amdhsa_next_free_vgpr 256
  .amdhsa_next_free_sgpr 102
  .amdhsa_accum_offset 256
  .amdhsa_group_segment_fixed_size 0
  .amdhsa_kernarg_size 144
  .amdhsa_user_sgpr_count 2
  .amdhsa_user_sgpr_kernarg_segment_ptr 1
  .amdhsa_system_sgpr_workgroup_id_x 1
.end_amdhsa_kernel""")
    sys.stderr.write(f"instructions {A.nins}, nops {A.nops}, lds {LDS_BYTES}\n")
    if cfg.align:
        A.lines, wid, nop = align8(A.text().split("\n"))
        sys.stderr.write(f"alignment: {wid} widened, {nop} nops\n")
    return A.text()

if __name__ == "__main__":
    out = sys.argv[1]
    for kv in sys.argv[2:]:
        k, v = kv.split("="); setattr(Cfg, k, eval(v))
    open(out, "w").write(gen())
```

```python
import sys
from asmlib import Asm, merge, align8
KN = "gated_mix__ssm_conv_s4d__ssm_conv_s4d__prompt"

class Cfg:
    stamps = False
    cycles = False
    padto = 1500
    probe = (0, 0)
    force_slow = False
    PF = 3
    fine = False
    align = True
    red_at = 50
    tile_at = 34
    pub_at = 100
    gate_at = 150
    gate_sp = 2
    gload_at = 60
    gather_at = 0
    wlow = True
    gout_at = 0
    gsleep = 8
    nofinal = False
    touch_at = 0
    touch2_at = 110
    lag01 = 5
    sprio = 1
    wout_hi = True
    lat = 5
    psleep = 4
    ptile = 5
    kdone = 5
    uchk = 3
    wout_after = -1
    rlag = 6
    horizon = 1000
    poll_at = 65
    fetch_at = 35
    prio = True

ROW = 272
SCRW = 57 * ROW
SCRS = 4 * SCRW
MOFS = 48000
WB = 0; WSTR = 11112
W5O, W3O, W9O, W7O = 0, 3440, 6728, 8920
RB = WB + 2 * WSTR
UB = 8 * SCRW; USTR = 4608
KB = UB + 2 * USTR; KSTR = 6656
RDS = 1344; R4O = 5376; R8O = 5888
FLAG = KB + 4 * KSTR
PRG = FLAG + 64
LDS_BYTES = PRG + 144
P0 = 540
WS_CL, WS_HL = 0x7000, 0x5000
WS_LF, WS_HELLO, WS_G = 0x4000, 0x6000, 0x8000

def drow_hi(rho):
    q, hh, i = rho >> 3, (rho >> 2) & 1, rho & 3
    if q == 0: return 4 * hh + i
    if q == 1: return 4 * hh + 4 + i
    if q == 2: return 256 + 4 * hh + 2 * i
    return [[520, 516, 1032, 1544], [776, 772, 1288, 1800]][hh][i]
hslot = lambda rho: rho - 4 * (rho >= 8) - (rho >= 15) - 2 * (rho >= 20)
HSLOT = {drow_hi(rho): hslot(rho) for rho in range(32) if rho not in (11, 15)}
assert len(HSLOT) == 25 and sorted(HSLOT.values()) == list(range(25))
HTREE = [(1, 0, 1), (2, 0, 2), (3, 2, 1), (4, 0, 4), (5, 4, 1), (6, 4, 2), (7, 6, 1), (8, 0, 8), (9, 8, 1), (10, 8, 2),
         (256, 0, 256), (258, 2, 256), (260, 4, 256), (262, 6, 256), (264, 8, 256), (266, 10, 256),
         (516, 4, 512), (520, 8, 512), (772, 516, 256), (776, 520, 256), (1032, 8, 1024), (1288, 264, 1024), (1544, 520, 1024), (1800, 776, 1024)]

def tables():
    comp, io = [], []
    for l in range(64):
        b, g = l & 15, l >> 4
        def frag(pred, val):
            return [(val if pred(8 * g + 2 * d) else 0) | (val if pred(8 * g + 2 * d + 1) else 0) << 16 for d in range(4)]
        comp.append(frag(lambda e: e in (b + 12, b + 13), 0xffff))
        t = []
        for tau, w in ((8, 2), (12, 1), (8, 4), (8, 3)):
            t += frag(lambda e: abs(tau + b - e) <= w, 0x3f80)
        io.append(t)
    def lay(tb):
        n = len(tb[0]) // 4
        return [tb[l][4 * k + j] & 0xffffffff for k in range(n) for l in range(64) for j in range(4)]
    return lay(comp), lay(io)

def gen(cfg=Cfg):
    A = Asm(); I = A.I
    def run(stream):
        for t in stream:
            if callable(t): t()
            else: I(t)
    head = open("cdna_kernels/" + KN + ".s.ref").read().split("; Override launch")[0]
    A.raw(head.rstrip())
    A.raw(f"; @launch grid=(256,1,1) block=(512,1,1) lds={LDS_BYTES}")
    A.raw('.amdgcn_target "amdgcn-amd-amdhsa--gfx950"\n.text')
    A.raw(f".globl {KN}_kernel\n.p2align 8\n.type {KN}_kernel,@function\n{KN}_kernel:")
    nst = [0]
    def stamp():
        if cfg.stamps:
            if nst[0] < 15: I(f"{'s_memtime' if cfg.cycles else 's_memrealtime'} s[{64+2*nst[0]}:{65+2*nst[0]}]", track=False); nst[0] += 1
    def stamp_out():
        if cfg.stamps == 3:
            lab = f"L_pad{A.nins}"
            pw, pk = cfg.probe
            I(f"s_waitcnt vmcnt(0) lgkmcnt(0)\ns_sub_u32 s98, s{64+2*pk}, s64\ns_mul_i32 s98, s98, 10\ns_lshl_b32 s97, s2, 3\ns_add_u32 s97, s97, s3")
            I(f"s_cmp_eq_u32 s97, {77*8+pw}\ns_cselect_b32 s98, s98, 0\ns_add_u32 s98, s98, {cfg.padto}")
            A.label(lab)
            I("s_memrealtime s[96:97]", track=False)
            I(f"s_waitcnt lgkmcnt(0)\ns_sub_u32 s96, s96, s64\ns_cmp_lt_u32 s96, s98\ns_cbranch_scc1 {lab}")
        elif cfg.stamps:
            n = nst[0]
            I("s_waitcnt lgkmcnt(0)\ns_lshl_b32 s97, s2, 3\ns_add_u32 s97, s97, s3\ns_lshl_b32 s97, s97, 6\ns_add_u32 s97, s97, 0x100000\nv_mov_b32 v250, s97")
            I("s_mov_b64 exec, 1")
            for i in range(16):
                I(f"v_mov_b32 v251, {f's{64+2*i}' if i < n else 's50' if i == 15 else 0}\nglobal_store_dword v250, v251, s[42:43] offset:{4*i}")

    vLR, vAI, vCR, vCI = 1, 2, 3, 4
    vDS, vCRd, vST0, vST1, vPL, vHL, vU0, vU1, vL16, vGR, vFL, vNR = range(176, 188)
    GX, GW, TR = 192, 200, 204
    vDT = 33
    stamp()
    I("s_cmp_ge_u32 s2, 0x100\ns_cbranch_scc1 L_end\ns_getpc_b64 s[6:7]")
    A.raw("L_pc:")
    I(f"""v_lshrrev_b32 v1, 6, v0
         s_andn2_b32 s4, s2, 7
         v_add_lshl_u32 v2, v1, s4, 7
         v_readfirstlane_b32 s3, v1
         v_min_u32 v2, L_fin-L_pc-4, v2
         global_load_dword v255, v2, s[6:7]
         s_bfe_u32 s4, s3, 0x10001
         s_mul_i32 s4, s4, 56
         s_add_u32 s52, s0, s4
         s_addc_u32 s53, s1, 0
         s_load_dwordx8 s[8:15], s[52:53], 8
         s_load_dwordx4 s[16:19], s[52:53], 40
         s_load_dwordx2 s[56:57], s[0:1], 0
         s_load_dwordx4 s[60:63], s[0:1], 112
         s_load_dwordx4 s[40:43], s[0:1], 128
         s_memrealtime s[50:51]
         v_and_b32 v0, 63, v0
         v_mov_b32 v28, 0
         v_mov_b32 v29, 0
         v_mov_b32 v30, 0
         v_mov_b32 v31, 0
         v_mov_b32 v{vFL}, {FLAG}
         s_and_b32 s48, s2, 7
         s_lshr_b32 s5, s2, 3
         s_lshl_b32 s44, s48, 5
         s_add_u32 s44, s44, s5
         s_and_b32 s45, s3, 3
         s_and_b32 s46, s3, 1
         s_lshl_b32 s4, s44, 1
         s_add_u32 s4, s4, s46
         s_lshl_b32 s4, s4, 8
         v_lshl_add_u32 v5, v0, 2, s4
         s_lshl_b32 s47, s44, 2
         s_mul_i32 s22, s3, {SCRW}
         s_mov_b32 m0, s22
         v_lshlrev_b32 v{vL16}, 4, v0
         v_lshrrev_b32 v6, 3, v0
         v_and_b32 v7, 0x70, v{vL16}
         v_lshl_add_u32 v6, v6, 10, v7
         v_and_b32 v7, 32, v0
         v_xor_b32 v6, v7, v6
         s_lshl_b32 s49, s48, 7
         s_lshl_b32 s4, s5, 16
         s_add_u32 s4, s4, s49
         s_lshl_b32 s23, s45, 14
         s_add_u32 s4, s4, s23
         v_add_u32 v{vDS}, s4, v6
         v_xor_b32 v{vGR}, 64, v{vDS}
         s_lshl_b32 s4, s46, 1
         s_add_u32 s4, s4, s47
         v_mov_b32 v7, s4
         v_mov_b32 v{vDT}, 0
         v_mov_b32 v61, 0
         s_mov_b32 s58, 0x200000
         s_mov_b32 s59, 0x20000
         s_mov_b32 s23, {8*1024 - 1024}""")
    A.wait(lg=0)
    if cfg.fine and cfg.fine < 6: stamp()
    I(f"""global_load_dword v{vLR}, v5, s[8:9]
         global_load_short_d16_hi v{vDT}, v7, s[16:17]
         global_load_dword v{vAI}, v5, s[10:11]
         s_cmp_ge_u32 s3, 4
         s_cbranch_scc0 L_par""")
    snap_c = A.snapshot(); nst_c = nst[0]
    I(f"""buffer_load_dwordx4 v[{TR}:{TR+3}], v{vDS}, s[56:59], 0 offen
         buffer_load_dwordx4 v[{TR+4}:{TR+7}], v{vGR}, s[56:59], s23 offen offset:1024
         s_lshl_b32 s4, s48, 5
         v_mov_b32 v188, s4
         s_or_b32 s4, s5, s45
         s_cbranch_scc1 L_io2
         s_or_b32 s50, s50, 1
         v_mov_b32 v190, s50
         s_mov_b64 exec, 1""")
    I("global_store_dword v188, v190, s[40:41] sc1", track=False)
    I("s_mov_b64 exec, -1")
    A.label("L_io2")
    I(f"""global_load_dword v{vCR}, v5, s[12:13]
         global_load_dword v{vCI}, v5, s[14:15]""")
    if cfg.fine == 2: stamp()
    I("s_branch L_io")
    snap_io = A.snapshot(); nst_io = nst[0]
    A.label("L_par", snap_c); nst[0] = nst_c
    if cfg.fine == 2: stamp()

    def consts():
        I("""s_mov_b32 s24, 0x3fb8aa3b
             s_mov_b32 s28, 0
             s_mov_b32 s29, 0x80000000
             v_mov_b32 v32, 0x3c00""")
    def dt_scale():
        I(f"""v_mul_f32 v{vDT}, s24, v{vDT}
             v_exp_f32 v{vDT}, v{vDT}
             v_cvt_pk_bf16_f32 v{vDT}, v{vDT}, v{vDT}
             v_lshlrev_b32 v{vDT}, 16, v{vDT}""")
    red = [f"v_and_b32 v34, 0x7fff7fff, v{vCR}", f"v_and_b32 v35, 0x7fff7fff, v{vCI}", "v_pk_max_u16 v34, v34, v35",
           "v_lshrrev_b32 v35, 16, v34", "v_and_b32 v34, 0xffff, v34", "v_max_u32 v34, v34, v35"]
    red += [f"v_max_u32_dpp v34, v34, v34 {m}" for m in
            ("row_shr:1 row_mask:0xf bank_mask:0xf", "row_shr:2 row_mask:0xf bank_mask:0xf", "row_shr:4 row_mask:0xf bank_mask:0xf",
             "row_shr:8 row_mask:0xf bank_mask:0xf", "row_bcast:15 row_mask:0xa bank_mask:0xf", "row_bcast:31 row_mask:0xc bank_mask:0xf")]
    red += ["v_readlane_b32 s34, v34, 63",
            "s_lshr_b32 s34, s34, 7\ns_max_u32 s34, s34, 11\ns_sub_u32 s36, 264, s34\ns_lshl_b32 s36, s36, 23\ns_mov_b32 s37, s36\n"
            "s_sub_u32 s35, s34, 9\ns_lshl_b32 s35, s35, 23"]
    ZA, ZB, TP = 36, 38, 40
    AB = 42
    E1, E2 = 46, 48
    Wr = {p: 50 + i for i, p in enumerate((1, 2, 4, 8, 16, 32, 64, 128, 256, 512, 1024))}
    Lr = {r: 144 + r for r in range(1, 16)}
    for p in (8, 16, 32, 64): Lr[p // 8] = Wr[p]
    TMP = [160, 161, 162, 163]
    Hk = {h: 164 + i for i, h in enumerate((0, 2, 4, 6, 8, 10, 264, 516, 520, 776))}
    def cm(dst, a, b, conj=False):
        if conj:
            return [f"v_pk_mul_f16 v{dst}, v{a}, v{b} op_sel_hi:[0,1] neg_hi:[0,1]",
                    f"v_pk_fma_f16 v{dst}, v{a}, v{b}, v{dst} op_sel:[1,1,0] op_sel_hi:[1,0,1]"]
        return [f"v_pk_mul_f16 v{dst}, v{a}, v{b} op_sel_hi:[0,1]",
                f"v_pk_fma_f16 v{dst}, v{a}, v{b}, v{dst} op_sel:[1,1,0] op_sel_hi:[1,0,1] neg_lo:[1,0,0]"]
    def sq(z):
        return [f"v_pk_mul_f32 v[{TP}:{TP+1}], v[{z}:{z+1}], v[{z}:{z+1}] op_sel_hi:[0,1]",
                f"v_pk_fma_f32 v[{z}:{z+1}], v[{z}:{z+1}], v[{z}:{z+1}], v[{TP}:{TP+1}] op_sel:[1,1,0] op_sel_hi:[1,0,1] neg_lo:[1,0,0]"]
    def half(h, ofs):
        up = (lambda d, s: f"v_and_b32 v{d}, 0xffff0000, v{s}") if h else (lambda d, s: f"v_lshlrev_b32 v{d}, 16, v{s}")
        S = [up(AB, vLR), f"v_mul_f32 v{AB}, s24, v{AB}", f"v_exp_f32 v{AB}, v{AB}", up(AB + 1, vAI),
             f"v_cvt_pk_bf16_f32 v{AB}, v{AB}, v{AB}", f"v_mul_f32 v{AB+1}, v{vDT}, v{AB+1}", f"v_lshlrev_b32 v{AB}, 16, v{AB}",
             f"v_mul_f32 v{AB+1}, 0.15915494, v{AB+1}", f"v_mul_f32_e64 v{AB}, -v{vDT}, v{AB}", f"v_fract_f32 v{TP}, v{AB+1}",
             f"v_mul_f32 v{AB}, s24, v{AB}", f"v_cos_f32 v{ZA}, v{TP}", f"v_exp_f32 v{E1}, v{AB}", f"v_sin_f32 v{ZA+1}, v{TP}",
             f"v_pk_mul_f32 v[{ZA}:{ZA+1}], v[{ZA}:{ZA+1}], v[{E1}:{E1+1}] op_sel_hi:[1,0]"]
        cv = lambda p, z: f"v_cvt_pk_f16_f32 v{Wr[p]}, v{z}, v{z+1}"
        wl = lambda r, v: f"ds_write_addtid_b32 v{v} offset:{ofs + r*ROW}"
        wh = lambda hh, v: f"ds_write_addtid_b32 v{v} offset:{ofs + (32+HSLOT[hh])*ROW}"
        S.append(cv(1, ZA))
        for p in (2, 4, 8, 16, 32, 64, 128, 256, 512, 1024):
            S += sq(ZA) + [cv(p, ZA)]
            if 8 <= p <= 128: S.append(wl(p // 8, Wr[p]))
        if h == 0 and cfg.prio == 1: S.append("s_setprio 0")
        k = 0
        for r in range(3, 32):
            top = 1 << (r.bit_length() - 1)
            if r == top: continue
            d = Lr[r] if r < 16 else TMP[k % 4]; k += 1
            S += cm(d, Lr[r - top], Wr[8 * top]) + [wl(r, d)]
        S += [up(TP, vCR), up(TP + 1, vCI), f"v_pk_mul_f32 v[{TP}:{TP+1}], v[{TP}:{TP+1}], s[36:37]",
              f"v_cvt_pk_f16_f32 v{Hk[0]}, v{TP}, -v{TP+1}", wh(0, Hk[0])]
        for hh, a, b in HTREE:
            d = Hk.get(hh) or TMP[k % 4]; k += 1
            S += cm(d, Hk[a], Wr[b], True) + [wh(hh, d)]
        return S

    T = 8
    aL, aH, aKW, aR4W, aR8W, aMD, aM4, aM8, aX, aW2, aW3, aR = range(T, T + 12)
    mSp = T + 12
    aW2b, aW3b = 5, 6
    FA, FB, KA = 64, 96, 128
    if cfg.prio == 1: I("s_setprio 2")
    I(f"global_load_dword v{vCR}, v5, s[12:13]\nglobal_load_dword v{vCI}, v5, s[14:15]\nglobal_load_short_d16_hi v61, v7, s[18:19]")
    if cfg.fine == 2: stamp()
    I(f"""s_add_u32 s6, s6, L_tabc-L_pc
         s_addc_u32 s7, s7, 0
         s_mul_i32 s23, s3, {KSTR}
         s_add_u32 s23, s23, {KB}
         v_add_u32 v7, s23, v{vL16}
         v_lshl_add_u32 v6, v0, 3, s23""")
    for k in range(6): I(f"ds_write_b128 v7, v[28:31] offset:{1024*k}")
    I("ds_write_b64 v6, v[28:29] offset:6144")
    consts()
    I(f"""ds_write_addtid_b32 v32 offset:0
         s_mul_i32 s30, s46, {USTR}
         s_mul_i32 s31, s46, {WSTR}
         s_lshl_b32 s32, s3, 13
         s_lshl_b32 s4, s3, 2
         s_add_u32 s4, s4, {PRG}
         v_mov_b32 v240, s4
         v_min_u32 v241, 0x80, v{vL16}
         v_add_u32 v241, s4, v241
         ds_write_b32 v241, v28
""")
    I(f"""v_and_b32 v36, 15, v0
         v_lshrrev_b32 v37, 4, v0
         v_and_b32 v38, 31, v0
         v_lshrrev_b32 v39, 5, v0
         v_and_b32 v40, 3, v0
         v_bfe_u32 v41, v0, 2, 2
         v_lshlrev_b32 v42, 4, v37
         v_mov_b32 v43, {ROW}
         v_lshl_add_u32 v44, v39, 4, s22
         v_mad_u32_u24 v{aL}, v38, v43, v44
         v_add_u32 v45, 32, v38
         v_cmp_le_u32 vcc, 8, v38
         v_cmp_le_u32 s[8:9], 15, v38
         v_cmp_le_u32 s[10:11], 20, v38
         v_cndmask_b32_e64 v46, 0, 4, vcc
         v_cndmask_b32_e64 v47, 0, 1, s[8:9]
         v_cndmask_b32_e64 v48, 0, 2, s[10:11]
         v_add3_u32 v46, v46, v47, v48
         v_sub_u32 v45, v45, v46
         v_mad_u32_u24 v{aH}, v45, v43, v44
         v_lshlrev_b32 v44, 3, v39
         v_lshl_add_u32 v44, v38, 4, v44
         s_add_u32 s4, s23, {2*P0 - 520}
         v_sub_u32 v{aKW}, s4, v44
         v_lshlrev_b32 v44, 2, v0
         s_add_u32 s4, s23, {R4O + 380}
         v_sub_u32 v{aR4W}, s4, v44
         v_lshlrev_b32 v44, 1, v0
         s_add_u32 s4, s23, {R8O + 130}
         v_sub_u32 v{aR8W}, s4, v44
         v_mul_u32_u24 v44, {RDS + 2}, v40
         v_lshlrev_b32 v45, 1, v36
         v_sub_u32 v45, v42, v45
         s_add_u32 s4, s23, {2*(P0 - 16) - 1024}
         v_add3_u32 v{aMD}, v44, v45, s4
         v_lshlrev_b32 v45, 3, v36
         v_sub_u32 v45, v42, v45
         s_add_u32 s4, s23, {R4O + 120}
         v_add_u32 v{aM4}, s4, v45
         v_and_b32 v44, 1, v0
         v_mul_u32_u24 v44, 388, v44
         v_lshlrev_b32 v45, 2, v36
         v_sub_u32 v45, v42, v45
         s_add_u32 s4, s23, {R8O + 64}
         v_add3_u32 v{aM8}, v44, v45, s4
         v_lshl_add_u32 v44, v36, 5, v42
         s_add_u32 s4, s30, {UB}
         v_add_u32 v{aX}, s4, v44
         v_bfe_u32 v44, v0, 1, 2
         v_xor_b32 v44, v44, v37
         v_lshl_add_u32 v44, v36, 2, v44
         s_add_u32 s4, s32, {RB}
         v_lshl_add_u32 v{aR}, v44, 4, s4
         ; transposing reads of the box sums: granule v -> byte 8*(v + (v>>4)); odd rows come from W3 / W7
         v_and_b32 v44, 1, v41
         v_mul_u32_u24 v45, {W3O - W5O}, v44
         s_add_u32 s4, s31, {WB + W5O}
         v_add_u32 v45, s4, v45
         v_lshl_add_u32 v46, v37, 3, v41
         v_add_u32 v46, v46, v40
         v_lshrrev_b32 v47, 4, v46
         v_add_u32 v47, v47, v46
         v_lshl_add_u32 v{aW2}, v47, 3, v45
         v_add_u32 v46, 4, v46
         v_lshrrev_b32 v47, 4, v46
         v_add_u32 v47, v47, v46
         v_lshl_add_u32 v{aW2b}, v47, 3, v45
         v_mul_u32_u24 v45, {W7O - W9O}, v44
         s_add_u32 s4, s31, {WB + W9O}
         v_add_u32 v45, s4, v45
         v_lshl_add_u32 v46, v41, 1, v42
         v_add_u32 v46, v46, v40
         v_lshrrev_b32 v47, 4, v46
         v_add_u32 v47, v47, v46
         v_lshl_add_u32 v{aW3}, v47, 3, v45
         v_add_u32 v46, 8, v46
         v_lshrrev_b32 v47, 4, v46
         v_add_u32 v47, v47, v46
         v_lshl_add_u32 v{aW3b}, v47, 3, v45
         v_mov_b32 v63, s23
         s_lshl_b32 s4, s44, 2
         s_add_u32 s4, s4, s45
         s_lshl_b32 s55, s4, 11
         v_add_u32 v{vGR}, s55, v{vL16}
         s_lshl_b32 s4, s44, 7
         s_lshl_b32 s8, s45, 3
         s_add_u32 s4, s4, s8
         s_add_u32 s4, s4, {WS_G}
         v_mov_b32 v217, s4
         s_lshl_b32 s4, s48, 5
         v_mov_b32 v188, s4
         s_lshl_b32 s4, s5, 14
         s_lshl_b32 s8, s45, 19
         s_add_u32 s4, s4, s8
         s_add_u32 s4, s4, s49
         v_lshl_add_u32 v253, v36, 10, s4""")
    touch = "global_load_dword v254, v253, s[62:63]"
    if cfg.touch_at == 0: I(touch)
    gate = []
    for d in range(4):
        gate.append("\n".join(f"v_dot2_f32_bf16 v{212+rw}, v{GX+4*rw+d}, v{GW+d}, {f'v{212+rw}' if d else 0}" for rw in range(2)))
    gate += [None, "v_permlane32_swap_b32 v212, v213", "v_add_f32 v212, v212, v213"]
    gate += [f"v_add_f32_dpp v212, v212, v212 row_shr:{n} row_mask:0xf bank_mask:0xf bound_ctrl:1" for n in (1, 2, 4, 8)]
    gate += ["v_add_f32_dpp v212, v212, v212 row_bcast:15 row_mask:0xa bank_mask:0xf",
             "v_cvt_pk_bf16_f32 v212, v212, v212\nv_lshlrev_b32 v212, 16, v212\nv_mul_f32 v212, 0xbfb8aa3b, v212\nv_exp_f32 v212, v212",
             "v_add_f32 v212, 1.0, v212\nv_rcp_f32 v212, v212", "v_cvt_pk_bf16_f32 v212, v212, v212",
             "v_readlane_b32 s38, v212, 31\nv_readlane_b32 s39, v212, 63\ns_pack_ll_b32_b16 s38, s38, s39\nv_mov_b32 v214, s38"]
    gate = [t for t in gate if t]
    def gate_out():
        I("v_cmp_eq_u32 vcc, 0, v215\ns_cbranch_vccz L_c4")
        A.label("L_c3")
        I("s_sleep 2")
        I("global_load_dword v215, v188, s[40:41] sc1", track=False)
        I("s_waitcnt vmcnt(0)\nv_cmp_eq_u32 vcc, 0, v215\ns_cbranch_vccnz L_c3")
        A.label("L_c4")
        I("s_mov_b64 exec, 1\nglobal_store_dwordx2 v217, v[214:215], s[42:43] sc1\ns_mov_b64 exec, -1")
    gload = f"""buffer_load_dwordx4 v[{GX}:{GX+3}], v{vGR}, s[56:59], 0 offen
             buffer_load_dwordx4 v[{GX+4}:{GX+7}], v{vGR}, s[56:59], 0 offen offset:1024
             global_load_dwordx4 v[{GW}:{GW+3}], v{vL16}, s[60:61]
             global_load_dword v215, v188, s[40:41] sc1"""
    if cfg.gload_at < 0: I(gload)
    if cfg.fine and cfg.fine < 6: stamp()
    dt_scale()
    S0 = half(0, 0)
    I(S0[0]); stamp()
    S0 = merge(S0[1:], red + [f"v_mul_f32 v62, s35, v{vDT}"], cfg.red_at, 3)
    if cfg.gload_at >= 0: S0.insert(cfg.gload_at, gload)
    if cfg.touch_at > 0: S0.insert(cfg.touch_at, touch)
    S0 = S0[:cfg.gate_at] + merge(S0[cfg.gate_at:], gate, 0, cfg.gate_sp)
    S0.insert(len(S0) - 12, f"global_load_dwordx4 v[{mSp}:{mSp+3}], v{vL16}, s[6:7]")
    rdH = lambda ofs, s_: f"ds_read_b128 v[{FA+4*s_}:{FA+4*s_+3}], v{aH} offset:{ofs+32*s_}"
    rdL = lambda ofs, s_: f"ds_read_b128 v[{FB+4*s_}:{FB+4*s_+3}], v{aL} offset:{ofs+32*s_}"
    lastL = max(i for i, t in enumerate(S0) if isinstance(t, str) and t.endswith(f"offset:{31*ROW}"))
    S0 = S0[:lastL + 1] + merge(S0[lastL + 1:], [rdL(0, s_) for s_ in range(8)], 4, 6)
    run(S0)
    def kmf(first):
        return [f"v_mfma_f32_32x32x16_f16 v[{KA}:{KA+15}], v[{FA+4*s_}:{FA+4*s_+3}], v[{FB+4*s_}:{FB+4*s_+3}], " +
                ("0" if first and s_ == 0 else f"v[{KA}:{KA+15}]") for s_ in range(8)]
    stamp()
    run([rdH(0, s_) for s_ in range(8)])
    A.wait(lg=0)
    I("s_barrier")
    stamp()
    conv_mark = len(A.lines)
    q4 = lambda r: f"v[{r}:{r+3}]"
    XS = [[28, 32, 36, 40, 44, 48, 52, 56], [168, 172, 176, 180, 224, 228, 232, 236]]
    rdX = lambda c, n: f"ds_read_b128 {q4(XS[c & 1][n])}, v{aX} offset:{32*(16*c + 2*n)}"
    def flagwait(name, off, first=True):
        A.label(f"L_{name}chk")
        I("v_min3_u32 v249, v249, v250, v251")
        if first: I("v_min_u32 v249, v248, v249")
        I(f"v_cmp_eq_u32 vcc, 0, v249\ns_cbranch_vccz L_{name}ok")
        sn = A.snapshot()
        I(f"ds_read_b128 v[248:251], v{vFL} offset:{off}\ns_waitcnt lgkmcnt(0)\ns_branch L_{name}chk")
        A.label(f"L_{name}ok", sn)
    for n, t in enumerate(kmf(True)):
        I(t); I(rdH(SCRS, n)); I(rdL(SCRS, n))
    for n, t in enumerate(kmf(False)):
        if n == cfg.uchk: flagwait("u", 0)
        I(t)
        if n == cfg.uchk - 3: I(f"ds_read_b128 v[248:251], v{vFL}")
        if n == cfg.kdone: I("ds_write_b32 v240, v240 offset:128")
        if n == cfg.uchk: gate_out()
        if n >= cfg.uchk:
            k0, k1 = (-(-8 * (n - cfg.uchk) // (8 - cfg.uchk)), -(-8 * (n + 1 - cfg.uchk) // (8 - cfg.uchk)))
            for k in range(k0, k1): I(rdX(0, k))
    for k in range(8): I(rdX(1, k))
    o = lambda i: f"v{KA+i}"
    for i in range(0, 8, 2): I(f"v_pk_mul_f32 v[{KA+i}:{KA+i+1}], v[{KA+i}:{KA+i+1}], v[62:63] op_sel_hi:[1,0]")
    stamp()
    I(f"s_mov_b64 exec, 1\nv_add_f32 {o(0)}, v61, {o(0)}\ns_mov_b64 exec, s[28:29]\nv_mov_b32 {o(5)}, {o(4)}\ns_mov_b64 exec, -1")
    Q = 144
    def wcopy(q, pairs, s_, lagoff):
        (a, b), (c, d) = pairs
        return [f"v_cvt_pk_bf16_f32 v{q}, {a}, {b}\nv_cvt_pk_bf16_f32 v{q+1}, {c}, {d}",
                f"ds_write_b64 v{aKW}, v[{q}:{q+1}] offset:{520 + s_*RDS - (0 if s_ == 3 else 8) - 2*lagoff}"]
    run(wcopy(Q, ((o(3), o(2)), (o(1), o(0))), 3, 0) + wcopy(Q + 2, ((o(4), o(3)), (o(2), o(1))), 0, 0) +
        wcopy(Q + 4, ((o(5), o(4)), (o(3), o(2))), 1, 0) + wcopy(Q + 6, ((o(6), o(5)), (o(4), o(3))), 2, 0))
    I(f"""v_cvt_pk_bf16_f32 v{Q+16}, {o(0)}, 0
          s_mov_b64 exec, 1
          ds_write_b32 v63, v{Q+16} offset:{0*RDS + 2*P0}
          ds_write_b32 v63, v{Q+1} offset:{1*RDS + 2*P0}
          ds_write_b32 v63, v{Q+3} offset:{2*RDS + 2*P0}
          ds_write_b32 v63, v{Q+16} offset:{2*RDS + 2*P0 + 4}
          s_mov_b64 exec, -1""")
    stamp()
    ACC = lambda c: 192 + 4 * c
    WAB = [244, 252, 188]
    reg = {}
    for mu in range(0, 34, 2): reg["M", mu] = 64 + 2 * mu if mu < 32 else 24
    for i in range(3):
        for f in range(2): reg["M4", i, f] = 144 + 8 * i + 4 * f
    for i in range(1, 5): reg["M8", i] = 128 + 4 * (i - 1)
    for c in range(8):
        for n in range(8): reg["X", c, n] = XS[c & 1][n]
    reg["Sp",] = mSp
    near = lambda c: [(c, ("M", 14 - 2 * n), ("X", c, n)) for n in range(8)]
    far = lambda c: [(c, ("M", 30 - 2 * n), ("X", c - 1, n)) for n in range(8)]
    tail = lambda c: ([(c + 2, ("M", 32), ("X", c, 7))] if c < 6 else []) + ([(c + 4, ("Sp",), ("X", c, 7))] if c < 4 else [])
    wk = [0]
    def wtok(*t):
        reg[t] = WAB[wk[0] % 3]; wk[0] += 1
        if t[0] == "W2": return [(c, t, ("M4", t[1] - c + 4, t[2])) for c in range(t[1] + 2, min(t[1] + 5, 8))]
        return [(c, t, ("M8", t[1] - c + 8)) for c in range(t[1] + 4, 8)]
    def zipm(a, b):
        out = []
        for n in range(max(len(a), len(b))): out += a[n:n + 1] + b[n:n + 1]
        return out
    MM = zipm(near(0), near(1)) + zipm(far(1), far(2)) + [tail(0)[0], tail(1)[0]]
    wplan = {3: [("W2", 0, 0), ("W2", 0, 1), ("W2", 1, 0), ("W2", 1, 1)], 4: [("W2", 2, 0), ("W2", 2, 1), ("W3", 0)],
             5: [("W2", 3, 0), ("W2", 3, 1), ("W3", 1)], 6: [("W2", 4, 0), ("W2", 4, 1), ("W3", 2)], 7: [("W2", 5, 0), ("W2", 5, 1), ("W3", 3)]}
    for c in range(2, 8):
        body = zipm(near(c), far(c + 1) if c < 7 else [])
        pairs = [body[k:k + (2 if c < 7 else 1)] for k in range(0, len(body), 2 if c < 7 else 1)]
        ws = [wtok(*t) for t in wplan.get(c, [])]
        if c == 2: MM += pairs[0] + [tail(0)[1], tail(1)[1]]; pairs = pairs[1:]
        for grp in merge(pairs, ws, 1, 2): MM += grp
        MM += tail(c)
    first, lastu, lastacc = {}, {}, {}
    for k, (c, a, b) in enumerate(MM):
        for t in (a, b): first.setdefault(t, k); lastu[t] = k
        lastacc[c] = k
    LAT = cfg.lat
    ops = []
    class Op:
        def __init__(o, text, kind, early=-1, late=10 ** 6, after=()):
            o.text, o.kind, o.early, o.late, o.after, o.done = text, kind, early, late, list(after), None
            ops.append(o)
    def chain(items, after=()):
        prev = list(after); out = []
        for text, kind in items:
            o = Op(text, kind, after=prev); prev = [o]; out.append(o)
        return out
    def load(tok, texts, after=()):
        prevs = [lastu[t] for t in lastu if t != tok and reg[t] == reg[tok] and lastu[t] < first[tok]]
        return [Op(t, "r", early=max(prevs, default=-1), late=first[tok] - LAT, after=after) for t in texts]
    def rd64(r, addr, off): return [f"ds_read_b64 v[{r}:{r+1}], v{addr} offset:{off}", f"ds_read_b64 v[{r+2}:{r+3}], v{addr} offset:{off+8}"]
    def rdtr(r, ad0, ad1, off): return [f"ds_read_b64_tr_b16 v[{r}:{r+1}], v{ad0} offset:{off}", f"ds_read_b64_tr_b16 v[{r+2}:{r+3}], v{ad1} offset:{off}"]
    for mu in range(14, -1, -2): load(("M", mu), rd64(reg["M", mu], aMD, 1024 - 32 * mu))
    v0_, v2_, v4_, v6_ = o(8), o(9), o(10), o(11)
    mul2 = lambda i: (f"v_mul_f32 v{KA+i}, v62, v{KA+i}\nv_mul_f32 v{KA+i+1}, v62, v{KA+i+1}", "v")
    seg1 = (wcopy(Q + 8, ((v4_, v2_), (v0_, v0_)), 3, 256) + wcopy(Q + 10, ((v4_, v4_), (v2_, v0_)), 0, 256) +
            wcopy(Q + 12, ((v4_, v4_), (v4_, v2_)), 1, 256) + wcopy(Q + 14, ((v6_, v4_), (v4_, v4_)), 2, 256))
    p1 = chain([mul2(8), mul2(10), (f"v_cndmask_b32_e64 {v6_}, {v6_}, {v4_}, s[28:29]\nv_cvt_pk_bf16_f32 v{Q+17}, 0, {v4_}", "v")] +
               [(t, "w64" if t.startswith("ds") else "v") for t in seg1])
    for mu in range(30, 14, -2): load(("M", mu), rd64(reg["M", mu], aMD, 1024 - 32 * mu), [p1[-1]])
    one = lambda t: (f"s_mov_b64 exec, s[28:29]\n{t}\ns_mov_b64 exec, -1", "w32")
    hi = chain([one(f"ds_write_b32 v63, v{Q+17} offset:{3*RDS + 56}"), one(f"ds_write_b32 v63, v{Q+10} offset:{3*RDS + 60}"),
                one(f"ds_write_b32 v63, v{Q+10} offset:{0*RDS + 52}"), one(f"ds_write_b32 v63, v{Q+17} offset:{1*RDS + 52}")], [p1[-1]])
    load(("M", 32), rd64(reg["M", 32], aMD, 0), [hi[-1]])
    p2 = chain([mul2(12), mul2(14), (f"v_cvt_pk_bf16_f32 v{Q+18}, {o(12)}, {o(13)}\nv_cvt_pk_bf16_f32 v{Q+19}, {o(14)}, {o(15)}", "v")])
    sp = chain([(f"v_readlane_b32 s38, v{Q+18}, 63\ns_pack_ll_b32_b16 s38, s38, s38", "v"),
                (f"v_and_b32 v{mSp}, s38, v{mSp}\nv_and_b32 v{mSp+1}, s38, v{mSp+1}", "v"),
                (f"v_and_b32 v{mSp+2}, s38, v{mSp+2}\nv_and_b32 v{mSp+3}, s38, v{mSp+3}", "v")], [p2[-1]])
    sp[-1].late = first["Sp",] - 2
    r4 = chain([(f"ds_write_b32 v{aR4W}, v{Q+18}", "w32")], [p2[-1]])
    r8 = chain([(f"ds_write_b16 v{aR8W}, v{Q+19} offset:128", "w32"), (f"ds_write_b16_d16_hi v{aR8W}, v{Q+19} offset:0", "w32"),
                (f"ds_write_b16 v{aR8W}, v{Q+19} offset:{128+388}", "w32"), (f"ds_write_b16_d16_hi v{aR8W}, v{Q+19} offset:388", "w32")], [p2[-1]])
    for i in (2, 1, 0):
        for f in (0, 1): load(("M4", i, f), rd64(reg["M4", i, f], aM4, 128 * i + 64 * f), [r4[-1], r8[-1], hi[-1], sp[0]])
    for i in (4, 3, 2, 1): load(("M8", i), rd64(reg["M8", i], aM8, 64 * (i - 1)), [r8[-1], p1[-1]])
    for c in range(2, 8):
        for n in range(8): load(("X", c, n), [rdX(c, n)])
    fr = Op(f"ds_read_b128 v[248:251], v{vFL} offset:32", "r")
    fc = Op(lambda: flagwait("w", 32), "v", after=[fr]); fr.gap = 4
    for t in [t for t in first if t[0] in ("W2", "W3")]:
        load(t, rdtr(reg[t], aW2, aW2b, 544 * t[1] + 272 * t[2]) if t[0] == "W2" else rdtr(reg[t], aW3, aW3b, 544 * t[1]), [fc])
    def flagw(c):
        I(f"ds_write_b32 v240, v240 offset:{16*c}")
        if cfg.stamps and (c in (0, 1, 3, 7) or cfg.fine == 6): stamp()
    for c in range(8):
        a = Op(f"ds_write_b64 v{aR}, v[{ACC(c)}:{ACC(c)+1}] offset:{1024*c}", "w64", early=lastacc[c] + 2, late=lastacc[c] + cfg.rlag)
        a2 = Op(f"ds_write_b64 v{aR}, v[{ACC(c)+2}:{ACC(c)+3}] offset:{1024*c+8}", "w64", after=[a], late=lastacc[c] + cfg.rlag + 2)
        Op(lambda c=c: flagw(c), "w32", after=[a2], late=lastacc[c] + cfg.rlag + 4)
    for _ in range(len(ops)):
        for x in ops:
            for p in x.after: p.late = min(p.late, x.late - getattr(p, "gap", 1))
    touched = set(); busy = -1; extra = 0
    def ready(x, g): return x.done is None and x.early <= g and all(p.done is not None and p.done + getattr(p, "gap", 0) <= g for p in x.after)
    for g in range(-1, len(MM)):
        if g >= 0:
            c, a, b = MM[g]
            src = q4(ACC(c)) if c in touched else "0"; touched.add(c)
            I(f"v_mfma_f32_16x16x32_bf16 {q4(ACC(c))}, {q4(reg[a])}, {q4(reg[b])}, {src}")
        n = 0
        while True:
            cand = sorted((x for x in ops if ready(x, g)), key=lambda x: x.late)
            due = [x for x in cand if x.late <= g]
            if n == 0 and g >= 0 and not due:
                cand = [x for x in cand if not (x.kind[0] == "w" and g < busy) and x.late - g < cfg.horizon]
                pick = cand[0] if cand else None
            else: pick = due[0] if due else None
            if pick is None: break
            run([pick.text]); pick.done = g; n += 1
            if pick.kind == "w128": busy = g + 4
            elif pick.kind == "w64": busy = max(busy, g + 2)
        if g >= 0: extra += max(0, n - 1)
    for x in sorted((x for x in ops if x.done is None), key=lambda x: x.late): run([x.text])
    sys.stderr.write(f"conv: {len(MM)} MFMAs, {len(ops)} side ops, {extra} share a gap\n")
    from asmlib import Ins
    live = set()
    for ln in A.lines[conv_mark:]:
        if ln.endswith(":") or ln.strip().startswith(";"): continue
        q = Ins(ln.strip())
        if q.kind == "mfma": assert "32x32" in q.mn or set(q.A + q.B) <= live, ln
        elif q.mn.startswith("ds_read") or q.mn == "v_and_b32": live |= set(q.w)
        else: live -= set(q.w)
    stamp_out()
    I("s_endpgm")

    nst[0] = nst_io
    A.label("L_io", snap_io)
    if cfg.fine == 2: stamp()
    BND = 8
    aUW, aXio, aWW, aRr, offG, offOut, aZ, aWW3 = range(24, 32)
    vCR1 = 189
    I(f"""s_getreg_b32 s54, hwreg(HW_REG_XCC_ID, 0, 4)
         ; column reads / transposed stores: lane = 4*j + q
         v_and_b32 v34, 3, v0
         v_lshrrev_b32 v35, 4, v0
         v_lshlrev_b32 v36, 1, v34
         v_xor_b32 v35, v35, v36
         v_and_b32 v36, 12, v0
         v_lshl_add_u32 v35, v35, 4, v36
         v_lshl_add_u32 v35, v34, 9, v35
         v_xor_b32 v36, 64, v35
         v_add_u32 v{vCRd}, s22, v35
         v_add_u32 v{vCR1}, s22, v36
         v_lshrrev_b32 v35, 2, v0
         v_lshlrev_b32 v36, 4, v34
         v_lshl_add_u32 v35, v35, 14, v36
         s_lshr_b32 s4, s5, 3
         s_lshl_b32 s4, s4, 9
         s_and_b32 s23, s5, 7
         s_lshl_b32 s23, s23, 1
         s_add_u32 s4, s4, s23
         s_lshr_b32 s23, s45, 1
         s_add_u32 s4, s4, s23
         s_lshl_b32 s4, s4, 10
         s_lshl_b32 s23, s46, 6
         s_add_u32 s4, s4, s23
         s_add_u32 s4, s4, s49
         v_add_u32 v{vST0}, s4, v35
         v_add_u32 v{vST1}, 0x40000, v{vST0}
         s_lshl_b32 s4, s48, 9
         s_lshl_b32 s23, s45, 7
         s_add_u32 s4, s4, s23
         s_add_u32 s4, s4, {WS_LF}
         v_and_b32 v34, 31, v0
         v_lshl_add_u32 v{vPL}, v34, 2, s4
         s_add_u32 s4, s49, {WS_HL}
         v_lshl_add_u32 v212, v34, 2, s4
         v_cmp_gt_u32 vcc, 32, v0
         v_cndmask_b32 v35, v212, v{vPL}, vcc
         global_load_dword v{vNR}, v35, s[42:43] sc1
         v_add_u32 v223, s22, v{vL16}
         v_lshrrev_b32 v35, 3, v0
         v_and_b32 v36, 0x70, v{vL16}
         v_lshl_add_u32 v213, v35, 10, v36
         s_lshl_b32 s4, s5, 14
         s_add_u32 s4, s4, s49
         s_lshr_b32 s23, s45, 1
         s_lshl_b32 s23, s23, 19
         s_add_u32 s23, s23, s4
         s_lshl_b32 s8, s46, 13
         s_add_u32 s23, s23, s8
         v_add_u32 v{vU0}, s23, v213
         v_add_u32 v{vU1}, 0x100000, v{vU0}
         s_lshl_b32 s23, s45, 19
         s_add_u32 s4, s4, s23
         v_add_u32 v213, s4, v213
         ; own flag word, hello words
         s_lshl_b32 s4, s48, 9
         s_bfe_u32 s23, s5, 0x20002
         s_lshl_b32 s23, s23, 7
         s_add_u32 s4, s4, s23
         s_lshr_b32 s23, s5, 4
         s_lshl_b32 s23, s23, 6
         s_add_u32 s4, s4, s23
         s_and_b32 s23, s5, 3
         s_lshl_b32 s23, s23, 4
         s_add_u32 s4, s4, s23
         s_lshl_b32 s23, s45, 2
         s_add_u32 s4, s4, s23
         s_add_u32 s4, s4, {WS_LF}
         v_mov_b32 v216, s4
         s_add_u32 s4, s47, {WS_HELLO}
         v_mov_b32 v218, s4
         v_and_b32 v34, 31, v0
         s_add_u32 s23, s49, {WS_HELLO}
         v_lshl_add_u32 v{vHL}, v34, 2, s23
         s_lshl_b32 s26, s45, 9
         s_add_u32 s4, s26, {UB + 480}
         v_lshl_add_u32 v{aUW}, v0, 3, s4
         v_and_b32 v34, 15, v0
         v_lshrrev_b32 v35, 4, v0
         v_lshl_add_u32 v36, v34, 1, v35
         s_add_u32 s9, s45, 3
         s_and_b32 s9, s9, 3
         s_lshl_b32 s4, s9, 9
         s_add_u32 s4, s4, {UB + 448}
         v_lshl_add_u32 v{aXio}, v36, 4, s4
         s_lshl_b32 s23, s45, 12
         s_add_u32 s23, s23, {WS_G}
         v_lshrrev_b32 v36, 2, v0
         v_and_b32 v37, 3, v0
         v_lshl_add_u32 v36, v36, 4, v37
         v_lshl_add_u32 v{offG}, v36, 3, s23
         s_lshl_b32 s23, s45, 10
         v_bfe_u32 v36, v0, 1, 2
         v_xor_b32 v36, v36, v35
         v_lshrrev_b32 v37, 3, v0
         v_lshl_add_u32 v36, v37, 2, v36
         v_and_b32 v37, 1, v0
         v_lshl_add_u32 v36, v36, 1, v37
         s_add_u32 s4, s23, {RB}
         v_lshl_add_u32 v{aRr}, v36, 3, s4
         s_lshl_b32 s4, s45, 18
         s_add_u32 s4, s4, s47
         v_lshl_add_u32 v{offOut}, v0, 11, s4
         v_lshl_add_u32 v36, v34, 2, v35
         s_mul_i32 s4, s9, 544
         v_add_u32 v36, 2, v36
         v_lshrrev_b32 v37, 4, v36
         v_add_u32 v37, v37, v36
         v_lshl_add_u32 v{aWW}, v37, 3, s4
         v_add_u32 v36, 1, v36
         v_lshrrev_b32 v37, 4, v36
         v_add_u32 v37, v37, v36
         v_lshl_add_u32 v{aWW3}, v37, 3, s4
         ; zero pads in front of W5, W3, W9 of both channels
         v_and_b32 v36, 3, v0
         v_bfe_u32 v37, v0, 2, 2
         v_min_u32 v37, 2, v37
         v_mul_u32_u24 v37, {W3O}, v37
         v_min_u32 v37, {W9O}, v37
         v_lshl_add_u32 v36, v36, 3, v37
         v_bfe_u32 v37, v0, 4, 1
         v_mul_u32_u24 v37, {WSTR}, v37
         v_add_u32 v{aZ}, v36, v37
         s_lshl_b32 s4, s45, 2
         s_add_u32 s4, s4, {FLAG}
         v_mov_b32 v79, s4
         v_mov_b32 v77, 1
         v_mov_b32 v70, 0
         v_mov_b32 v71, 0
         ds_write_b32 v79, v70
         ds_write_b32 v79, v70 offset:32
         s_cmp_lg_u32 s45, 0
         s_cbranch_scc1 L_io5
         v_subrev_u32 v72, 480, v{aUW}
         ds_write_b64 v72, v[70:71]
         ds_write_b64 v72, v[70:71] offset:{USTR}""")
    A.label("L_io5")
    I(f"""s_add_u32 s6, s6, L_tabi-L_pc
         s_addc_u32 s7, s7, 0
         s_mov_b32 s30, 0x05040100
         s_mov_b32 s31, 0x07060302
         s_sub_u32 s23, s22, {MOFS}""")
    consts()
    I("s_mov_b32 m0, s23")
    if cfg.prio: I("s_setprio 1")
    if cfg.fine == 2: stamp()
    dt_scale()
    def tile():
        I(f"ds_write_b128 v223, v[{TR}:{TR+3}]\nds_write_b128 v223, v[{TR+4}:{TR+7}] offset:1024")
        stamp()
        for Jp in range(2):
            for i in (0, 2): I(f"ds_read2_b32 v[{TR+4*Jp+i}:{TR+4*Jp+i+1}], v{(vCRd, vCR1)[Jp]} offset0:{32*i} offset1:{32*(i+1)}")
        I(f"ds_write_addtid_b32 v32 offset:{MOFS}")
    def tile2():
        I(f"""global_store_dwordx4 v{vST0}, v[{TR}:{TR+3}], s[62:63]
             global_store_dwordx4 v{vST1}, v[{TR+4}:{TR+7}], s[62:63]
             global_load_dword v215, v188, s[40:41] sc1""")
    def publish():
        stamp()
        I("s_waitcnt vmcnt(0)"); A.vm = []
        I("v_cmp_eq_u32 vcc, 0, v215\ns_cbranch_vccz L_io4")
        A.label("L_io3")
        I("s_sleep 2")
        I("global_load_dword v215, v188, s[40:41] sc1", track=False)
        I("s_waitcnt vmcnt(0)\nv_cmp_eq_u32 vcc, 0, v215\ns_cbranch_vccnz L_io3")
        A.label("L_io4")
        I(f"""v_lshl_add_u32 v219, s54, 1, v215
             s_mov_b64 exec, 1
             global_store_dword v216, v219, s[42:43]
             s_mov_b64 exec, -1""")
        stamp()
    tabl = [f"global_load_dwordx4 v[{BND+4*k}:{BND+4*k+3}], v{vL16}, s[6:7] offset:{1024*k}" for k in range(4)]
    U1, U2 = 224, 228
    uload = f"""global_load_dwordx4 v[{U1}:{U1+3}], v{vU0}, s[62:63] sc1
             global_load_dwordx4 v[{U2}:{U2+3}], v{vU1}, s[62:63] sc1"""
    def hello(tag):
        I(f"s_cmp_lg_u32 s45, 0\ns_cbranch_scc1 L_hi{tag}\ns_mov_b64 exec, 1\nv_add_u32 v222, {32 if tag == 'a' else 0}, v219")
        I("global_store_dword v218, v222, s[42:43] sc1", track=False)
        I("s_mov_b64 exec, -1")
        A.label(f"L_hi{tag}")
    def try_u():
        I("s_waitcnt vmcnt(0)"); A.vm = []
        I(f"v_cmp_ne_u32 vcc, v221, v219\ns_mov_b32 s25, 0")
        I("s_branch L_try0" if cfg.force_slow else "s_cbranch_vccnz L_try0")
        I(uload + "\ns_mov_b32 s25, 1")
        A.label("L_try0")
        stamp()
    def fetch_u():
        I("s_mov_b32 s33, 0")
        A.label("L_poll")
        I(f"global_load_dword v221, v{vPL}, s[42:43] sc1\ns_add_u32 s33, s33, 1\nv_cmp_ne_u32 vcc, v221, v219")
        if not cfg.force_slow: I("s_cbranch_vccz L_fast")
        I(f"""s_and_b32 s4, s33, 15
             s_cbranch_scc1 L_poll""")
        hello("a")
        I(f"""global_load_dword v222, v{vHL}, s[42:43] sc1
             s_cmp_gt_u32 s33, 0x40000
             s_cbranch_scc1 L_slow
             v_sub_u32 v222, v222, v215
             v_bfe_u32 v220, v222, 1, 4
             v_and_b32 v222, 0xffffffc1, v222
             v_cmp_ne_u32 s[12:13], s54, v220
             v_cmp_ne_u32 vcc, 0, v222
             s_cbranch_vccnz L_poll""")
        if not cfg.force_slow: I("s_cmp_eq_u64 s[12:13], 0\ns_cbranch_scc1 L_poll")
        A.label("L_slow")
        I(f"""s_lshl_b32 s4, s45, 18
             s_add_u32 s4, s4, s47
             v_lshl_add_u32 v222, v0, 12, s4
             s_mov_b32 s23, 0x100000""")
        for base, so in ((U1, "0"), (U2, "s23")):
            for j in range(4): I(f"buffer_load_dword v{base+j}, v222, s[56:59], {so} offen offset:{1024*j}")
        I("s_waitcnt vmcnt(0)\ns_branch L_have")
        A.vm = []
        A.label("L_fast")
        I(uload)
        A.label("L_have")
    def stage():
        for base, off in ((U1, 0), (U2, 2048)):
            I(f"""v_perm_b32 v72, v{base+1}, v{base}, s30
                  v_perm_b32 v73, v{base+3}, v{base+2}, s30
                  v_perm_b32 v74, v{base+1}, v{base}, s31
                  v_perm_b32 v75, v{base+3}, v{base+2}, s31
                  ds_write_b64 v{aUW}, v[72:73] offset:{off}
                  ds_write_b64 v{aUW}, v[74:75] offset:{off+USTR}""")
        I("ds_write_b32 v79, v77")
    S1 = merge(half(1, MOFS), red, cfg.red_at, 3)
    first_w = min(i for i, t in enumerate(S1) if "addtid" in t)
    held = []
    if cfg.tile_at > first_w:
        held = [t for t in S1[:cfg.tile_at] if "addtid" in t]
        S1 = [t for t in S1[:cfg.tile_at] if "addtid" not in t] + S1[cfg.tile_at:]
    ta = cfg.tile_at - len(held)
    S1 = S1[:ta] + [tile] + held + S1[ta:ta + 6] + [tile2] + S1[ta + 6:]
    S1.insert(cfg.pub_at, publish)
    S1 = S1[:cfg.pub_at + 1] + merge(S1[cfg.pub_at + 1:], tabl, 1, 3)
    S1.insert(len(S1) - cfg.poll_at, f"global_load_dword v221, v{vPL}, s[42:43] sc1")
    if cfg.fine == 5: S1.insert(len(S1) - cfg.poll_at - 1, stamp); S1.insert(len(S1) - cfg.fetch_at, stamp)
    S1.insert(len(S1) - cfg.fetch_at, try_u)
    run(S1)
    if cfg.fine == 5: stamp()
    I("s_waitcnt lgkmcnt(0)\ns_barrier"); A.lg = []
    I("s_cmp_eq_u32 s25, 1\ns_cbranch_scc1 L_have")
    A.vm = []
    fetch_u()
    I("s_waitcnt vmcnt(0)"); A.vm = []
    stage()
    stamp()
    if cfg.prio and cfg.wlow: I("s_setprio 0")
    I(f"""v_add_u32 v76, 0x4000, v{offG}
         s_lshl_b32 s4, s45, 5
         v_mov_b32 v78, s4""")
    GQ = 128
    def gather(second=True):
        I(f"""global_load_dword v{GQ+4}, v78, s[40:41] sc1
              global_load_dwordx2 v[{GQ}:{GQ+1}], v{offG}, s[42:43] sc1
              global_load_dwordx2 v[{GQ+2}:{GQ+3}], v{offG}, s[42:43] offset:2048 sc1""")
        if second:
            I(f"""global_load_dword v{GQ+10}, v78, s[40:41] offset:128 sc1
                  global_load_dwordx2 v[{GQ+6}:{GQ+7}], v76, s[42:43] sc1
                  global_load_dwordx2 v[{GQ+8}:{GQ+9}], v76, s[42:43] offset:2048 sc1""")
    I(f"s_cmp_lg_u32 s45, 1\ns_cbranch_scc1 L_uall\nds_write_b64 v{aZ}, v[70:71]")
    A.label("L_uall")
    I(f"ds_read_b128 v[116:119], v{vFL}")
    I("v_min_u32 v116, v116, v117\nv_min3_u32 v116, v116, v118, v119\nv_cmp_eq_u32 vcc, 0, v116\ns_cbranch_vccnz L_uall")
    I(f"""v_mov_b32 v116, -1
         v_mov_b32 v117, -1
         v_mov_b32 v118, -1
         v_mov_b32 v119, -1
         v_add_u32 v121, 0x2000, v213
         global_store_dwordx4 v213, v[116:119], s[62:63]
         global_store_dwordx4 v121, v[116:119], s[62:63]""")
    blank = A.vm[-1]
    I(f"""ds_read_b128 v[80:83], v{aXio}
         ds_read_b128 v[84:87], v{aXio} offset:{USTR}
         s_lshr_b32 s4, s45, 1
         s_sub_u32 s4, 5, s4
         s_sub_u32 s4, s4, s9
         s_mul_i32 s23, s46, {USTR}
         s_lshl_b32 s8, s4, 9
         s_add_u32 s23, s23, s8
         v_add_u32 v72, s23, v{aXio}
         ds_read_b128 v[88:91], v72
         s_mul_i32 s23, s46, {WSTR}
         s_mul_i32 s8, s4, 544
         s_add_u32 s23, s23, s8
         v_add_u32 v73, s23, v{aWW}
         v_add_u32 v75, s23, v{aWW3}
         s_mov_b32 s33, 0""")
    if cfg.kdone >= 0:
        I("s_branch L_kd1")
        A.label("L_kd0")
        I("s_sleep 1")
        A.label("L_kd1")
        I(f"ds_read_b32 v120, v79 offset:{PRG + 128 - FLAG}\nv_cmp_eq_u32 vcc, 0, v120\ns_cbranch_vccnz L_kd0")
    units = [(0, (aWW, aWW3), 0, a) for a in range(4)] + [(1, (aWW, aWW3), WSTR, a) for a in range(4)] + [(2, (73, 75), 0, a) for a in range(2)]
    for u, (n, ad, off, a) in enumerate(units):
        I(f"v_mfma_f32_16x16x32_bf16 v[{140+4*u}:{143+4*u}], v[{BND+4*a}:{BND+4*a+3}], v[{80+4*n}:{83+4*n}], 0")
    gather()
    I("s_mov_b32 s27, s45")
    if cfg.wout_after >= 0:
        I("s_branch L_wo1")
        A.label("L_wo0")
        I("s_sleep 2")
        A.label("L_wo1")
        I(f"ds_read_b32 v116, v79 offset:{PRG + 16*cfg.wout_after - FLAG}\nv_cmp_eq_u32 vcc, 0, v116\ns_cbranch_vccnz L_wo0")
    if cfg.prio and cfg.wout_hi: I("s_setprio 1")
    for u, (n, ad, off, a) in enumerate(units):
        r = 140 + 4 * u
        I(f"v_cvt_pk_bf16_f32 v{r}, v{r}, v{r+1}\nv_cvt_pk_bf16_f32 v{r+1}, v{r+2}, v{r+3}")
        I(f"ds_write_b64 v{ad[a == 1]}, v[{r}:{r+1}] offset:{WB + off + (W5O, W3O, W9O, W7O)[a]}")
    if blank in A.vm: A.wait(vm=len(A.vm) - 1 - A.vm.index(blank))
    I("ds_write_b32 v79, v77 offset:32\ns_cmp_lg_u32 s45, 0\ns_cbranch_scc1 L_hib")
    A.label("L_wall")
    I(f"""ds_read_b128 v[116:119], v{vFL} offset:32
         v_min_u32 v116, v116, v117
         v_min3_u32 v116, v116, v118, v119
         v_cmp_eq_u32 vcc, 0, v116
         s_cbranch_vccnz L_wall
         s_mov_b64 exec, 1
         v_subrev_u32 v72, {WS_HELLO - WS_HL}, v218""")
    I("global_store_dword v72, v219, s[42:43]", track=False)
    I("s_mov_b64 exec, -1")
    A.label("L_hib")
    if cfg.prio: I(f"s_setprio {cfg.sprio}")
    stamp()
    if cfg.nofinal: I("s_endpgm")
    I(f"""; send addresses: rows 2*lane.. of tile w -> 16-row units, gathered by workgroup 16*(w&1) + 8*h + (lane>>3)
         v_lshrrev_b32 v116, 3, v0
         v_and_b32 v117, 7, v0
         v_lshlrev_b32 v117, 3, v117
         v_lshl_add_u32 v116, v116, 14, v117
         s_lshl_b32 s4, s46, 18
         s_lshr_b32 s8, s45, 1
         s_lshl_b32 s8, s8, 19
         s_add_u32 s4, s4, s8
         s_lshr_b32 s8, s5, 1
         s_lshl_b32 s8, s8, 10
         s_add_u32 s4, s4, s8
         s_and_b32 s8, s5, 1
         s_lshl_b32 s8, s8, 6
         s_add_u32 s4, s4, s8
         s_add_u32 s4, s4, s49
         v_add_u32 v105, s4, v116
         v_add_u32 v106, 0x20000, v105
         v_lshrrev_b32 v116, 4, v0
         v_mul_u32_u24 v116, 272, v116
         v_and_b32 v117, 0xf0, v{vL16}
         v_add3_u32 v110, v116, v117, s22
         v_and_b32 v116, 7, v0
         v_mul_u32_u24 v117, 272, v116
         v_lshrrev_b32 v118, 3, v0
         v_lshl_add_u32 v117, v118, 2, v117
         v_add_u32 v111, s22, v117
         s_mov_b32 s25, 0
         global_load_dword v139, v212, s[42:43] sc1
         s_waitcnt vmcnt(0)""")
    A.vm = []
    hello("c")
    A.label("L_mode")
    I("v_cmp_ne_u32 vcc, v139, v219")
    if not cfg.force_slow: I("s_cbranch_vccz L_mode1")
    I(f"""s_add_u32 s33, s33, 1
         s_sleep 2
         global_load_dword v139, v212, s[42:43] sc1
         s_and_b32 s4, s33, 31
         s_waitcnt vmcnt(0)
         s_cbranch_scc1 L_mode
         global_load_dword v118, v{vHL}, s[42:43] sc1
         s_cmp_gt_u32 s33, 0x40000
         s_cbranch_scc1 L_spread
         v_sub_u32 v116, v118, v215
         v_bfe_u32 v117, v116, 1, 4
         v_and_b32 v116, 0xffffffc1, v116
         v_cmp_ne_u32 s[34:35], s54, v117
         v_cmp_eq_u32 vcc, 0, v116
         s_and_b64 vcc, vcc, s[34:35]""")
    I("s_branch L_spread" if cfg.force_slow else "s_cbranch_vccnz L_spread\ns_branch L_mode")
    A.vm = []
    A.label("L_mode1")
    I("s_mov_b32 s25, 1\ns_branch L_fin_loop")
    A.label("L_spread")
    I(f"""v_add_u32 v116, {WS_CL - WS_HELLO}, v218
         v_add_u32 v117, {WS_CL - WS_HELLO}, v{vHL}
         s_cmp_lg_u32 s45, 0
         s_cbranch_scc1 L_clean
         buffer_wbl2 sc1
         s_waitcnt vmcnt(0)
         s_mov_b64 exec, 1
         global_store_dword v116, v215, s[42:43] sc1
         s_mov_b64 exec, -1""")
    A.label("L_clean")
    I(f"""global_load_dword v118, v117, s[42:43] sc1
         s_add_u32 s33, s33, 1
         s_cmp_gt_u32 s33, 0x80000
         s_cbranch_scc1 L_fin_loop
         s_waitcnt vmcnt(0)
         v_cmp_ne_u32 vcc, v118, v215
         s_cbranch_vccnz L_clean""")
    A.vm = []
    A.label("L_fin_loop")
    I(f"""v_cmp_ne_u32 s[34:35], v{GQ+1}, v{GQ+4}
         v_cmp_ne_u32 s[36:37], v{GQ+3}, v{GQ+4}
         v_cmp_eq_u32 vcc, 0, v{GQ+4}
         s_or_b64 s[34:35], s[34:35], s[36:37]
         s_or_b64 vcc, vcc, s[34:35]
         s_cbranch_vccz L_gok
         s_add_u32 s33, s33, 1
         s_cmp_gt_u32 s33, 0x40000
         s_cbranch_scc1 L_gok
         s_sleep {cfg.gsleep}""")
    gather(False)
    I("s_waitcnt vmcnt(0)\ns_branch L_fin_loop")
    A.label("L_gok")
    A.vm = []
    if cfg.stamps:
        I("s_cmp_ge_u32 s27, 4\ns_cbranch_scc1 L_gok2"); stamp(); A.label("L_gok2")
    gq = GQ
    for i in range(4):
        I(f"v_and_b32 v{96+i}, 0xffff0000, v{gq+2*(i>>1)}" if i & 1 else f"v_lshlrev_b32 v{96+i}, 16, v{gq+2*(i>>1)}")
    for i in range(4): I(f"v_sub_f32 v{100+i}, 1.0, v{96+i}")
    I("v_cvt_pk_bf16_f32 v101, v100, v101\nv_cvt_pk_bf16_f32 v103, v102, v103")
    I("v_lshlrev_b32 v100, 16, v101\nv_and_b32 v101, 0xffff0000, v101\nv_lshlrev_b32 v102, 16, v103\nv_and_b32 v103, 0xffff0000, v103")
    I(f"""v_add_u32 v104, 0x20000, v{offOut}
         s_lshl_b32 s4, s27, 4
         s_add_u32 s4, s4, {PRG}
         v_mov_b32 v122, s4
         s_min_u32 s4, s4, {PRG + 16*cfg.ptile}
         v_mov_b32 v123, s4
         s_branch L_prog1""")
    A.label("L_prog")
    I(f"s_sleep {cfg.psleep}")
    A.label("L_prog1")
    I("""ds_read_b128 v[116:119], v123
         v_min_u32 v116, v116, v117
         v_min3_u32 v116, v116, v118, v119
         v_cmp_eq_u32 vcc, 0, v116
         s_cbranch_vccnz L_prog""")
    A.label("L_prog2")
    I("ds_read_b128 v[116:119], v122")
    for h in range(2):
        for n in range(4): I(f"ds_read_b64 v[{80+4*n+2*h}:{81+4*n+2*h}], v{aRr} offset:{8192*n + 512*h}")
    I("v_min_u32 v116, v116, v117\nv_min3_u32 v116, v116, v118, v119\nv_cmp_eq_u32 vcc, 0, v116\ns_cbranch_vccnz L_prog2")
    I("s_cmp_eq_u32 s25, 1\ns_cbranch_scc1 L_send")
    sn = A.snapshot()
    def mix(i):
        for ch in range(2): I(f"v_mul_f32 v{80+4*ch+i}, v{96+i}, v{80+4*ch+i}")
        for ch in range(2): I(f"v_fmac_f32 v{80+4*ch+i}, v{100+i}, v{88+4*ch+i}")
        if i == 0 and cfg.stamps: I(f"{'s_memtime' if cfg.cycles else 's_memrealtime'} s[94:95]", track=False)
        I(f"v_cvt_pk_bf16_f32 v{112+i}, v{80+i}, v{84+i}")
    for i in range(4):
        mix(i)
        I(f"global_store_dword v{(offOut, 104)[i >> 1]}, v{112+i}, s[62:63] offset:{1024*(i & 1)} sc0 sc1")
    I("s_branch L_next")
    A.label("L_send", sn)
    for i in range(4):
        mix(i)
        I(f"v_min_u32 v{112+i}, -2, v{112+i}")
        if i & 1: I(f"global_store_dwordx2 v{105 + (i >> 1)}, v[{111+i}:{112+i}], s[62:63]")
    A.label("L_next")
    for i in range(5): I(f"v_mov_b32 v{gq+i}, v{gq+6+i}")
    I(f"""v_mov_b32 v{offG}, v76
         v_add_u32 v78, 128, v78
         v_add_u32 v{aRr}, 4096, v{aRr}
         v_add_u32 v{offOut}, 0x100000, v{offOut}
         v_add_u32 v105, 0x100000, v105
         v_add_u32 v106, 0x100000, v106
         s_add_u32 s27, s27, 4
         s_cmp_lt_u32 s27, 8""")
    if cfg.stamps:
        I("s_cbranch_scc0 L_two")
        if nst[0] < 15: I(f"s_waitcnt lgkmcnt(0)\ns_mov_b32 s{64+2*nst[0]}, s94"); nst[0] += 1
        stamp()
        I("s_branch L_fin_loop")
        A.label("L_two")
        if nst[0] < 15: I(f"s_waitcnt lgkmcnt(0)\ns_mov_b32 s{64+2*nst[0]}, s94"); nst[0] += 1
        stamp()
    else: I("s_cbranch_scc1 L_fin_loop")
    I("s_cmp_eq_u32 s25, 0\ns_cbranch_scc1 L_fin_out")
    A.vm = []
    A.label("L_recv")
    I(f"""global_load_dwordx4 v[80:83], v213, s[62:63] sc1
         global_load_dwordx4 v[84:87], v121, s[62:63] sc1
         s_add_u32 s33, s33, 1
         s_cmp_gt_u32 s33, 0x100000
         s_cbranch_scc1 L_fin_out
         ds_write_b128 v110, v[80:83]
         v_max3_u32 v116, v80, v81, v82
         ds_write_b128 v110, v[84:87] offset:1088
         v_max3_u32 v117, v84, v85, v86
         v_max3_u32 v116, v116, v83, v87
         v_max_u32 v116, v116, v117
         v_cmp_eq_u32 vcc, -1, v116
         s_cbranch_vccnz L_recv""")
    stamp()
    for m in range(2):
        for i in (0, 2): I(f"ds_read2_b32 v[{88+4*m+i}:{89+4*m+i}], v111 offset0:{16*i + 8*m} offset1:{16*i + 16 + 8*m}")
    I("global_store_dwordx4 v213, v[88:91], s[62:63]\nglobal_store_dwordx4 v121, v[92:95], s[62:63]")
    A.label("L_fin_out")
    if cfg.stamps:
        stamp(); I("s_waitcnt vmcnt(0)"); stamp()
    stamp_out()
    A.label("L_end")
    I("s_endpgm")
    tc, ti = tables()
    A.raw(".p2align 7\nL_tabc:")
    for i in range(0, len(tc), 8): A.raw(".long " + ", ".join("0x%x" % x for x in tc[i:i + 8]))
    A.raw("L_tabi:")
    for i in range(0, len(ti), 8): A.raw(".long " + ", ".join("0x%x" % x for x in ti[i:i + 8]))
    A.raw("L_fin:")
    A.raw(f""".section .rodata,"a"
.p2align 6
.amdhsa_kernel {KN}_kernel
  .amdhsa_next_free_vgpr 256
  .amdhsa_next_free_sgpr 102
  .amdhsa_accum_offset 256
  .amdhsa_group_segment_fixed_size 0
  .amdhsa_kernarg_size 144
  .amdhsa_user_sgpr_count 2
  .amdhsa_user_sgpr_kernarg_segment_ptr 1
  .amdhsa_system_sgpr_workgroup_id_x 1
.end_amdhsa_kernel""")
    sys.stderr.write(f"instructions {A.nins}, nops {A.nops}, lds {LDS_BYTES}\n")
    if cfg.align:
        A.lines, wid, nop = align8(A.text().split("\n"))
        sys.stderr.write(f"alignment: {wid} widened, {nop} nops\n")
    return A.text()

if __name__ == "__main__":
    out = sys.argv[1]
    for kv in sys.argv[2:]:
        k, v = kv.split("="); setattr(Cfg, k, eval(v))
    open(out, "w").write(gen())
```

```python
import sys
from asmlib import Asm, merge, align8
KN = "gated_mix__ssm_conv_s4d__ssm_conv_s4d__prompt"

class Cfg:
    stamps = False
    cycles = False
    padto = 1500
    probe = (0, 0)
    force_slow = False
    PF = 3
    fine = False
    align = True
    red_at = 50
    tile_at = 34
    pub_at = 110
    gate_at = 150
    gate_sp = 2
    gload_at = 60
    gather_at = 0
    wlow = False
    gout_at = 2
    wstep = 4
    gsleep = 8
    nofinal = False
    touch_at = 0
    touch2_at = 110
    lag01 = 5
    sprio = 1
    wout_hi = True
    lat = 5
    psleep = 4
    ptile = 5
    wout_after = -1
    rlag = 6
    horizon = 1000
    poll_at = 25
    stage_at = 5
    plow = False
    gather_early = False
    prio = 2

ROW = 272
SCRW = 57 * ROW
SCRS = 4 * SCRW
MOFS = 48000
WB = SCRS + 2048; WSTR = SCRW
W5O, W3O, W9O, W7O = 0, 3440, 6728, 8920
RB = 2048; OB = 13312
UB = 8 * SCRW; USTR = 4608
KB = UB + 2 * USTR; KSTR = 6656
RDS = 1344; R4O = 5376; R8O = 5888
FLAG = KB + 4 * KSTR
PRG = FLAG + 64
PRD = PRG + 128
LDS_BYTES = PRD + 32
P0 = 540
WS_CL, WS_HL = 0x7000, 0x5000
WS_LF, WS_HELLO, WS_G = 0x4000, 0x6000, 0x8000

def drow_hi(rho):
    q, hh, i = rho >> 3, (rho >> 2) & 1, rho & 3
    if q == 0: return 4 * hh + i
    if q == 1: return 4 * hh + 4 + i
    if q == 2: return 256 + 4 * hh + 2 * i
    return [[520, 516, 1032, 1544], [776, 772, 1288, 1800]][hh][i]
def hslot(rho):
    x = rho - 4 * (rho >= 8) - (rho >= 15) - 2 * (rho >= 20)
    return x ^ 4 if x < 8 else 31 - x if x in (11, 20) else x
HSLOT = {drow_hi(rho): hslot(rho) for rho in range(32) if rho not in (11, 15)}
assert len(HSLOT) == 25 and sorted(HSLOT.values()) == list(range(25))
HTREE = [(1, 0, 1), (2, 0, 2), (3, 2, 1), (4, 0, 4), (5, 4, 1), (6, 4, 2), (7, 6, 1), (8, 0, 8), (9, 8, 1), (10, 8, 2),
         (256, 0, 256), (258, 2, 256), (260, 4, 256), (262, 6, 256), (264, 8, 256), (266, 10, 256),
         (516, 4, 512), (520, 8, 512), (772, 516, 256), (776, 520, 256), (1032, 8, 1024), (1288, 264, 1024), (1544, 520, 1024), (1800, 776, 1024)]

def tables():
    comp, io = [], []
    for l in range(64):
        b, g = l & 15, l >> 4
        def frag(pred, val):
            return [(val if pred(8 * g + 2 * d) else 0) | (val if pred(8 * g + 2 * d + 1) else 0) << 16 for d in range(4)]
        comp.append(frag(lambda e: e in (b + 12, b + 13), 0xffff))
        t = []
        for tau, w in ((8, 2), (12, 1), (8, 4), (8, 3)):
            t += frag(lambda e: abs(tau + b - e) <= w, 0x3f80)
        pos = lambda v: 8 * (v + (v >> 4))
        t += [UB + 448 + 32 * b + 16 * g,
              WB + pos(2 + 4 * b + g), WB + pos(3 + 4 * b + g),
              WB + ((l >> 4) & 1) * WSTR + (W5O, W3O, W9O, W9O)[(l >> 2) & 3] + 8 * (l & 3),
              RB + 16 * (4 * (l >> 3) + (((l >> 1) & 3) ^ (l >> 4))) + 8 * (l & 1),
              WS_G + 128 * (l >> 2) + 8 * (l & 3),
              OB + 272 * (l >> 4) + 16 * (l & 15), OB + 272 * (l & 7) + 4 * (l >> 3)]
        io.append(t)
    def lay(tb):
        n = len(tb[0]) // 4
        return [tb[l][4 * k + j] & 0xffffffff for k in range(n) for l in range(64) for j in range(4)]
    return lay(comp), lay(io)

def lint(lines):
    from asmlib import Ins, regs_of
    ok = ("v_add_u32", "v_lshl_add_u32", "v_mov_b32", "v_lshlrev_b32", "v_min_u32", "v_xor_b32", "v_sub_u32", "v_subrev_u32", "v_cndmask_b32",
          "v_add3_u32", "v_mad_u32_u24", "v_add_lshl_u32")
    last, entry = {}, None
    for ln in "\n".join(lines).split("\n"):
        if ln.startswith("L_par:"): entry = dict(last)
        if ln.startswith("L_io:"): last = dict(entry_io)
        if not ln.startswith("    ") or ln.strip().startswith(";"): continue
        q = Ins(ln.strip())
        if q.text == "s_branch L_io": entry_io = dict(last)
        addr = None
        if q.kind == "vmem": addr = q.ops[1] if ("load" in q.mn or q.mn.startswith("buffer")) else q.ops[0]
        elif q.kind == "ds" and "addtid" not in q.mn: addr = q.ops[1] if q.mn.startswith("ds_read") else q.ops[0]
        if addr:
            w = last.get(regs_of(addr)[0])
            assert w and (w.mn.replace("_e64", "") in ok or (w.mn == "global_load_dwordx4" and "s[6:7]" in w.text)), (ln, w and w.text)
        for r in q.w: last[r] = q

def gen(cfg=Cfg):
    A = Asm(); I = A.I
    def run(stream):
        for t in stream:
            if callable(t): t()
            else: I(t)
    head = open("cdna_kernels/" + KN + ".s.ref").read().split("; Override launch")[0]
    A.raw(head.rstrip())
    A.raw(f"; @launch grid=(256,1,1) block=(512,1,1) lds={LDS_BYTES}")
    A.raw('.amdgcn_target "amdgcn-amd-amdhsa--gfx950"\n.text')
    A.raw(f".globl {KN}_kernel\n.p2align 8\n.type {KN}_kernel,@function\n{KN}_kernel:")
    nst = [0]
    def stamp():
        if cfg.stamps:
            if nst[0] < 15: I(f"{'s_memtime' if cfg.cycles else 's_memrealtime'} s[{64+2*nst[0]}:{65+2*nst[0]}]", track=False); nst[0] += 1
    def stamp_out():
        if cfg.stamps == 3:
            lab = f"L_pad{A.nins}"
            pw, pk = cfg.probe
            I(f"s_waitcnt vmcnt(0) lgkmcnt(0)\ns_sub_u32 s98, s{64+2*pk}, s64\ns_mul_i32 s98, s98, 10\ns_lshl_b32 s97, s2, 3\ns_add_u32 s97, s97, s3")
            I(f"s_cmp_eq_u32 s97, {77*8+pw}\ns_cselect_b32 s98, s98, 0\ns_add_u32 s98, s98, {cfg.padto}")
            A.label(lab)
            I("s_memrealtime s[96:97]", track=False)
            I(f"s_waitcnt lgkmcnt(0)\ns_sub_u32 s96, s96, s64\ns_cmp_lt_u32 s96, s98\ns_cbranch_scc1 {lab}")
        elif cfg.stamps:
            n = nst[0]
            I("s_waitcnt lgkmcnt(0)\ns_lshl_b32 s97, s2, 3\ns_add_u32 s97, s97, s3\ns_lshl_b32 s97, s97, 6\ns_add_u32 s97, s97, 0x100000\nv_mov_b32 v250, s97")
            I("s_mov_b64 exec, 1")
            for i in range(16):
                I(f"v_mov_b32 v251, {f's{64+2*i}' if i < n else 's50' if i == 15 else 0}\nglobal_store_dword v250, v251, s[42:43] offset:{4*i}")

    vLR, vAI, vCR, vCI = 1, 2, 3, 4
    vDS, vCRd, vST0, vST1, vPL, vHL, vU0, vU1, vL16, vGR, vFL, vNR = range(176, 188)
    GX, GW, TR = 192, 200, 204
    vDT = 33
    stamp()
    I("s_cmp_ge_u32 s2, 0x100\ns_cbranch_scc1 L_end\ns_getpc_b64 s[6:7]")
    A.raw("L_pc:")
    I(f"""v_lshrrev_b32 v1, 6, v0
         s_andn2_b32 s4, s2, 7
         v_add_lshl_u32 v2, v1, s4, 7
         v_readfirstlane_b32 s3, v1
         v_min_u32 v2, L_fin-L_pc-4, v2
         global_load_dword v255, v2, s[6:7]
         s_bfe_u32 s4, s3, 0x10001
         s_mul_i32 s4, s4, 56
         s_add_u32 s52, s0, s4
         s_addc_u32 s53, s1, 0
         s_load_dwordx8 s[8:15], s[52:53], 8
         s_load_dwordx4 s[16:19], s[52:53], 40
         s_load_dwordx2 s[56:57], s[0:1], 0
         s_load_dwordx4 s[60:63], s[0:1], 112
         s_load_dwordx4 s[40:43], s[0:1], 128
         s_memrealtime s[50:51]
         v_and_b32 v0, 63, v0
         v_mov_b32 v28, 0
         v_mov_b32 v29, 0
         v_mov_b32 v30, 0
         v_mov_b32 v31, 0
         v_mov_b32 v{vFL}, {FLAG}
         s_and_b32 s48, s2, 7
         s_lshr_b32 s5, s2, 3
         s_lshl_b32 s44, s48, 5
         s_add_u32 s44, s44, s5
         s_and_b32 s45, s3, 3
         s_and_b32 s46, s3, 1
         s_lshl_b32 s4, s44, 1
         s_add_u32 s4, s4, s46
         s_lshl_b32 s4, s4, 8
         v_lshl_add_u32 v5, v0, 2, s4
         s_lshl_b32 s47, s44, 2
         s_mul_i32 s22, s3, {SCRW}
         s_mov_b32 m0, s22
         v_lshlrev_b32 v{vL16}, 4, v0
         v_lshrrev_b32 v6, 3, v0
         v_and_b32 v7, 0x70, v{vL16}
         v_lshl_add_u32 v6, v6, 10, v7
         v_and_b32 v7, 32, v0
         v_xor_b32 v6, v7, v6
         s_lshl_b32 s49, s48, 7
         s_lshl_b32 s4, s5, 16
         s_add_u32 s4, s4, s49
         s_lshl_b32 s23, s45, 14
         s_add_u32 s4, s4, s23
         v_add_u32 v{vDS}, s4, v6
         v_xor_b32 v{vGR}, 64, v{vDS}
         s_lshl_b32 s4, s46, 1
         s_add_u32 s4, s4, s47
         v_mov_b32 v7, s4
         v_mov_b32 v{vDT}, 0
         v_mov_b32 v61, 0
         s_mov_b32 s58, 0x200000
         s_mov_b32 s59, 0x20000
         s_mov_b32 s23, {8*1024 - 1024}""")
    A.wait(lg=0)
    if cfg.fine and cfg.fine < 6: stamp()
    I(f"""global_load_dword v{vLR}, v5, s[8:9]
         global_load_short_d16_hi v{vDT}, v7, s[16:17]
         global_load_dword v{vAI}, v5, s[10:11]
         s_cmp_ge_u32 s3, 4
         s_cbranch_scc0 L_par""")
    snap_c = A.snapshot(); nst_c = nst[0]
    I(f"""buffer_load_dwordx4 v[{TR}:{TR+3}], v{vDS}, s[56:59], 0 offen
         buffer_load_dwordx4 v[{TR+4}:{TR+7}], v{vGR}, s[56:59], s23 offen offset:1024
         s_lshl_b32 s4, s48, 5
         v_mov_b32 v188, s4
         s_or_b32 s4, s5, s45
         s_cbranch_scc1 L_io2
         s_or_b32 s50, s50, 1
         v_mov_b32 v190, s50
         s_mov_b64 exec, 1""")
    I("global_store_dword v188, v190, s[40:41] sc1", track=False)
    I("s_mov_b64 exec, -1")
    A.label("L_io2")
    I(f"""global_load_dword v{vCR}, v5, s[12:13]
         global_load_dword v{vCI}, v5, s[14:15]""")
    if cfg.fine == 2: stamp()
    I("s_branch L_io")
    snap_io = A.snapshot(); nst_io = nst[0]
    A.label("L_par", snap_c); nst[0] = nst_c
    if cfg.fine == 2: stamp()

    def consts():
        I("""s_mov_b32 s24, 0x3fb8aa3b
             s_mov_b32 s28, 0
             s_mov_b32 s29, 0x80000000
             v_mov_b32 v32, 0x3c00""")
    def dt_scale():
        I(f"""v_mul_f32 v{vDT}, s24, v{vDT}
             v_exp_f32 v{vDT}, v{vDT}
             v_cvt_pk_bf16_f32 v{vDT}, v{vDT}, v{vDT}
             v_lshlrev_b32 v{vDT}, 16, v{vDT}""")
    red = [f"v_and_b32 v34, 0x7fff7fff, v{vCR}", f"v_and_b32 v35, 0x7fff7fff, v{vCI}", "v_pk_max_u16 v34, v34, v35",
           "v_lshrrev_b32 v35, 16, v34", "v_and_b32 v34, 0xffff, v34", "v_max_u32 v34, v34, v35"]
    red += [f"v_max_u32_dpp v34, v34, v34 {m}" for m in
            ("row_shr:1 row_mask:0xf bank_mask:0xf", "row_shr:2 row_mask:0xf bank_mask:0xf", "row_shr:4 row_mask:0xf bank_mask:0xf",
             "row_shr:8 row_mask:0xf bank_mask:0xf", "row_bcast:15 row_mask:0xa bank_mask:0xf", "row_bcast:31 row_mask:0xc bank_mask:0xf")]
    red += ["v_readlane_b32 s34, v34, 63",
            "s_lshr_b32 s34, s34, 7\ns_max_u32 s34, s34, 11\ns_sub_u32 s36, 264, s34\ns_lshl_b32 s36, s36, 23\ns_mov_b32 s37, s36\n"
            "s_sub_u32 s35, s34, 9\ns_lshl_b32 s35, s35, 23"]
    ZA, ZB, TP = 36, 38, 40
    AB = 42
    E1, E2 = 46, 48
    Wr = {p: 50 + i for i, p in enumerate((1, 2, 4, 8, 16, 32, 64, 128, 256, 512, 1024))}
    Lr = {r: 144 + r for r in range(1, 16)}
    for p in (8, 16, 32, 64): Lr[p // 8] = Wr[p]
    TMP = [160, 161, 162, 163]
    Hk = {h: 164 + i for i, h in enumerate((0, 2, 4, 6, 8, 10, 264, 516, 520, 776))}
    def cm(dst, a, b, conj=False):
        if conj:
            return [f"v_pk_mul_f16 v{dst}, v{a}, v{b} op_sel_hi:[0,1] neg_hi:[0,1]",
                    f"v_pk_fma_f16 v{dst}, v{a}, v{b}, v{dst} op_sel:[1,1,0] op_sel_hi:[1,0,1]"]
        return [f"v_pk_mul_f16 v{dst}, v{a}, v{b} op_sel_hi:[0,1]",
                f"v_pk_fma_f16 v{dst}, v{a}, v{b}, v{dst} op_sel:[1,1,0] op_sel_hi:[1,0,1] neg_lo:[1,0,0]"]
    def sq(z):
        return [f"v_pk_mul_f32 v[{TP}:{TP+1}], v[{z}:{z+1}], v[{z}:{z+1}] op_sel_hi:[0,1]",
                f"v_pk_fma_f32 v[{z}:{z+1}], v[{z}:{z+1}], v[{z}:{z+1}], v[{TP}:{TP+1}] op_sel:[1,1,0] op_sel_hi:[1,0,1] neg_lo:[1,0,0]"]
    def half(h, ofs):
        up = (lambda d, s: f"v_and_b32 v{d}, 0xffff0000, v{s}") if h else (lambda d, s: f"v_lshlrev_b32 v{d}, 16, v{s}")
        S = [up(AB, vLR), f"v_mul_f32 v{AB}, s24, v{AB}", f"v_exp_f32 v{AB}, v{AB}", up(AB + 1, vAI),
             f"v_cvt_pk_bf16_f32 v{AB}, v{AB}, v{AB}", f"v_mul_f32 v{AB+1}, v{vDT}, v{AB+1}", f"v_lshlrev_b32 v{AB}, 16, v{AB}",
             f"v_mul_f32 v{AB+1}, 0.15915494, v{AB+1}", f"v_mul_f32_e64 v{AB}, -v{vDT}, v{AB}", f"v_fract_f32 v{TP}, v{AB+1}",
             f"v_mul_f32 v{AB}, s24, v{AB}", f"v_cos_f32 v{ZA}, v{TP}", f"v_exp_f32 v{E1}, v{AB}", f"v_sin_f32 v{ZA+1}, v{TP}",
             f"v_pk_mul_f32 v[{ZA}:{ZA+1}], v[{ZA}:{ZA+1}], v[{E1}:{E1+1}] op_sel_hi:[1,0]"]
        cv = lambda p, z: f"v_cvt_pk_f16_f32 v{Wr[p]}, v{z}, v{z+1}"
        wl = lambda r, v: f"ds_write_addtid_b32 v{v} offset:{ofs + r*ROW}"
        wh = lambda hh, v: f"ds_write_addtid_b32 v{v} offset:{ofs + (32+HSLOT[hh])*ROW}"
        S.append(cv(1, ZA))
        for p in (2, 4, 8, 16, 32, 64, 128, 256, 512, 1024):
            S += sq(ZA) + [cv(p, ZA)]
            if 8 <= p <= 128: S.append(wl(p // 8, Wr[p]))
        if h == 0 and cfg.prio == 1: S.append("s_setprio 0")
        k = 0
        for r in range(3, 32):
            top = 1 << (r.bit_length() - 1)
            if r == top: continue
            d = Lr[r] if r < 16 else TMP[k % 4]; k += 1
            S += cm(d, Lr[r - top], Wr[8 * top]) + [wl(r, d)]
        S += [up(TP, vCR), up(TP + 1, vCI), f"v_pk_mul_f32 v[{TP}:{TP+1}], v[{TP}:{TP+1}], s[36:37]",
              f"v_cvt_pk_f16_f32 v{Hk[0]}, v{TP}, -v{TP+1}", wh(0, Hk[0])]
        for hh, a, b in HTREE:
            d = Hk.get(hh) or TMP[k % 4]; k += 1
            S += cm(d, Hk[a], Wr[b], True) + [wh(hh, d)]
        return S

    FA, FB, KA = 64, 96, 128
    def tap_addr(aL, aH, aKW, aR4W, aR8W):
        I(f"""v_and_b32 v38, 31, v0
             v_lshrrev_b32 v39, 5, v0
             v_mov_b32 v43, {ROW}
             v_lshl_add_u32 v44, v39, 4, s22
             v_mad_u32_u24 v{aL}, v38, v43, v44
             v_cmp_le_u32 vcc, 8, v38
             v_cmp_le_u32 s[10:11], 15, v38
             v_cmp_le_u32 s[12:13], 20, v38
             v_cndmask_b32_e64 v46, 0, 4, vcc
             v_cndmask_b32_e64 v47, 0, 1, s[10:11]
             v_cndmask_b32_e64 v48, 0, 2, s[12:13]
             v_add3_u32 v46, v46, v47, v48
             v_sub_u32 v45, v38, v46
             v_cmp_gt_u32 vcc, 8, v45
             v_cmp_eq_u32 s[10:11], 11, v45
             v_cmp_eq_u32 s[12:13], 20, v45
             v_xor_b32 v46, 4, v45
             v_cndmask_b32 v45, v45, v46, vcc
             v_cndmask_b32_e64 v45, v45, 20, s[10:11]
             v_cndmask_b32_e64 v45, v45, 11, s[12:13]
             v_add_u32 v45, 32, v45
             v_mad_u32_u24 v{aH}, v45, v43, v44""")
        return f"""v_and_b32 v38, 31, v0
             v_lshrrev_b32 v39, 5, v0
             v_lshlrev_b32 v44, 3, v39
             v_lshl_add_u32 v44, v38, 4, v44
             s_add_u32 s4, s23, {2*P0 - 520}
             v_sub_u32 v{aKW}, s4, v44
             v_mov_b32 v63, s23""" + (f"""
             v_lshlrev_b32 v44, 2, v0
             s_add_u32 s4, s23, {R4O + 380}
             v_sub_u32 v{aR4W}, s4, v44
             v_lshlrev_b32 v44, 1, v0
             s_add_u32 s4, s23, {R8O + 130}
             v_sub_u32 v{aR8W}, s4, v44""" if aR4W else "")
    def with_l_reads(S, aL, ofs):
        last = max(i for i, t in enumerate(S) if isinstance(t, str) and t.endswith(f"offset:{ofs + 31*ROW}"))
        return S[:last + 1] + merge(S[last + 1:], [f"ds_read_b128 v[{FB+4*k}:{FB+4*k+3}], v{aL} offset:{32*k}" for k in range(8)], 4, 6)
    def h_reads(aH): run([f"ds_read_b128 v[{FA+4*k}:{FA+4*k+3}], v{aH} offset:{32*k}" for k in range(8)])
    def tap_mfma(give, vX, fill=()):
        for k in range(8):
            I(f"v_mfma_f32_32x32x16_f16 v[{KA}:{KA+15}], v[{FA+4*k}:{FA+4*k+3}], v[{FB+4*k}:{FB+4*k+3}], " + (f"v[{KA}:{KA+15}]" if k else "0"))
            n = -(-len(fill) // (8 - k)); run(fill[:n]); fill = fill[n:]
        I(f"ds_write_b128 v{vX}, v[{give}:{give+3}]\nds_write_b128 v{vX}, v[{give+4}:{give+7}] offset:1024\ns_waitcnt lgkmcnt(0)")
        A.lg = []
    def tap_sum(keep):
        for i in range(0, 8, 2): I(f"v_pk_add_f32 v[{keep+i}:{keep+i+1}], v[{keep+i}:{keep+i+1}], v[{152+i}:{153+i}]")
        for i in range(0, 8, 2): I(f"v_pk_mul_f32 v[{keep+i}:{keep+i+1}], v[{keep+i}:{keep+i+1}], v[62:63] op_sel_hi:[1,0]")
    o = lambda i: f"v{KA+i}"
    Q = 144
    def wcopy(aKW, q, pairs, s_, lagoff):
        (a, b), (c, d) = pairs
        I(f"v_cvt_pk_bf16_f32 v{q}, {a}, {b}\nv_cvt_pk_bf16_f32 v{q+1}, {c}, {d}")
        I(f"ds_write_b64 v{aKW}, v[{q}:{q+1}] offset:{520 + s_*RDS - (0 if s_ == 3 else 8) - 2*lagoff}")

    T = 8
    aL, aH, aKW, aR4W, aR8W, aMD, aM4, aM8, aX, aW2, aW3, aR = range(T, T + 12)
    mSp = T + 12
    aW2b, aW3b = 5, 6
    vXC, vPR = aR4W, aR8W
    if cfg.prio == 1: I("s_setprio 2")
    I(f"global_load_dword v{vCR}, v5, s[12:13]\nglobal_load_dword v{vCI}, v5, s[14:15]\nglobal_load_short_d16_hi v61, v7, s[18:19]")
    if cfg.fine == 2: stamp()
    I(f"""s_add_u32 s6, s6, L_tabc-L_pc
         s_addc_u32 s7, s7, 0
         s_mul_i32 s23, s3, {KSTR}
         s_add_u32 s23, s23, {KB}
         v_add_u32 v7, s23, v{vL16}
         v_lshl_add_u32 v6, v0, 3, s23""")
    for k in range(6): I(f"ds_write_b128 v7, v[28:31] offset:{1024*k}")
    I("ds_write_b64 v6, v[28:29] offset:6144")
    consts()
    I(f"""ds_write_addtid_b32 v32 offset:0
         s_mul_i32 s30, s46, {USTR}
         s_mul_i32 s31, s46, {WSTR}
         s_lshl_b32 s4, s3, 2
         s_add_u32 s4, s4, {PRG}
         v_mov_b32 v240, s4
         v_min_u32 v241, 0x70, v{vL16}
         v_add_u32 v241, s4, v241
         ds_write_b32 v241, v28
         v_subrev_u32 v241, 16, v240
""")
    I(f"""v_and_b32 v36, 15, v0
         v_lshrrev_b32 v37, 4, v0
         v_and_b32 v40, 3, v0
         v_bfe_u32 v41, v0, 2, 2
         v_lshlrev_b32 v42, 4, v37
""")
    I(tap_addr(aL, aH, aKW, None, None))
    I(f"""         v_mul_u32_u24 v44, {RDS + 2}, v40
         v_lshlrev_b32 v45, 1, v36
         v_sub_u32 v45, v42, v45
         s_add_u32 s4, s23, {2*(P0 - 16) - 1024}
         v_add3_u32 v{aMD}, v44, v45, s4
         v_lshlrev_b32 v45, 3, v36
         v_sub_u32 v45, v42, v45
         s_add_u32 s4, s23, {R4O + 120}
         v_add_u32 v{aM4}, s4, v45
         v_and_b32 v44, 1, v0
         v_mul_u32_u24 v44, 388, v44
         v_lshlrev_b32 v45, 2, v36
         v_sub_u32 v45, v42, v45
         s_add_u32 s4, s23, {R8O + 64}
         v_add3_u32 v{aM8}, v44, v45, s4
         v_lshl_add_u32 v44, v36, 5, v42
         s_add_u32 s4, s30, {UB}
         v_add_u32 v{aX}, s4, v44
         v_bfe_u32 v44, v0, 1, 2
         v_xor_b32 v44, v44, v37
         v_lshl_add_u32 v44, v36, 2, v44
         s_add_u32 s4, s22, {RB}
         v_lshl_add_u32 v{aR}, v44, 4, s4
         ; transposing reads of the box sums: granule v -> byte 8*(v + (v>>4)); odd rows come from W3 / W7
         v_and_b32 v44, 1, v41
         v_mul_u32_u24 v45, {W3O - W5O}, v44
         s_add_u32 s4, s31, {WB + W5O}
         v_add_u32 v45, s4, v45
         v_lshl_add_u32 v46, v37, 3, v41
         v_add_u32 v46, v46, v40
         v_lshrrev_b32 v47, 4, v46
         v_add_u32 v47, v47, v46
         v_lshl_add_u32 v{aW2}, v47, 3, v45
         v_add_u32 v46, 4, v46
         v_lshrrev_b32 v47, 4, v46
         v_add_u32 v47, v47, v46
         v_lshl_add_u32 v{aW2b}, v47, 3, v45
         v_mul_u32_u24 v45, {W7O - W9O}, v44
         s_add_u32 s4, s31, {WB + W9O}
         v_add_u32 v45, s4, v45
         v_lshl_add_u32 v46, v41, 1, v42
         v_add_u32 v46, v46, v40
         v_lshrrev_b32 v47, 4, v46
         v_add_u32 v47, v47, v46
         v_lshl_add_u32 v{aW3}, v47, 3, v45
         v_add_u32 v46, 8, v46
         v_lshrrev_b32 v47, 4, v46
         v_add_u32 v47, v47, v46
         v_lshl_add_u32 v{aW3b}, v47, 3, v45
         v_add_u32 v{vXC}, s22, v{vL16}
         s_lshl_b32 s4, s3, 3
         s_add_u32 s4, s4, {PRD}
         v_mov_b32 v{vPR}, s4
         s_lshl_b32 s4, s44, 2
         s_add_u32 s4, s4, s45
         s_lshl_b32 s55, s4, 11
         v_add_u32 v{vGR}, s55, v{vL16}
         s_lshl_b32 s4, s5, 14
         s_lshl_b32 s8, s45, 19
         s_add_u32 s4, s4, s8
         s_add_u32 s4, s4, s49
         v_lshl_add_u32 v253, v36, 10, s4""")
    touch = "global_load_dword v254, v253, s[62:63]"
    if cfg.touch_at == 0: I(touch)
    gate = []
    for d in range(4):
        gate.append("\n".join(f"v_dot2_f32_bf16 v{212+rw}, v{GX+4*rw+d}, v{GW+d}, {f'v{212+rw}' if d else 0}" for rw in range(2)))
    gate += [None, "v_permlane32_swap_b32 v212, v213", "v_add_f32 v212, v212, v213"]
    gate += [f"v_add_f32_dpp v212, v212, v212 row_shr:{n} row_mask:0xf bank_mask:0xf bound_ctrl:1" for n in (1, 2, 4, 8)]
    gate += ["v_add_f32_dpp v212, v212, v212 row_bcast:15 row_mask:0xa bank_mask:0xf",
             "v_cvt_pk_bf16_f32 v212, v212, v212\nv_lshlrev_b32 v212, 16, v212\nv_mul_f32 v212, 0xbfb8aa3b, v212\nv_exp_f32 v212, v212",
             "v_add_f32 v212, 1.0, v212\nv_rcp_f32 v212, v212", "v_cvt_pk_bf16_f32 v212, v212, v212",
             "v_readlane_b32 s38, v212, 31\nv_readlane_b32 s39, v212, 63\ns_pack_ll_b32_b16 s38, s38, s39\nv_mov_b32 v214, s38"]
    gate = [t for t in gate if t]
    gate.append("ds_write_b32 v241, v214")
    gload = f"""buffer_load_dwordx4 v[{GX}:{GX+3}], v{vGR}, s[56:59], 0 offen
             buffer_load_dwordx4 v[{GX+4}:{GX+7}], v{vGR}, s[56:59], 0 offen offset:1024
             global_load_dwordx4 v[{GW}:{GW+3}], v{vL16}, s[60:61]"""
    if cfg.gload_at < 0: I(gload)
    if cfg.fine and cfg.fine < 6: stamp()
    dt_scale()
    S0 = half(0, 0)
    I(S0[0]); stamp()
    S0 = merge(S0[1:], red + [f"v_mul_f32 v62, s35, v{vDT}"], cfg.red_at, 3)
    if cfg.gload_at >= 0: S0.insert(cfg.gload_at, gload)
    if cfg.touch_at > 0: S0.insert(cfg.touch_at, touch)
    S0 = S0[:cfg.gate_at] + merge(S0[cfg.gate_at:], gate, 0, cfg.gate_sp)
    S0.insert(len(S0) - 12, f"global_load_dwordx4 v[{mSp}:{mSp+3}], v{vL16}, s[6:7]")
    run(with_l_reads(S0, aL, 0))
    stamp()
    h_reads(aH)
    tap_mfma(KA + 8, vXC)
    I("s_barrier")
    stamp()
    conv_mark = len(A.lines)
    q4 = lambda r: f"v[{r}:{r+3}]"
    XS = [[28, 32, 36, 40, 44, 48, 52, 56], [168, 172, 176, 180, 224, 228, 232, 236]]
    rdX = lambda c, n: f"ds_read_b128 {q4(XS[c & 1][n])}, v{aX} offset:{32*(16*c + 2*n)}"
    def flagwait(name, off, first=True):
        A.label(f"L_{name}chk")
        I("v_min3_u32 v249, v249, v250, v251")
        if first: I("v_min_u32 v249, v248, v249")
        I(f"v_cmp_eq_u32 vcc, 0, v249\ns_cbranch_vccz L_{name}ok")
        sn = A.snapshot()
        I(f"ds_read_b128 v[248:251], v{vFL} offset:{off}\ns_waitcnt lgkmcnt(0)\ns_branch L_{name}chk")
        A.label(f"L_{name}ok", sn)
    if cfg.prio and cfg.plow: I("s_setprio 2")
    I(f"""ds_read_b128 v[152:155], v{vXC} offset:{SCRS}
         ds_read_b128 v[156:159], v{vXC} offset:{SCRS + 1024}
         ds_read_b128 v[248:251], v{vFL}""")
    tap_sum(KA)
    stamp()
    I(f"s_mov_b64 exec, 1\nv_add_f32 {o(0)}, v61, {o(0)}\ns_mov_b64 exec, s[28:29]\nv_mov_b32 {o(5)}, {o(4)}\ns_mov_b64 exec, -1")
    for q, pr, s_ in ((Q, ((o(3), o(2)), (o(1), o(0))), 3), (Q + 2, ((o(4), o(3)), (o(2), o(1))), 0),
                      (Q + 4, ((o(5), o(4)), (o(3), o(2))), 1), (Q + 6, ((o(6), o(5)), (o(4), o(3))), 2)):
        wcopy(aKW, q, pr, s_, 0)
    I(f"""v_cvt_pk_bf16_f32 v{Q+16}, {o(0)}, 0
          s_mov_b64 exec, 1
          ds_write_b32 v63, v{Q+16} offset:{0*RDS + 2*P0}
          ds_write_b32 v63, v{Q+1} offset:{1*RDS + 2*P0}
          ds_write_b32 v63, v{Q+3} offset:{2*RDS + 2*P0}
          ds_write_b32 v63, v{Q+16} offset:{2*RDS + 2*P0 + 4}
          s_mov_b64 exec, -1""")
    flagwait("u", 0)
    if cfg.prio and cfg.plow: I("s_setprio 0")
    stamp()
    ACC = lambda c: 192 + 4 * c
    WAB = [244, 252, 188]
    reg = {}
    for mu in range(0, 34, 2): reg["M", mu] = 64 + 2 * mu if mu < 32 else 24
    for i in range(3):
        for f in range(2): reg["M4", i, f] = 144 + 8 * i + 4 * f
    for i in range(1, 5): reg["M8", i] = 128 + 4 * (i - 1)
    for c in range(8):
        for n in range(8): reg["X", c, n] = XS[c & 1][n]
    reg["Sp",] = mSp
    near = lambda c: [(c, ("M", 14 - 2 * n), ("X", c, n)) for n in range(8)]
    far = lambda c: [(c, ("M", 30 - 2 * n), ("X", c - 1, n)) for n in range(8)]
    tail = lambda c: ([(c + 2, ("M", 32), ("X", c, 7))] if c < 6 else []) + ([(c + 4, ("Sp",), ("X", c, 7))] if c < 4 else [])
    wk = [0]
    def wtok(*t):
        reg[t] = WAB[wk[0] % 3]; wk[0] += 1
        if t[0] == "W2": return [(c, t, ("M4", t[1] - c + 4, t[2])) for c in range(t[1] + 2, min(t[1] + 5, 8))]
        return [(c, t, ("M8", t[1] - c + 8)) for c in range(t[1] + 4, 8)]
    def zipm(a, b):
        out = []
        for n in range(max(len(a), len(b))): out += a[n:n + 1] + b[n:n + 1]
        return out
    MM = zipm(near(0), near(1)) + zipm(far(1), far(2)) + [tail(0)[0], tail(1)[0]]
    wplan = {3: [("W2", 0, 0), ("W2", 0, 1), ("W2", 1, 0), ("W2", 1, 1)], 4: [("W2", 2, 0), ("W2", 2, 1), ("W3", 0)],
             5: [("W2", 3, 0), ("W2", 3, 1), ("W3", 1)], 6: [("W2", 4, 0), ("W2", 4, 1), ("W3", 2)], 7: [("W2", 5, 0), ("W2", 5, 1), ("W3", 3)]}
    if cfg.wstep == 4:
        wplan = {4: wplan[3] + [("W3", 0)], 5: wplan[4][:2] + wplan[5][:2] + [("W3", 1)], 6: wplan[6], 7: wplan[7]}
    for c in range(2, 8):
        body = zipm(near(c), far(c + 1) if c < 7 else [])
        pairs = [body[k:k + (2 if c < 7 else 1)] for k in range(0, len(body), 2 if c < 7 else 1)]
        ws = [wtok(*t) for t in wplan.get(c, [])]
        if c == 2: MM += pairs[0] + [tail(0)[1], tail(1)[1]]; pairs = pairs[1:]
        for grp in merge(pairs, ws, 1, 2 if len(ws) < 5 else 1): MM += grp
        MM += tail(c)
    first, lastu, lastacc = {}, {}, {}
    for k, (c, a, b) in enumerate(MM):
        for t in (a, b): first.setdefault(t, k); lastu[t] = k
        lastacc[c] = k
    LAT = cfg.lat
    ops = []
    class Op:
        def __init__(o, text, kind, early=-1, late=10 ** 6, after=()):
            o.text, o.kind, o.early, o.late, o.after, o.done = text, kind, early, late, list(after), None
            ops.append(o)
    def chain(items, after=()):
        prev = list(after); out = []
        for text, kind in items:
            o = Op(text, kind, after=prev); prev = [o]; out.append(o)
        return out
    def load(tok, texts, after=()):
        prevs = [lastu[t] for t in lastu if t != tok and reg[t] == reg[tok] and lastu[t] < first[tok]]
        return [Op(t, "r", early=max(prevs, default=-1), late=first[tok] - LAT, after=after) for t in texts]
    def rd64(r, addr, off): return [f"ds_read_b64 v[{r}:{r+1}], v{addr} offset:{off}", f"ds_read_b64 v[{r+2}:{r+3}], v{addr} offset:{off+8}"]
    def rdtr(r, ad0, ad1, off): return [f"ds_read_b64_tr_b16 v[{r}:{r+1}], v{ad0} offset:{off}", f"ds_read_b64_tr_b16 v[{r+2}:{r+3}], v{ad1} offset:{off}"]
    for mu in range(14, -1, -2): load(("M", mu), rd64(reg["M", mu], aMD, 1024 - 32 * mu))
    def farwait():
        A.label("L_pchk")
        I("v_cmp_eq_u32 vcc, 0, v243\ns_cbranch_vccz L_pok")
        sn = A.snapshot()
        I(f"ds_read_b64 v[242:243], v{vPR}\ns_waitcnt lgkmcnt(0)\ns_branch L_pchk")
        A.label("L_pok", sn)
    pr = Op(f"ds_read_b64 v[242:243], v{vPR}", "r"); pr.gap = 3
    pc = Op(farwait, "v", after=[pr])
    for mu in list(range(30, 14, -2)) + [32]: load(("M", mu), rd64(reg["M", mu], aMD, 1024 - 32 * mu), [pc])
    sp = chain([(f"v_and_b32 v{mSp}, v242, v{mSp}\nv_and_b32 v{mSp+1}, v242, v{mSp+1}", "v"),
                (f"v_and_b32 v{mSp+2}, v242, v{mSp+2}\nv_and_b32 v{mSp+3}, v242, v{mSp+3}", "v")], [pc])
    sp[-1].late = first["Sp",] - 2
    for i in (2, 1, 0):
        for f in (0, 1): load(("M4", i, f), rd64(reg["M4", i, f], aM4, 128 * i + 64 * f), [pc])
    for i in (4, 3, 2, 1): load(("M8", i), rd64(reg["M8", i], aM8, 64 * (i - 1)), [pc])
    for c in range(2):
        for n in range(8): load(("X", c, n), [rdX(c, n)])
    for c in range(2, 8):
        for n in range(8): load(("X", c, n), [rdX(c, n)])
    fr = Op(f"ds_read_b128 v[248:251], v{vFL} offset:32", "r")
    fc = Op(lambda: flagwait("w", 32), "v", after=[fr]); fr.gap = 4
    for t in [t for t in first if t[0] in ("W2", "W3")]:
        load(t, rdtr(reg[t], aW2, aW2b, 544 * t[1] + 272 * t[2]) if t[0] == "W2" else rdtr(reg[t], aW3, aW3b, 544 * t[1]), [fc])
    def flagw(c):
        I(f"ds_write_b32 v240, v240 offset:{16*c}")
        if cfg.stamps and (c in (0, 1, 3, 7) or cfg.fine == 6): stamp()
    for c in range(8):
        a = Op(f"ds_write_b64 v{aR}, v[{ACC(c)}:{ACC(c)+1}] offset:{1024*c}", "w64", early=lastacc[c] + 2, late=lastacc[c] + cfg.rlag)
        a2 = Op(f"ds_write_b64 v{aR}, v[{ACC(c)+2}:{ACC(c)+3}] offset:{1024*c+8}", "w64", after=[a], late=lastacc[c] + cfg.rlag + 2)
        Op(lambda c=c: flagw(c), "w32", after=[a2], late=lastacc[c] + cfg.rlag + 4)
    for _ in range(len(ops)):
        for x in ops:
            for p in x.after: p.late = min(p.late, x.late - getattr(p, "gap", 1))
    touched = set(); busy = -1; extra = 0
    def ready(x, g): return x.done is None and x.early <= g and all(p.done is not None and p.done + getattr(p, "gap", 0) <= g for p in x.after)
    for g in range(-1, len(MM)):
        if g >= 0:
            c, a, b = MM[g]
            src = q4(ACC(c)) if c in touched else "0"; touched.add(c)
            I(f"v_mfma_f32_16x16x32_bf16 {q4(ACC(c))}, {q4(reg[a])}, {q4(reg[b])}, {src}")
        n = 0
        while True:
            cand = sorted((x for x in ops if ready(x, g)), key=lambda x: x.late)
            due = [x for x in cand if x.late <= g]
            if n == 0 and g >= 0 and not due:
                cand = [x for x in cand if not (x.kind[0] == "w" and g < busy) and x.late - g < cfg.horizon]
                pick = cand[0] if cand else None
            else: pick = due[0] if due else None
            if pick is None: break
            run([pick.text]); pick.done = g; n += 1
            if pick.kind == "w128": busy = g + 4
            elif pick.kind == "w64": busy = max(busy, g + 2)
        if g >= 0: extra += max(0, n - 1)
    for x in sorted((x for x in ops if x.done is None), key=lambda x: x.late): run([x.text])
    sys.stderr.write(f"conv: {len(MM)} MFMAs, {len(ops)} side ops, {extra} share a gap\n")
    from asmlib import Ins
    live = set()
    for ln in A.lines[conv_mark:]:
        if ln.endswith(":") or ln.strip().startswith(";"): continue
        q = Ins(ln.strip())
        if q.kind == "mfma": assert "32x32" in q.mn or set(q.A + q.B) <= live, ln
        elif q.mn.startswith("ds_read") or q.mn == "v_and_b32": live |= set(q.w)
        else: live -= set(q.w)
    stamp_out()
    I("s_endpgm")

    nst[0] = nst_io
    A.label("L_io", snap_io)
    if cfg.fine == 2: stamp()
    BND = 8
    aXio, aWW, aWW3, aZ, aRr, offG, aOW, aOR = range(24, 32)
    aUW, offOut = 246, 247
    vCR1 = 189
    I(f"""s_getreg_b32 s54, hwreg(HW_REG_XCC_ID, 0, 4)
         ; column reads / transposed stores: lane = 4*j + q
         v_and_b32 v34, 3, v0
         v_lshrrev_b32 v35, 4, v0
         v_lshlrev_b32 v36, 1, v34
         v_xor_b32 v35, v35, v36
         v_and_b32 v36, 12, v0
         v_lshl_add_u32 v35, v35, 4, v36
         v_lshl_add_u32 v35, v34, 9, v35
         v_xor_b32 v36, 64, v35
         v_add_u32 v{vCRd}, s22, v35
         v_add_u32 v{vCR1}, s22, v36
         v_lshrrev_b32 v35, 2, v0
         v_lshlrev_b32 v36, 4, v34
         v_lshl_add_u32 v35, v35, 14, v36
         s_lshr_b32 s4, s5, 3
         s_lshl_b32 s4, s4, 9
         s_and_b32 s23, s5, 7
         s_lshl_b32 s23, s23, 1
         s_add_u32 s4, s4, s23
         s_lshr_b32 s23, s45, 1
         s_add_u32 s4, s4, s23
         s_lshl_b32 s4, s4, 10
         s_lshl_b32 s23, s46, 6
         s_add_u32 s4, s4, s23
         s_add_u32 s4, s4, s49
         v_add_u32 v{vST0}, s4, v35
         v_add_u32 v{vST1}, 0x40000, v{vST0}
         s_lshl_b32 s4, s48, 9
         s_lshl_b32 s23, s45, 7
         s_add_u32 s4, s4, s23
         s_add_u32 s4, s4, {WS_LF}
         v_and_b32 v34, 31, v0
         v_lshl_add_u32 v{vPL}, v34, 2, s4
         s_add_u32 s4, s49, {WS_HL}
         v_lshl_add_u32 v212, v34, 2, s4
         v_cmp_gt_u32 vcc, 32, v0
         v_cndmask_b32 v35, v212, v{vPL}, vcc
         global_load_dword v{vNR}, v35, s[42:43] sc1
         v_add_u32 v223, s22, v{vL16}
         v_lshrrev_b32 v35, 3, v0
         v_and_b32 v36, 0x70, v{vL16}
         v_lshl_add_u32 v213, v35, 10, v36
         s_lshl_b32 s4, s5, 14
         s_add_u32 s4, s4, s49
         s_lshr_b32 s23, s45, 1
         s_lshl_b32 s23, s23, 19
         s_add_u32 s23, s23, s4
         s_lshl_b32 s8, s46, 13
         s_add_u32 s23, s23, s8
         v_add_u32 v{vU0}, s23, v213
         v_add_u32 v{vU1}, 0x100000, v{vU0}
         s_lshl_b32 s23, s45, 19
         s_add_u32 s4, s4, s23
         v_add_u32 v213, s4, v213
         ; own flag word, hello words
         s_lshl_b32 s4, s48, 9
         s_bfe_u32 s23, s5, 0x20002
         s_lshl_b32 s23, s23, 7
         s_add_u32 s4, s4, s23
         s_lshr_b32 s23, s5, 4
         s_lshl_b32 s23, s23, 6
         s_add_u32 s4, s4, s23
         s_and_b32 s23, s5, 3
         s_lshl_b32 s23, s23, 4
         s_add_u32 s4, s4, s23
         s_lshl_b32 s23, s45, 2
         s_add_u32 s4, s4, s23
         s_add_u32 s4, s4, {WS_LF}
         v_mov_b32 v216, s4
         s_lshl_b32 s26, s45, 9
         s_add_u32 s4, s26, {UB + 480}
         v_lshl_add_u32 v{aUW}, v0, 3, s4
         s_lshl_b32 s4, s45, 2
         s_add_u32 s4, s4, {FLAG}
         v_mov_b32 v235, s4
         v_mov_b32 v234, 1
         v_mov_b32 v232, 0
         v_mov_b32 v233, 0
         ds_write_b32 v235, v232
         ds_write_b32 v235, v232 offset:32
         s_cmp_lg_u32 s45, 0
         s_cbranch_scc1 L_io5
         v_subrev_u32 v72, 480, v{aUW}
         ds_write_b64 v72, v[232:233]
         ds_write_b64 v72, v[232:233] offset:{USTR}""")
    A.label("L_io5")
    sL, sH, sKW, sR4, sR8, sPR = range(240, 246)
    I(f"""s_lshl_b32 s4, s45, 3
         s_add_u32 s4, s4, {PRD}
         v_mov_b32 v{sPR}, s4
         ds_write_b64 v{sPR}, v[232:233]""")
    late = f"""s_mul_i32 s23, s45, {KSTR}
         s_add_u32 s23, s23, {KB}
         """ + tap_addr(sL, sH, sKW, sR4, sR8) + f"""
         s_add_u32 s4, s47, {WS_HELLO}
         v_mov_b32 v218, s4
         v_add_u32 v{vHL}, {WS_HELLO - WS_HL}, v212
         ; cut
         s_add_u32 s9, s45, 3
         s_and_b32 s9, s9, 3
         s_lshl_b32 s4, s9, 9
         v_add_u32 v{aXio}, s4, v{aXio}
         s_mul_i32 s4, s9, 544
         v_add_u32 v{aWW}, s4, v{aWW}
         v_add_u32 v{aWW3}, s4, v{aWW3}
         s_lshl_b32 s4, s45, 10
         v_add_u32 v{aRr}, s4, v{aRr}
         s_lshl_b32 s4, s45, 12
         v_add_u32 v{offG}, s4, v{offG}
         v_add_u32 v{aOW}, s22, v{aOW}
         v_add_u32 v{aOR}, s22, v{aOR}
         ; send addresses: rows 2*lane.. of tile w -> 16-row units, gathered by workgroup 16*(w&1) + 8*h + (lane>>3)
         v_lshrrev_b32 v36, 3, v0
         v_and_b32 v37, 7, v0
         v_lshlrev_b32 v37, 3, v37
         v_lshl_add_u32 v36, v36, 14, v37
         s_lshl_b32 s4, s46, 18
         s_lshr_b32 s8, s45, 1
         s_lshl_b32 s8, s8, 19
         s_add_u32 s4, s4, s8
         s_lshr_b32 s8, s5, 1
         s_lshl_b32 s8, s8, 10
         s_add_u32 s4, s4, s8
         s_and_b32 s8, s5, 1
         s_lshl_b32 s8, s8, 6
         s_add_u32 s4, s4, s8
         s_add_u32 s4, s4, s49
         v_add_u32 v248, s4, v36
         v_add_u32 v249, 0x20000, v248
         """
    late = [t.strip() for t in late.split("\n") if t.strip() and not t.strip().startswith(";")]
    I(f"""s_add_u32 s6, s6, L_tabi-L_pc+2048
         s_addc_u32 s7, s7, 0
         s_mov_b32 s30, 0x05040100
         s_mov_b32 s31, 0x07060302
         s_sub_u32 s23, s22, {MOFS}""")
    consts()
    I("s_mov_b32 m0, s23")
    if cfg.prio: I("s_setprio 1")
    if cfg.fine == 2: stamp()
    dt_scale()
    def tile():
        I(f"ds_write_b128 v223, v[{TR}:{TR+3}]\nds_write_b128 v223, v[{TR+4}:{TR+7}] offset:1024")
        stamp()
        for Jp in range(2):
            for i in (0, 2): I(f"ds_read2_b32 v[{TR+4*Jp+i}:{TR+4*Jp+i+1}], v{(vCRd, vCR1)[Jp]} offset0:{32*i} offset1:{32*(i+1)}")
        I(f"ds_write_addtid_b32 v32 offset:{MOFS}")
    def tile2():
        I(f"""global_store_dwordx4 v{vST0}, v[{TR}:{TR+3}], s[62:63]
             global_store_dwordx4 v{vST1}, v[{TR+4}:{TR+7}], s[62:63]
             global_load_dword v215, v188, s[40:41] sc1""")
    def publish():
        stamp()
        I("s_waitcnt vmcnt(0)"); A.vm = []
        I("v_cmp_eq_u32 vcc, 0, v215\ns_cbranch_vccz L_io4")
        A.label("L_io3")
        I("s_sleep 2")
        I("global_load_dword v215, v188, s[40:41] sc1", track=False)
        I("s_waitcnt vmcnt(0)\nv_cmp_eq_u32 vcc, 0, v215\ns_cbranch_vccnz L_io3")
        A.label("L_io4")
        I(f"""v_lshl_add_u32 v219, s54, 1, v215
             s_mov_b64 exec, 1
             global_store_dword v216, v219, s[42:43]
             s_mov_b64 exec, -1""")
        stamp()
    tabl = [f"global_load_dwordx4 v[{BND+4*k}:{BND+4*k+3}], v{vL16}, s[6:7] offset:{1024*k - 2048}" for k in range(6)]
    U1, U2 = 224, 228
    uload = f"""global_load_dwordx4 v[{U1}:{U1+3}], v{vU0}, s[62:63] sc1
             global_load_dwordx4 v[{U2}:{U2+3}], v{vU1}, s[62:63] sc1"""
    def hello(tag):
        I(f"s_cmp_lg_u32 s45, 0\ns_cbranch_scc1 L_hi{tag}\ns_mov_b64 exec, 1\nv_add_u32 v222, {32 if tag == 'a' else 0}, v219")
        I("global_store_dword v218, v222, s[42:43] sc1", track=False)
        I("s_mov_b64 exec, -1")
        A.label(f"L_hi{tag}")
    def try_u():
        I("s_waitcnt vmcnt(0)"); A.vm = []
        I(f"v_cmp_ne_u32 vcc, v221, v219\ns_mov_b32 s25, 0")
        I("s_branch L_try0" if cfg.force_slow else "s_cbranch_vccnz L_try0")
        I(uload + "\ns_mov_b32 s25, 1")
        A.label("L_try0")
        stamp()
    def fetch_u():
        I("s_mov_b32 s33, 0")
        A.label("L_poll")
        I(f"global_load_dword v221, v{vPL}, s[42:43] sc1\ns_add_u32 s33, s33, 1\nv_cmp_ne_u32 vcc, v221, v219")
        if not cfg.force_slow: I("s_cbranch_vccz L_fast")
        I(f"""s_and_b32 s4, s33, 15
             s_cbranch_scc1 L_poll""")
        hello("a")
        I(f"""global_load_dword v222, v{vHL}, s[42:43] sc1
             s_cmp_gt_u32 s33, 0x40000
             s_cbranch_scc1 L_slow
             v_sub_u32 v222, v222, v215
             v_bfe_u32 v220, v222, 1, 4
             v_and_b32 v222, 0xffffffc1, v222
             v_cmp_ne_u32 s[12:13], s54, v220
             v_cmp_ne_u32 vcc, 0, v222
             s_cbranch_vccnz L_poll""")
        if not cfg.force_slow: I("s_cmp_eq_u64 s[12:13], 0\ns_cbranch_scc1 L_poll")
        A.label("L_slow")
        I(f"""s_lshl_b32 s4, s45, 18
             s_add_u32 s4, s4, s47
             v_lshl_add_u32 v222, v0, 12, s4
             s_mov_b32 s23, 0x100000""")
        for base, so in ((U1, "0"), (U2, "s23")):
            for j in range(4): I(f"buffer_load_dword v{base+j}, v222, s[56:59], {so} offen offset:{1024*j}")
        I("s_waitcnt vmcnt(0)\ns_branch L_have")
        A.vm = []
        A.label("L_fast")
        I(uload)
        A.label("L_have")
    def stage():
        for base, off in ((U1, 0), (U2, 2048)):
            I(f"""v_perm_b32 v236, v{base+1}, v{base}, s30
                  v_perm_b32 v237, v{base+3}, v{base+2}, s30
                  v_perm_b32 v238, v{base+1}, v{base}, s31
                  v_perm_b32 v239, v{base+3}, v{base+2}, s31
                  ds_write_b64 v{aUW}, v[236:237] offset:{off}
                  ds_write_b64 v{aUW}, v[238:239] offset:{off+USTR}""")
        I("ds_write_b32 v235, v234")
    S1 = merge(half(1, MOFS), red + [f"v_mul_f32 v62, s35, v{vDT}"], cfg.red_at, 3)
    first_w = min(i for i, t in enumerate(S1) if "addtid" in t)
    held = []
    if cfg.tile_at > first_w:
        held = [t for t in S1[:cfg.tile_at] if "addtid" in t]
        S1 = [t for t in S1[:cfg.tile_at] if "addtid" not in t] + S1[cfg.tile_at:]
    ta = cfg.tile_at - len(held)
    S1 = S1[:ta] + [tile] + held + S1[ta:ta + 6] + [tile2] + S1[ta + 6:]
    S1.insert(cfg.pub_at, publish)
    S1 = S1[:cfg.pub_at + 1] + merge(S1[cfg.pub_at + 1:], tabl, 1, 3)
    S1.insert(len(S1) - cfg.poll_at, f"global_load_dword v221, v{vPL}, s[42:43] sc1")
    run(with_l_reads(S1, sL, MOFS))
    if cfg.fine == 5: stamp()
    h_reads(sH)
    try_u()
    def stage_early():
        I("s_cmp_eq_u32 s25, 0\ns_cbranch_scc1 L_nost")
        stage()
        A.label("L_nost")
        A.vm = []
    I("s_waitcnt lgkmcnt(0)"); A.lg = []
    per = -(-len(late) // cfg.stage_at)
    tap_mfma(KA, 223, ["\n".join(late[per * k:per * k + per]) for k in range(cfg.stage_at)] + [stage_early] + [""] * (7 - cfg.stage_at))
    I("s_barrier")
    I(f"v_subrev_u32 v223, {SCRS}, v223\nds_read_b128 v[152:155], v223\nds_read_b128 v[156:159], v223 offset:1024")
    tap_sum(KA + 8)
    v0_, v2_, v4_, v6_ = o(8), o(9), o(10), o(11)
    I(f"v_cndmask_b32_e64 {v6_}, {v6_}, {v4_}, s[28:29]\nv_cvt_pk_bf16_f32 v{Q+17}, 0, {v4_}")
    for q, pr_, s_ in ((Q + 8, ((v4_, v2_), (v0_, v0_)), 3), (Q + 10, ((v4_, v4_), (v2_, v0_)), 0),
                       (Q + 12, ((v4_, v4_), (v4_, v2_)), 1), (Q + 14, ((v6_, v4_), (v4_, v4_)), 2)):
        wcopy(sKW, q, pr_, s_, 256)
    I(f"""v_cvt_pk_bf16_f32 v{Q+18}, {o(12)}, {o(13)}
         v_cvt_pk_bf16_f32 v{Q+19}, {o(14)}, {o(15)}
         s_mov_b64 exec, s[28:29]
         ds_write_b32 v63, v{Q+17} offset:{3*RDS + 56}
         ds_write_b32 v63, v{Q+10} offset:{3*RDS + 60}
         ds_write_b32 v63, v{Q+10} offset:{0*RDS + 52}
         ds_write_b32 v63, v{Q+17} offset:{1*RDS + 52}
         s_mov_b64 exec, -1
         ds_write_b32 v{sR4}, v{Q+18}
         ds_write_b16 v{sR8}, v{Q+19} offset:128
         ds_write_b16_d16_hi v{sR8}, v{Q+19} offset:0
         ds_write_b16 v{sR8}, v{Q+19} offset:{128+388}
         ds_write_b16_d16_hi v{sR8}, v{Q+19} offset:388
         v_perm_b32 v236, v{Q+18}, v{Q+18}, s30
         v_mov_b32 v237, 1
         s_mov_b64 exec, s[28:29]
         ds_write_b64 v{sPR}, v[236:237]
         s_mov_b64 exec, -1
         s_cmp_eq_u32 s25, 1
         s_cbranch_scc1 L_join""")
    fetch_u()
    I("s_waitcnt vmcnt(0)"); A.vm = []
    stage()
    A.label("L_join")
    stamp()
    if cfg.prio: I(f"s_setprio {0 if cfg.wlow else 1}")
    I(f"""v_add_u32 v76, 0x4000, v{offG}
         s_lshl_b32 s4, s45, 5
         v_mov_b32 v78, s4""")
    GQ = 128
    def gather(second=True):
        I(f"""global_load_dword v{GQ+4}, v78, s[40:41] sc1
              global_load_dwordx2 v[{GQ}:{GQ+1}], v{offG}, s[42:43] sc1
              global_load_dwordx2 v[{GQ+2}:{GQ+3}], v{offG}, s[42:43] offset:2048 sc1""")
        if second:
            I(f"""global_load_dword v{GQ+10}, v78, s[40:41] offset:128 sc1
                  global_load_dwordx2 v[{GQ+6}:{GQ+7}], v76, s[42:43] sc1
                  global_load_dwordx2 v[{GQ+8}:{GQ+9}], v76, s[42:43] offset:2048 sc1""")
    I(f"s_cmp_lg_u32 s45, 1\ns_cbranch_scc1 L_uall\nds_write_b64 v{aZ}, v[232:233]\ns_branch L_uall")
    A.label("L_uall0")
    I("s_sleep 1")
    A.label("L_uall")
    I(f"ds_read_b128 v[116:119], v{vFL}")
    I("v_min_u32 v116, v116, v117\nv_min3_u32 v116, v116, v118, v119\nv_cmp_eq_u32 vcc, 0, v116\ns_cbranch_vccnz L_uall0")
    I(f"""s_cmp_lg_u32 s45, 0
         s_cbranch_scc1 L_gpub
         s_mov_b64 exec, 15
         v_lshl_add_u32 v72, v0, 2, v235
         ds_read_b32 v214, v72 offset:48
         s_lshl_b32 s4, s44, 7
         s_add_u32 s4, s4, {WS_G}
         v_lshl_add_u32 v217, v0, 3, s4
         s_waitcnt lgkmcnt(0)""")
    A.lg = []
    I("global_store_dwordx2 v217, v[214:215], s[42:43] sc1", track=False)
    I("s_mov_b64 exec, -1")
    A.label("L_gpub")
    I(f"""v_mov_b32 v116, -1
         v_mov_b32 v117, -1
         v_mov_b32 v118, -1
         v_mov_b32 v119, -1
         v_add_u32 v121, 0x2000, v213
         global_store_dwordx4 v213, v[116:119], s[62:63]
         global_store_dwordx4 v121, v[116:119], s[62:63]""")
    I(f"""ds_read_b128 v[80:83], v{aXio}
         ds_read_b128 v[84:87], v{aXio} offset:{USTR}
         s_lshr_b32 s4, s45, 1
         s_sub_u32 s4, 5, s4
         s_sub_u32 s4, s4, s9
         s_mul_i32 s23, s46, {USTR}
         s_lshl_b32 s8, s4, 9
         s_add_u32 s23, s23, s8
         v_add_u32 v72, s23, v{aXio}
         ds_read_b128 v[88:91], v72
         s_mul_i32 s23, s46, {WSTR}
         s_mul_i32 s8, s4, 544
         s_add_u32 s23, s23, s8
         v_add_u32 v73, s23, v{aWW}
         v_add_u32 v75, s23, v{aWW3}
         s_mov_b32 s33, 0""")
    units = [(0, (aWW, aWW3), 0, a) for a in range(4)] + [(1, (aWW, aWW3), WSTR, a) for a in range(4)] + [(2, (73, 75), 0, a) for a in range(2)]
    for u, (n, ad, off, a) in enumerate(units):
        I(f"v_mfma_f32_16x16x32_bf16 v[{140+4*u}:{143+4*u}], v[{BND+4*a}:{BND+4*a+3}], v[{80+4*n}:{83+4*n}], 0")
    if cfg.gather_early: gather()
    I("s_mov_b32 s27, s45")
    if cfg.wout_after >= 0:
        I("s_branch L_wo1")
        A.label("L_wo0")
        I("s_sleep 2")
        A.label("L_wo1")
        I(f"ds_read_b32 v116, v235 offset:{PRG + 16*cfg.wout_after - FLAG}\nv_cmp_eq_u32 vcc, 0, v116\ns_cbranch_vccnz L_wo0")
    if cfg.prio and cfg.wout_hi: I("s_setprio 1")
    for u, (n, ad, off, a) in enumerate(units):
        r = 140 + 4 * u
        I(f"v_cvt_pk_bf16_f32 v{r}, v{r}, v{r+1}\nv_cvt_pk_bf16_f32 v{r+1}, v{r+2}, v{r+3}")
        I(f"ds_write_b64 v{ad[a == 1]}, v[{r}:{r+1}] offset:{off + (W5O, W3O, W9O, W7O)[a]}")
    I(f"s_waitcnt vmcnt({6 if cfg.gather_early else 0})"); A.vm = A.vm[-6:] if cfg.gather_early else []
    I("ds_write_b32 v235, v234 offset:32\ns_cmp_lg_u32 s45, 0\ns_cbranch_scc1 L_hib")
    A.label("L_wall")
    I(f"""ds_read_b128 v[116:119], v{vFL} offset:32
         v_min_u32 v116, v116, v117
         v_min3_u32 v116, v116, v118, v119
         v_cmp_eq_u32 vcc, 0, v116
         s_cbranch_vccnz L_wall
         s_mov_b64 exec, 1
         v_subrev_u32 v72, {WS_HELLO - WS_HL}, v218""")
    I("global_store_dword v72, v219, s[42:43]", track=False)
    I("s_mov_b64 exec, -1")
    A.label("L_hib")
    if not cfg.gather_early: gather()
    if cfg.prio: I(f"s_setprio {cfg.sprio}")
    stamp()
    if cfg.nofinal: I("s_endpgm")
    I(f"""         s_mov_b32 s25, 0
         global_load_dword v139, v212, s[42:43] sc1
         s_waitcnt vmcnt(0)""")
    A.vm = []
    hello("c")
    A.label("L_mode")
    I("v_cmp_ne_u32 vcc, v139, v219")
    if not cfg.force_slow: I("s_cbranch_vccz L_mode1")
    I(f"""s_add_u32 s33, s33, 1
         s_sleep 2
         global_load_dword v139, v212, s[42:43] sc1
         s_and_b32 s4, s33, 31
         s_waitcnt vmcnt(0)
         s_cbranch_scc1 L_mode
         global_load_dword v118, v{vHL}, s[42:43] sc1
         s_cmp_gt_u32 s33, 0x40000
         s_cbranch_scc1 L_spread
         v_sub_u32 v116, v118, v215
         v_bfe_u32 v117, v116, 1, 4
         v_and_b32 v116, 0xffffffc1, v116
         v_cmp_ne_u32 s[34:35], s54, v117
         v_cmp_eq_u32 vcc, 0, v116
         s_and_b64 vcc, vcc, s[34:35]""")
    I("s_branch L_spread" if cfg.force_slow else "s_cbranch_vccnz L_spread\ns_branch L_mode")
    A.vm = []
    A.label("L_mode1")
    I("s_mov_b32 s25, 1\ns_branch L_fin_loop")
    A.label("L_spread")
    I(f"""s_lshl_b32 s4, s45, 18
         s_add_u32 s4, s4, s47
         v_lshl_add_u32 v{offOut}, v0, 11, s4
         v_add_u32 v116, {WS_CL - WS_HELLO}, v218
         v_add_u32 v117, {WS_CL - WS_HELLO}, v{vHL}
         s_cmp_lg_u32 s45, 0
         s_cbranch_scc1 L_clean
         buffer_wbl2 sc1
         s_waitcnt vmcnt(0)
         s_mov_b64 exec, 1
         global_store_dword v116, v215, s[42:43] sc1
         s_mov_b64 exec, -1""")
    A.label("L_clean")
    I(f"""global_load_dword v118, v117, s[42:43] sc1
         s_add_u32 s33, s33, 1
         s_cmp_gt_u32 s33, 0x80000
         s_cbranch_scc1 L_fin_loop
         s_waitcnt vmcnt(0)
         v_cmp_ne_u32 vcc, v118, v215
         s_cbranch_vccnz L_clean""")
    A.vm = []
    A.label("L_fin_loop")
    I(f"""v_cmp_ne_u32 s[34:35], v{GQ+1}, v{GQ+4}
         v_cmp_ne_u32 s[36:37], v{GQ+3}, v{GQ+4}
         v_cmp_eq_u32 vcc, 0, v{GQ+4}
         s_or_b64 s[34:35], s[34:35], s[36:37]
         s_or_b64 vcc, vcc, s[34:35]
         s_cbranch_vccz L_gok
         s_add_u32 s33, s33, 1
         s_cmp_gt_u32 s33, 0x40000
         s_cbranch_scc1 L_gok
         s_sleep {cfg.gsleep}""")
    gather(False)
    I("s_waitcnt vmcnt(0)\ns_branch L_fin_loop")
    A.label("L_gok")
    A.vm = []
    if cfg.stamps:
        I("s_cmp_ge_u32 s27, 4\ns_cbranch_scc1 L_gok2"); stamp(); A.label("L_gok2")
    gq = GQ
    for i in range(4):
        I(f"v_and_b32 v{96+i}, 0xffff0000, v{gq+2*(i>>1)}" if i & 1 else f"v_lshlrev_b32 v{96+i}, 16, v{gq+2*(i>>1)}")
    for i in range(4): I(f"v_sub_f32 v{100+i}, 1.0, v{96+i}")
    I("v_cvt_pk_bf16_f32 v101, v100, v101\nv_cvt_pk_bf16_f32 v103, v102, v103")
    I("v_lshlrev_b32 v100, 16, v101\nv_and_b32 v101, 0xffff0000, v101\nv_lshlrev_b32 v102, 16, v103\nv_and_b32 v103, 0xffff0000, v103")
    I(f"""v_add_u32 v104, 0x20000, v{offOut}
         s_lshl_b32 s4, s27, 4
         s_add_u32 s4, s4, {PRG}
         v_mov_b32 v122, s4
         s_min_u32 s4, s4, {PRG + 16*cfg.ptile}
         v_mov_b32 v123, s4
         s_branch L_prog1""")
    A.label("L_prog")
    I(f"s_sleep {cfg.psleep}")
    A.label("L_prog1")
    I("""ds_read_b128 v[116:119], v123
         v_min_u32 v116, v116, v117
         v_min3_u32 v116, v116, v118, v119
         v_cmp_eq_u32 vcc, 0, v116
         s_cbranch_vccnz L_prog""")
    A.label("L_prog2")
    I("ds_read_b128 v[116:119], v122")
    for h in range(2):
        for n in range(4): I(f"ds_read_b64 v[{80+4*n+2*h}:{81+4*n+2*h}], v{aRr} offset:{SCRW*n + 512*h}")
    I("v_min_u32 v116, v116, v117\nv_min3_u32 v116, v116, v118, v119\nv_cmp_eq_u32 vcc, 0, v116\ns_cbranch_vccnz L_prog2")
    I("s_cmp_eq_u32 s25, 1\ns_cbranch_scc1 L_send")
    sn = A.snapshot()
    def mix(i):
        for ch in range(2): I(f"v_mul_f32 v{80+4*ch+i}, v{96+i}, v{80+4*ch+i}")
        for ch in range(2): I(f"v_fmac_f32 v{80+4*ch+i}, v{100+i}, v{88+4*ch+i}")
        if i == 0 and cfg.stamps: I(f"{'s_memtime' if cfg.cycles else 's_memrealtime'} s[94:95]", track=False)
        I(f"v_cvt_pk_bf16_f32 v{112+i}, v{80+i}, v{84+i}")
    for i in range(4):
        mix(i)
        I(f"global_store_dword v{(offOut, 104)[i >> 1]}, v{112+i}, s[62:63] offset:{1024*(i & 1)} sc0 sc1")
    I("s_branch L_next")
    A.label("L_send", sn)
    for i in range(4):
        mix(i)
        I(f"v_min_u32 v{112+i}, -2, v{112+i}")
        if i & 1: I(f"global_store_dwordx2 v{248 + (i >> 1)}, v[{111+i}:{112+i}], s[62:63]")
    A.label("L_next")
    for i in range(5): I(f"v_mov_b32 v{gq+i}, v{gq+6+i}")
    I(f"""v_mov_b32 v{offG}, v76
         v_add_u32 v78, 128, v78
         v_add_u32 v{aRr}, 4096, v{aRr}
         v_add_u32 v{offOut}, 0x100000, v{offOut}
         v_add_u32 v248, 0x100000, v248
         v_add_u32 v249, 0x100000, v249
         s_add_u32 s27, s27, 4
         s_cmp_lt_u32 s27, 8""")
    if cfg.stamps:
        I("s_cbranch_scc0 L_two")
        if nst[0] < 15: I(f"s_waitcnt lgkmcnt(0)\ns_mov_b32 s{64+2*nst[0]}, s94"); nst[0] += 1
        stamp()
        I("s_branch L_fin_loop")
        A.label("L_two")
        if nst[0] < 15: I(f"s_waitcnt lgkmcnt(0)\ns_mov_b32 s{64+2*nst[0]}, s94"); nst[0] += 1
        stamp()
    else: I("s_cbranch_scc1 L_fin_loop")
    I("s_cmp_eq_u32 s25, 0\ns_cbranch_scc1 L_fin_out")
    A.vm = []
    A.label("L_recv")
    I(f"""global_load_dwordx4 v[80:83], v213, s[62:63] sc1
         global_load_dwordx4 v[84:87], v121, s[62:63] sc1
         s_add_u32 s33, s33, 1
         s_cmp_gt_u32 s33, 0x100000
         s_cbranch_scc1 L_fin_out
         ds_write_b128 v{aOW}, v[80:83]
         v_max3_u32 v116, v80, v81, v82
         ds_write_b128 v{aOW}, v[84:87] offset:1088
         v_max3_u32 v117, v84, v85, v86
         v_max3_u32 v116, v116, v83, v87
         v_max_u32 v116, v116, v117
         v_cmp_eq_u32 vcc, -1, v116
         s_cbranch_vccnz L_recv""")
    stamp()
    for m in range(2):
        for i in (0, 2): I(f"ds_read2_b32 v[{88+4*m+i}:{89+4*m+i}], v{aOR} offset0:{16*i + 8*m} offset1:{16*i + 16 + 8*m}")
    I("global_store_dwordx4 v213, v[88:91], s[62:63]\nglobal_store_dwordx4 v121, v[92:95], s[62:63]")
    A.label("L_fin_out")
    if cfg.stamps:
        stamp(); I("s_waitcnt vmcnt(0)"); stamp()
    stamp_out()
    A.label("L_end")
    I("s_endpgm")
    tc, ti = tables()
    A.raw(".p2align 7\nL_tabc:")
    for i in range(0, len(tc), 8): A.raw(".long " + ", ".join("0x%x" % x for x in tc[i:i + 8]))
    A.raw("L_tabi:")
    for i in range(0, len(ti), 8): A.raw(".long " + ", ".join("0x%x" % x for x in ti[i:i + 8]))
    A.raw("L_fin:")
    A.raw(f""".section .rodata,"a"
.p2align 6
.amdhsa_kernel {KN}_kernel
  .amdhsa_next_free_vgpr 256
  .amdhsa_next_free_sgpr 102
  .amdhsa_accum_offset 256
  .amdhsa_group_segment_fixed_size 0
  .amdhsa_kernarg_size 144
  .amdhsa_user_sgpr_count 2
  .amdhsa_user_sgpr_kernarg_segment_ptr 1
  .amdhsa_system_sgpr_workgroup_id_x 1
.end_amdhsa_kernel""")
    lint(A.lines)
    sys.stderr.write(f"instructions {A.nins}, nops {A.nops}, lds {LDS_BYTES}\n")
    if cfg.align:
        A.lines, wid, nop = align8(A.text().split("\n"))
        sys.stderr.write(f"alignment: {wid} widened, {nop} nops\n")
    return A.text()

if __name__ == "__main__":
    out = sys.argv[1]
    for kv in sys.argv[2:]:
        k, v = kv.split("="); setattr(Cfg, k, eval(v))
    open(out, "w").write(gen())
```

```python
import sys
from asmlib import Asm, merge, align8
KN = "gated_mix__ssm_conv_s4d__ssm_conv_s4d__prompt"

class Cfg:
    stamps = False
    cycles = False
    padto = 1500
    probe = (0, 0)
    force_slow = False
    PF = 3
    fine = False
    align = True
    red_at = 50
    tile_at = 34
    pub_at = 110
    gate_at = 150
    gate_sp = 2
    gload_at = 60
    gather_at = 0
    wlow = False
    gout_at = 2
    wstep = 4
    gsleep = 1
    nofinal = False
    touch_at = 0
    touch2_at = 110
    lag01 = 5
    sprio = 1
    wout_hi = True
    lat = 5
    psleep = 4
    ptile = 5
    wout_after = -1
    rlag = 6
    horizon = 1000
    poll_at = 25
    stage_at = 5
    plow = False
    gather_early = False
    prio = 2

ROW = 272
SCRW = 57 * ROW
SCRS = 4 * SCRW
MOFS = 48000
WB = SCRS + 2048; WSTR = SCRW
W5O, W3O, W9O, W7O = 0, 3440, 6728, 8920
RB = 2048; OB = 13312
UB = 8 * SCRW; USTR = 4608
KB = UB + 2 * USTR; KSTR = 6656
RDS = 1344; R4O = 5376; R8O = 5888
FLAG = KB + 4 * KSTR
PRG = FLAG + 64
PRD = PRG + 128
LDS_BYTES = PRD + 32
P0 = 540
WS_CL, WS_HL = 0x7000, 0x5000
WS_LF, WS_HELLO, WS_G = 0x4000, 0x6000, 0x8000

def drow_hi(rho):
    q, hh, i = rho >> 3, (rho >> 2) & 1, rho & 3
    if q == 0: return 4 * hh + i
    if q == 1: return 4 * hh + 4 + i
    if q == 2: return 256 + 4 * hh + 2 * i
    return [[520, 516, 1032, 1544], [776, 772, 1288, 1800]][hh][i]
def hslot(rho):
    x = rho - 4 * (rho >= 8) - (rho >= 15) - 2 * (rho >= 20)
    return x ^ 4 if x < 8 else 31 - x if x in (11, 20) else x
HSLOT = {drow_hi(rho): hslot(rho) for rho in range(32) if rho not in (11, 15)}
assert len(HSLOT) == 25 and sorted(HSLOT.values()) == list(range(25))
HTREE = [(1, 0, 1), (2, 0, 2), (3, 2, 1), (4, 0, 4), (5, 4, 1), (6, 4, 2), (7, 6, 1), (8, 0, 8), (9, 8, 1), (10, 8, 2),
         (256, 0, 256), (258, 2, 256), (260, 4, 256), (262, 6, 256), (264, 8, 256), (266, 10, 256),
         (516, 4, 512), (520, 8, 512), (772, 516, 256), (776, 520, 256), (1032, 8, 1024), (1288, 264, 1024), (1544, 520, 1024), (1800, 776, 1024)]

def tables():
    comp, io = [], []
    for l in range(64):
        b, g = l & 15, l >> 4
        def frag(pred, val):
            return [(val if pred(8 * g + 2 * d) else 0) | (val if pred(8 * g + 2 * d + 1) else 0) << 16 for d in range(4)]
        comp.append(frag(lambda e: e in (b + 12, b + 13), 0xffff))
        t = []
        for tau, w in ((8, 2), (12, 1), (8, 4), (8, 3)):
            t += frag(lambda e: abs(tau + b - e) <= w, 0x3f80)
        pos = lambda v: 8 * (v + (v >> 4))
        t += [UB + 448 + 32 * b + 16 * g,
              WB + pos(2 + 4 * b + g), WB + pos(3 + 4 * b + g),
              WB + ((l >> 4) & 1) * WSTR + (W5O, W3O, W9O, W9O)[(l >> 2) & 3] + 8 * (l & 3),
              RB + 16 * (4 * (l >> 3) + (((l >> 1) & 3) ^ (l >> 4))) + 8 * (l & 1),
              WS_G + 128 * (l >> 2) + 8 * (l & 3),
              OB + 272 * (l >> 4) + 16 * (l & 15), OB + 272 * (l & 7) + 4 * (l >> 3)]
        io.append(t)
    def lay(tb):
        n = len(tb[0]) // 4
        return [tb[l][4 * k + j] & 0xffffffff for k in range(n) for l in range(64) for j in range(4)]
    return lay(comp), lay(io)

def lint(lines):
    from asmlib import Ins, regs_of
    ok = ("v_add_u32", "v_lshl_add_u32", "v_mov_b32", "v_lshlrev_b32", "v_min_u32", "v_xor_b32", "v_sub_u32", "v_subrev_u32", "v_cndmask_b32",
          "v_add3_u32", "v_mad_u32_u24", "v_add_lshl_u32")
    last, entry = {}, None
    for ln in "\n".join(lines).split("\n"):
        if ln.startswith("L_par:"): entry = dict(last)
        if ln.startswith("L_io:"): last = dict(entry_io)
        if not ln.startswith("    ") or ln.strip().startswith(";"): continue
        q = Ins(ln.strip())
        if q.text == "s_branch L_io": entry_io = dict(last)
        addr = None
        if q.kind == "vmem": addr = q.ops[1] if ("load" in q.mn or q.mn.startswith("buffer")) else q.ops[0]
        elif q.kind == "ds" and "addtid" not in q.mn: addr = q.ops[1] if q.mn.startswith("ds_read") else q.ops[0]
        if addr:
            w = last.get(regs_of(addr)[0])
            assert w and (w.mn.replace("_e64", "") in ok or (w.mn == "global_load_dwordx4" and "s[6:7]" in w.text)), (ln, w and w.text)
        for r in q.w: last[r] = q

def gen(cfg=Cfg):
    A = Asm(); I = A.I
    def run(stream):
        for t in stream:
            if callable(t): t()
            else: I(t)
    head = open("cdna_kernels/" + KN + ".s.ref").read().split("; Override launch")[0]
    A.raw(head.rstrip())
    A.raw(f"; @launch grid=(256,1,1) block=(512,1,1) lds={LDS_BYTES}")
    A.raw('.amdgcn_target "amdgcn-amd-amdhsa--gfx950"\n.text')
    A.raw(f".globl {KN}_kernel\n.p2align 8\n.type {KN}_kernel,@function\n{KN}_kernel:")
    nst = [0]
    def stamp():
        if cfg.stamps:
            if nst[0] < 15: I(f"{'s_memtime' if cfg.cycles else 's_memrealtime'} s[{64+2*nst[0]}:{65+2*nst[0]}]", track=False); nst[0] += 1
    def stamp_out():
        if cfg.stamps == 4:
            lab = f"L_pad{A.nins}"
            role, pk = cfg.probe
            I("s_waitcnt vmcnt(0) lgkmcnt(0)\nv_and_b32 v250, 7, v0\nv_lshlrev_b32 v250, 5, v250\nglobal_load_dword v251, v250, s[40:41] sc1\ns_waitcnt vmcnt(0)")
            A.vm = []
            I("v_readlane_b32 s96, v251, 0\ns_mov_b32 s98, 0\ns_mov_b32 s99, 0")
            for i in range(1, 8):
                I(f"v_readlane_b32 s97, v251, {i}\ns_sub_u32 s97, s97, s96\ns_max_i32 s98, s98, s97\ns_min_i32 s99, s99, s97")
            I("s_add_u32 s98, s98, s96\ns_add_u32 s99, s99, s96")
            mine = (role == "c") == (nst[0] < 12)
            if role == "skew": I("s_sub_u32 s98, s98, s99")
            elif role != "base" and mine: I(f"s_sub_u32 s98, s{64+2*pk}, s98\ns_max_i32 s98, s98, 0")
            else: I("s_mov_b32 s98, 0")
            I(f"s_mul_i32 s98, s98, 10\ns_add_u32 s98, s98, {cfg.padto}")
            A.label(lab)
            I("s_memrealtime s[96:97]", track=False)
            I(f"s_waitcnt lgkmcnt(0)\ns_sub_u32 s96, s96, s99\ns_cmp_lt_u32 s96, s98\ns_cbranch_scc1 {lab}")
        elif cfg.stamps == 3:
            lab = f"L_pad{A.nins}"
            pw, pk = cfg.probe
            I(f"s_waitcnt vmcnt(0) lgkmcnt(0)\ns_sub_u32 s98, s{64+2*pk}, s64\ns_mul_i32 s98, s98, 10\ns_lshl_b32 s97, s2, 3\ns_add_u32 s97, s97, s3")
            I(f"s_cmp_eq_u32 s97, {77*8+pw}\ns_cselect_b32 s98, s98, 0\ns_add_u32 s98, s98, {cfg.padto}")
            A.label(lab)
            I("s_memrealtime s[96:97]", track=False)
            I(f"s_waitcnt lgkmcnt(0)\ns_sub_u32 s96, s96, s64\ns_cmp_lt_u32 s96, s98\ns_cbranch_scc1 {lab}")
        elif cfg.stamps:
            n = nst[0]
            I("s_waitcnt lgkmcnt(0)\ns_lshl_b32 s97, s2, 3\ns_add_u32 s97, s97, s3\ns_lshl_b32 s97, s97, 6\ns_add_u32 s97, s97, 0x100000\nv_mov_b32 v250, s97")
            I("s_mov_b64 exec, 1")
            for i in range(16):
                I(f"v_mov_b32 v251, {f's{64+2*i}' if i < n else 's50' if i == 15 else 0}\nglobal_store_dword v250, v251, s[42:43] offset:{4*i}")

    vLR, vAI, vCR, vCI = 1, 2, 3, 4
    vDS, vCRd, vST0, vST1, vPL, vHL, vU0, vU1, vL16, vGR, vFL, vNR = range(176, 188)
    GX, GW, TR = 192, 200, 204
    vDT = 33
    stamp()
    I("s_cmp_ge_u32 s2, 0x100\ns_cbranch_scc1 L_end\ns_getpc_b64 s[6:7]")
    A.raw("L_pc:")
    I(f"""v_lshrrev_b32 v1, 6, v0
         s_andn2_b32 s4, s2, 7
         v_add_lshl_u32 v2, v1, s4, 7
         v_readfirstlane_b32 s3, v1
         v_min_u32 v2, L_fin-L_pc-4, v2
         global_load_dword v255, v2, s[6:7]
         s_bfe_u32 s4, s3, 0x10001
         s_mul_i32 s4, s4, 56
         s_add_u32 s52, s0, s4
         s_addc_u32 s53, s1, 0
         s_load_dwordx8 s[8:15], s[52:53], 8
         s_load_dwordx4 s[16:19], s[52:53], 40
         s_load_dwordx2 s[56:57], s[0:1], 0
         s_load_dwordx4 s[60:63], s[0:1], 112
         s_load_dwordx4 s[40:43], s[0:1], 128
         s_memrealtime s[50:51]
         v_and_b32 v0, 63, v0
         v_mov_b32 v28, 0
         v_mov_b32 v29, 0
         v_mov_b32 v30, 0
         v_mov_b32 v31, 0
         v_mov_b32 v{vFL}, {FLAG}
         s_and_b32 s48, s2, 7
         s_lshr_b32 s5, s2, 3
         s_lshl_b32 s44, s48, 5
         s_add_u32 s44, s44, s5
         s_and_b32 s45, s3, 3
         s_and_b32 s46, s3, 1
         s_lshl_b32 s4, s44, 1
         s_add_u32 s4, s4, s46
         s_lshl_b32 s4, s4, 8
         v_lshl_add_u32 v5, v0, 2, s4
         s_lshl_b32 s47, s44, 2
         s_mul_i32 s22, s3, {SCRW}
         s_mov_b32 m0, s22
         v_lshlrev_b32 v{vL16}, 4, v0
         v_lshrrev_b32 v6, 3, v0
         v_and_b32 v7, 0x70, v{vL16}
         v_lshl_add_u32 v6, v6, 10, v7
         v_and_b32 v7, 32, v0
         v_xor_b32 v6, v7, v6
         s_lshl_b32 s49, s48, 7
         s_lshl_b32 s4, s5, 16
         s_add_u32 s4, s4, s49
         s_lshl_b32 s23, s45, 14
         s_add_u32 s4, s4, s23
         v_add_u32 v{vDS}, s4, v6
         v_xor_b32 v{vGR}, 64, v{vDS}
         s_lshl_b32 s4, s46, 1
         s_add_u32 s4, s4, s47
         v_mov_b32 v7, s4
         v_mov_b32 v{vDT}, 0
         v_mov_b32 v61, 0
         s_mov_b32 s58, 0x200000
         s_mov_b32 s59, 0x20000
         s_mov_b32 s23, {8*1024 - 1024}""")
    A.wait(lg=0)
    if cfg.fine and cfg.fine < 6: stamp()
    I(f"""global_load_dword v{vLR}, v5, s[8:9]
         global_load_short_d16_hi v{vDT}, v7, s[16:17]
         global_load_dword v{vAI}, v5, s[10:11]
         s_cmp_ge_u32 s3, 4
         s_cbranch_scc0 L_par""")
    snap_c = A.snapshot(); nst_c = nst[0]
    I(f"""buffer_load_dwordx4 v[{TR}:{TR+3}], v{vDS}, s[56:59], 0 offen
         buffer_load_dwordx4 v[{TR+4}:{TR+7}], v{vGR}, s[56:59], s23 offen offset:1024
         s_lshl_b32 s4, s48, 5
         v_mov_b32 v188, s4
         s_or_b32 s4, s5, s45
         s_cbranch_scc1 L_io2
         s_or_b32 s50, s50, 1
         v_mov_b32 v190, s50
         s_mov_b64 exec, 1""")
    I("global_store_dword v188, v190, s[40:41] sc1", track=False)
    I("s_mov_b64 exec, -1")
    A.label("L_io2")
    I(f"""global_load_dword v{vCR}, v5, s[12:13]
         global_load_dword v{vCI}, v5, s[14:15]""")
    if cfg.fine == 2: stamp()
    I("s_branch L_io")
    snap_io = A.snapshot(); nst_io = nst[0]
    A.label("L_par", snap_c); nst[0] = nst_c
    if cfg.fine == 2: stamp()

    def consts():
        I("""s_mov_b32 s24, 0x3fb8aa3b
             s_mov_b32 s28, 0
             s_mov_b32 s29, 0x80000000
             v_mov_b32 v32, 0x3c00""")
    def dt_scale():
        I(f"""v_mul_f32 v{vDT}, s24, v{vDT}
             v_exp_f32 v{vDT}, v{vDT}
             v_cvt_pk_bf16_f32 v{vDT}, v{vDT}, v{vDT}
             v_lshlrev_b32 v{vDT}, 16, v{vDT}""")
    red = [f"v_and_b32 v34, 0x7fff7fff, v{vCR}", f"v_and_b32 v35, 0x7fff7fff, v{vCI}", "v_pk_max_u16 v34, v34, v35",
           "v_lshrrev_b32 v35, 16, v34", "v_and_b32 v34, 0xffff, v34", "v_max_u32 v34, v34, v35"]
    red += [f"v_max_u32_dpp v34, v34, v34 {m}" for m in
            ("row_shr:1 row_mask:0xf bank_mask:0xf", "row_shr:2 row_mask:0xf bank_mask:0xf", "row_shr:4 row_mask:0xf bank_mask:0xf",
             "row_shr:8 row_mask:0xf bank_mask:0xf", "row_bcast:15 row_mask:0xa bank_mask:0xf", "row_bcast:31 row_mask:0xc bank_mask:0xf")]
    red += ["v_readlane_b32 s34, v34, 63",
            "s_lshr_b32 s34, s34, 7\ns_max_u32 s34, s34, 11\ns_sub_u32 s36, 264, s34\ns_lshl_b32 s36, s36, 23\ns_mov_b32 s37, s36\n"
            "s_sub_u32 s35, s34, 9\ns_lshl_b32 s35, s35, 23"]
    ZA, ZB, TP = 36, 38, 40
    AB = 42
    E1, E2 = 46, 48
    Wr = {p: 50 + i for i, p in enumerate((1, 2, 4, 8, 16, 32, 64, 128, 256, 512, 1024))}
    Lr = {r: 144 + r for r in range(1, 16)}
    for p in (8, 16, 32, 64): Lr[p // 8] = Wr[p]
    TMP = [160, 161, 162, 163]
    Hk = {h: 164 + i for i, h in enumerate((0, 2, 4, 6, 8, 10, 264, 516, 520, 776))}
    def cm(dst, a, b, conj=False):
        if conj:
            return [f"v_pk_mul_f16 v{dst}, v{a}, v{b} op_sel_hi:[0,1] neg_hi:[0,1]",
                    f"v_pk_fma_f16 v{dst}, v{a}, v{b}, v{dst} op_sel:[1,1,0] op_sel_hi:[1,0,1]"]
        return [f"v_pk_mul_f16 v{dst}, v{a}, v{b} op_sel_hi:[0,1]",
                f"v_pk_fma_f16 v{dst}, v{a}, v{b}, v{dst} op_sel:[1,1,0] op_sel_hi:[1,0,1] neg_lo:[1,0,0]"]
    def sq(z):
        return [f"v_pk_mul_f32 v[{TP}:{TP+1}], v[{z}:{z+1}], v[{z}:{z+1}] op_sel_hi:[0,1]",
                f"v_pk_fma_f32 v[{z}:{z+1}], v[{z}:{z+1}], v[{z}:{z+1}], v[{TP}:{TP+1}] op_sel:[1,1,0] op_sel_hi:[1,0,1] neg_lo:[1,0,0]"]
    def half(h, ofs):
        up = (lambda d, s: f"v_and_b32 v{d}, 0xffff0000, v{s}") if h else (lambda d, s: f"v_lshlrev_b32 v{d}, 16, v{s}")
        S = [up(AB, vLR), f"v_mul_f32 v{AB}, s24, v{AB}", f"v_exp_f32 v{AB}, v{AB}", up(AB + 1, vAI),
             f"v_cvt_pk_bf16_f32 v{AB}, v{AB}, v{AB}", f"v_mul_f32 v{AB+1}, v{vDT}, v{AB+1}", f"v_lshlrev_b32 v{AB}, 16, v{AB}",
             f"v_mul_f32 v{AB+1}, 0.15915494, v{AB+1}", f"v_mul_f32_e64 v{AB}, -v{vDT}, v{AB}", f"v_fract_f32 v{TP}, v{AB+1}",
             f"v_mul_f32 v{AB}, s24, v{AB}", f"v_cos_f32 v{ZA}, v{TP}", f"v_exp_f32 v{E1}, v{AB}", f"v_sin_f32 v{ZA+1}, v{TP}",
             f"v_pk_mul_f32 v[{ZA}:{ZA+1}], v[{ZA}:{ZA+1}], v[{E1}:{E1+1}] op_sel_hi:[1,0]"]
        cv = lambda p, z: f"v_cvt_pk_f16_f32 v{Wr[p]}, v{z}, v{z+1}"
        wl = lambda r, v: f"ds_write_addtid_b32 v{v} offset:{ofs + r*ROW}"
        wh = lambda hh, v: f"ds_write_addtid_b32 v{v} offset:{ofs + (32+HSLOT[hh])*ROW}"
        S.append(cv(1, ZA))
        for p in (2, 4, 8, 16, 32, 64, 128, 256, 512, 1024):
            S += sq(ZA) + [cv(p, ZA)]
            if 8 <= p <= 128: S.append(wl(p // 8, Wr[p]))
        if h == 0 and cfg.prio == 1: S.append("s_setprio 0")
        k = 0
        for r in range(3, 32):
            top = 1 << (r.bit_length() - 1)
            if r == top: continue
            d = Lr[r] if r < 16 else TMP[k % 4]; k += 1
            S += cm(d, Lr[r - top], Wr[8 * top]) + [wl(r, d)]
        S += [up(TP, vCR), up(TP + 1, vCI), f"v_pk_mul_f32 v[{TP}:{TP+1}], v[{TP}:{TP+1}], s[36:37]",
              f"v_cvt_pk_f16_f32 v{Hk[0]}, v{TP}, -v{TP+1}", wh(0, Hk[0])]
        for hh, a, b in HTREE:
            d = Hk.get(hh) or TMP[k % 4]; k += 1
            S += cm(d, Hk[a], Wr[b], True) + [wh(hh, d)]
        return S

    FA, FB, KA = 64, 96, 128
    def tap_addr(aL, aH, aKW, aR4W, aR8W):
        I(f"""v_and_b32 v38, 31, v0
             v_lshrrev_b32 v39, 5, v0
             v_mov_b32 v43, {ROW}
             v_lshl_add_u32 v44, v39, 4, s22
             v_mad_u32_u24 v{aL}, v38, v43, v44
             v_cmp_le_u32 vcc, 8, v38
             v_cmp_le_u32 s[10:11], 15, v38
             v_cmp_le_u32 s[12:13], 20, v38
             v_cndmask_b32_e64 v46, 0, 4, vcc
             v_cndmask_b32_e64 v47, 0, 1, s[10:11]
             v_cndmask_b32_e64 v48, 0, 2, s[12:13]
             v_add3_u32 v46, v46, v47, v48
             v_sub_u32 v45, v38, v46
             v_cmp_gt_u32 vcc, 8, v45
             v_cmp_eq_u32 s[10:11], 11, v45
             v_cmp_eq_u32 s[12:13], 20, v45
             v_xor_b32 v46, 4, v45
             v_cndmask_b32 v45, v45, v46, vcc
             v_cndmask_b32_e64 v45, v45, 20, s[10:11]
             v_cndmask_b32_e64 v45, v45, 11, s[12:13]
             v_add_u32 v45, 32, v45
             v_mad_u32_u24 v{aH}, v45, v43, v44""")
        return f"""v_and_b32 v38, 31, v0
             v_lshrrev_b32 v39, 5, v0
             v_lshlrev_b32 v44, 3, v39
             v_lshl_add_u32 v44, v38, 4, v44
             s_add_u32 s4, s23, {2*P0 - 520}
             v_sub_u32 v{aKW}, s4, v44
             v_mov_b32 v63, s23""" + (f"""
             v_lshlrev_b32 v44, 2, v0
             s_add_u32 s4, s23, {R4O + 380}
             v_sub_u32 v{aR4W}, s4, v44
             v_lshlrev_b32 v44, 1, v0
             s_add_u32 s4, s23, {R8O + 130}
             v_sub_u32 v{aR8W}, s4, v44""" if aR4W else "")
    def with_l_reads(S, aL, ofs):
        last = max(i for i, t in enumerate(S) if isinstance(t, str) and t.endswith(f"offset:{ofs + 31*ROW}"))
        return S[:last + 1] + merge(S[last + 1:], [f"ds_read_b128 v[{FB+4*k}:{FB+4*k+3}], v{aL} offset:{32*k}" for k in range(8)], 4, 6)
    def h_reads(aH): run([f"ds_read_b128 v[{FA+4*k}:{FA+4*k+3}], v{aH} offset:{32*k}" for k in range(8)])
    def tap_mfma(give, vX, fill=()):
        for k in range(8):
            I(f"v_mfma_f32_32x32x16_f16 v[{KA}:{KA+15}], v[{FA+4*k}:{FA+4*k+3}], v[{FB+4*k}:{FB+4*k+3}], " + (f"v[{KA}:{KA+15}]" if k else "0"))
            n = -(-len(fill) // (8 - k)); run(fill[:n]); fill = fill[n:]
        I(f"ds_write_b128 v{vX}, v[{give}:{give+3}]\nds_write_b128 v{vX}, v[{give+4}:{give+7}] offset:1024\ns_waitcnt lgkmcnt(0)")
        A.lg = []
    def tap_sum(keep):
        for i in range(0, 8, 2): I(f"v_pk_add_f32 v[{keep+i}:{keep+i+1}], v[{keep+i}:{keep+i+1}], v[{152+i}:{153+i}]")
        for i in range(0, 8, 2): I(f"v_pk_mul_f32 v[{keep+i}:{keep+i+1}], v[{keep+i}:{keep+i+1}], v[62:63] op_sel_hi:[1,0]")
    o = lambda i: f"v{KA+i}"
    Q = 144
    def wcopy(aKW, q, pairs, s_, lagoff):
        (a, b), (c, d) = pairs
        I(f"v_cvt_pk_bf16_f32 v{q}, {a}, {b}\nv_cvt_pk_bf16_f32 v{q+1}, {c}, {d}")
        I(f"ds_write_b64 v{aKW}, v[{q}:{q+1}] offset:{520 + s_*RDS - (0 if s_ == 3 else 8) - 2*lagoff}")

    T = 8
    aL, aH, aKW, aR4W, aR8W, aMD, aM4, aM8, aX, aW2, aW3, aR = range(T, T + 12)
    mSp = T + 12
    aW2b, aW3b = 5, 6
    vXC, vPR = aR4W, aR8W
    if cfg.prio == 1: I("s_setprio 2")
    I(f"global_load_dword v{vCR}, v5, s[12:13]\nglobal_load_dword v{vCI}, v5, s[14:15]\nglobal_load_short_d16_hi v61, v7, s[18:19]")
    if cfg.fine == 2: stamp()
    I(f"""s_add_u32 s6, s6, L_tabc-L_pc
         s_addc_u32 s7, s7, 0
         s_mul_i32 s23, s3, {KSTR}
         s_add_u32 s23, s23, {KB}
         v_add_u32 v7, s23, v{vL16}
         v_lshl_add_u32 v6, v0, 3, s23""")
    for k in range(6): I(f"ds_write_b128 v7, v[28:31] offset:{1024*k}")
    I("ds_write_b64 v6, v[28:29] offset:6144")
    consts()
    I(f"""ds_write_addtid_b32 v32 offset:0
         s_mul_i32 s30, s46, {USTR}
         s_mul_i32 s31, s46, {WSTR}
         s_lshl_b32 s4, s3, 2
         s_add_u32 s4, s4, {PRG}
         v_mov_b32 v240, s4
         v_min_u32 v241, 0x70, v{vL16}
         v_add_u32 v241, s4, v241
         ds_write_b32 v241, v28
         v_subrev_u32 v241, 16, v240
""")
    I(f"""v_and_b32 v36, 15, v0
         v_lshrrev_b32 v37, 4, v0
         v_and_b32 v40, 3, v0
         v_bfe_u32 v41, v0, 2, 2
         v_lshlrev_b32 v42, 4, v37
""")
    I(tap_addr(aL, aH, aKW, None, None))
    I(f"""         v_mul_u32_u24 v44, {RDS + 2}, v40
         v_lshlrev_b32 v45, 1, v36
         v_sub_u32 v45, v42, v45
         s_add_u32 s4, s23, {2*(P0 - 16) - 1024}
         v_add3_u32 v{aMD}, v44, v45, s4
         v_lshlrev_b32 v45, 3, v36
         v_sub_u32 v45, v42, v45
         s_add_u32 s4, s23, {R4O + 120}
         v_add_u32 v{aM4}, s4, v45
         v_and_b32 v44, 1, v0
         v_mul_u32_u24 v44, 388, v44
         v_lshlrev_b32 v45, 2, v36
         v_sub_u32 v45, v42, v45
         s_add_u32 s4, s23, {R8O + 64}
         v_add3_u32 v{aM8}, v44, v45, s4
         v_lshl_add_u32 v44, v36, 5, v42
         s_add_u32 s4, s30, {UB}
         v_add_u32 v{aX}, s4, v44
         v_bfe_u32 v44, v0, 1, 2
         v_xor_b32 v44, v44, v37
         v_lshl_add_u32 v44, v36, 2, v44
         s_add_u32 s4, s22, {RB}
         v_lshl_add_u32 v{aR}, v44, 4, s4
         ; transposing reads of the box sums: granule v -> byte 8*(v + (v>>4)); odd rows come from W3 / W7
         v_and_b32 v44, 1, v41
         v_mul_u32_u24 v45, {W3O - W5O}, v44
         s_add_u32 s4, s31, {WB + W5O}
         v_add_u32 v45, s4, v45
         v_lshl_add_u32 v46, v37, 3, v41
         v_add_u32 v46, v46, v40
         v_lshrrev_b32 v47, 4, v46
         v_add_u32 v47, v47, v46
         v_lshl_add_u32 v{aW2}, v47, 3, v45
         v_add_u32 v46, 4, v46
         v_lshrrev_b32 v47, 4, v46
         v_add_u32 v47, v47, v46
         v_lshl_add_u32 v{aW2b}, v47, 3, v45
         v_mul_u32_u24 v45, {W7O - W9O}, v44
         s_add_u32 s4, s31, {WB + W9O}
         v_add_u32 v45, s4, v45
         v_lshl_add_u32 v46, v41, 1, v42
         v_add_u32 v46, v46, v40
         v_lshrrev_b32 v47, 4, v46
         v_add_u32 v47, v47, v46
         v_lshl_add_u32 v{aW3}, v47, 3, v45
         v_add_u32 v46, 8, v46
         v_lshrrev_b32 v47, 4, v46
         v_add_u32 v47, v47, v46
         v_lshl_add_u32 v{aW3b}, v47, 3, v45
         v_add_u32 v{vXC}, s22, v{vL16}
         s_lshl_b32 s4, s3, 3
         s_add_u32 s4, s4, {PRD}
         v_mov_b32 v{vPR}, s4
         s_lshl_b32 s4, s44, 2
         s_add_u32 s4, s4, s45
         s_lshl_b32 s55, s4, 11
         v_add_u32 v{vGR}, s55, v{vL16}
         s_lshl_b32 s4, s5, 14
         s_lshl_b32 s8, s45, 19
         s_add_u32 s4, s4, s8
         s_add_u32 s4, s4, s49
         v_lshl_add_u32 v253, v36, 10, s4""")
    touch = "global_load_dword v254, v253, s[62:63]"
    if cfg.touch_at == 0: I(touch)
    gate = []
    for d in range(4):
        gate.append("\n".join(f"v_dot2_f32_bf16 v{212+rw}, v{GX+4*rw+d}, v{GW+d}, {f'v{212+rw}' if d else 0}" for rw in range(2)))
    gate += [None, "v_permlane32_swap_b32 v212, v213", "v_add_f32 v212, v212, v213"]
    gate += [f"v_add_f32_dpp v212, v212, v212 row_shr:{n} row_mask:0xf bank_mask:0xf bound_ctrl:1" for n in (1, 2, 4, 8)]
    gate += ["v_add_f32_dpp v212, v212, v212 row_bcast:15 row_mask:0xa bank_mask:0xf",
             "v_cvt_pk_bf16_f32 v212, v212, v212\nv_lshlrev_b32 v212, 16, v212\nv_mul_f32 v212, 0xbfb8aa3b, v212\nv_exp_f32 v212, v212",
             "v_add_f32 v212, 1.0, v212\nv_rcp_f32 v212, v212", "v_cvt_pk_bf16_f32 v212, v212, v212",
             "v_readlane_b32 s38, v212, 31\nv_readlane_b32 s39, v212, 63\ns_pack_ll_b32_b16 s38, s38, s39\nv_mov_b32 v214, s38"]
    gate = [t for t in gate if t]
    gate.append("ds_write_b32 v241, v214")
    gload = f"""buffer_load_dwordx4 v[{GX}:{GX+3}], v{vGR}, s[56:59], 0 offen
             buffer_load_dwordx4 v[{GX+4}:{GX+7}], v{vGR}, s[56:59], 0 offen offset:1024
             global_load_dwordx4 v[{GW}:{GW+3}], v{vL16}, s[60:61]"""
    if cfg.gload_at < 0: I(gload)
    if cfg.fine and cfg.fine < 6: stamp()
    dt_scale()
    S0 = half(0, 0)
    I(S0[0]); stamp()
    S0 = merge(S0[1:], red + [f"v_mul_f32 v62, s35, v{vDT}"], cfg.red_at, 3)
    if cfg.gload_at >= 0: S0.insert(cfg.gload_at, gload)
    if cfg.touch_at > 0: S0.insert(cfg.touch_at, touch)
    S0 = S0[:cfg.gate_at] + merge(S0[cfg.gate_at:], gate, 0, cfg.gate_sp)
    S0.insert(len(S0) - 12, f"global_load_dwordx4 v[{mSp}:{mSp+3}], v{vL16}, s[6:7]")
    run(with_l_reads(S0, aL, 0))
    stamp()
    h_reads(aH)
    tap_mfma(KA + 8, vXC)
    I("s_barrier")
    stamp()
    conv_mark = len(A.lines)
    q4 = lambda r: f"v[{r}:{r+3}]"
    XS = [[28, 32, 36, 40, 44, 48, 52, 56], [168, 172, 176, 180, 224, 228, 232, 236]]
    rdX = lambda c, n: f"ds_read_b128 {q4(XS[c & 1][n])}, v{aX} offset:{32*(16*c + 2*n)}"
    def flagwait(name, off, first=True):
        A.label(f"L_{name}chk")
        I("v_min3_u32 v249, v249, v250, v251")
        if first: I("v_min_u32 v249, v248, v249")
        I(f"v_cmp_eq_u32 vcc, 0, v249\ns_cbranch_vccz L_{name}ok")
        sn = A.snapshot()
        I(f"ds_read_b128 v[248:251], v{vFL} offset:{off}\ns_waitcnt lgkmcnt(0)\ns_branch L_{name}chk")
        A.label(f"L_{name}ok", sn)
    if cfg.prio and cfg.plow: I("s_setprio 2")
    I(f"""ds_read_b128 v[152:155], v{vXC} offset:{SCRS}
         ds_read_b128 v[156:159], v{vXC} offset:{SCRS + 1024}
         ds_read_b128 v[248:251], v{vFL}""")
    tap_sum(KA)
    stamp()
    I(f"s_mov_b64 exec, 1\nv_add_f32 {o(0)}, v61, {o(0)}\ns_mov_b64 exec, s[28:29]\nv_mov_b32 {o(5)}, {o(4)}\ns_mov_b64 exec, -1")
    for q, pr, s_ in ((Q, ((o(3), o(2)), (o(1), o(0))), 3), (Q + 2, ((o(4), o(3)), (o(2), o(1))), 0),
                      (Q + 4, ((o(5), o(4)), (o(3), o(2))), 1), (Q + 6, ((o(6), o(5)), (o(4), o(3))), 2)):
        wcopy(aKW, q, pr, s_, 0)
    I(f"""v_cvt_pk_bf16_f32 v{Q+16}, {o(0)}, 0
          s_mov_b64 exec, 1
          ds_write_b32 v63, v{Q+16} offset:{0*RDS + 2*P0}
          ds_write_b32 v63, v{Q+1} offset:{1*RDS + 2*P0}
          ds_write_b32 v63, v{Q+3} offset:{2*RDS + 2*P0}
          ds_write_b32 v63, v{Q+16} offset:{2*RDS + 2*P0 + 4}
          s_mov_b64 exec, -1""")
    flagwait("u", 0)
    if cfg.prio and cfg.plow: I("s_setprio 0")
    stamp()
    ACC = lambda c: 192 + 4 * c
    WAB = [244, 252, 188]
    reg = {}
    for mu in range(0, 34, 2): reg["M", mu] = 64 + 2 * mu if mu < 32 else 24
    for i in range(3):
        for f in range(2): reg["M4", i, f] = 144 + 8 * i + 4 * f
    for i in range(1, 5): reg["M8", i] = 128 + 4 * (i - 1)
    for c in range(8):
        for n in range(8): reg["X", c, n] = XS[c & 1][n]
    reg["Sp",] = mSp
    near = lambda c: [(c, ("M", 14 - 2 * n), ("X", c, n)) for n in range(8)]
    far = lambda c: [(c, ("M", 30 - 2 * n), ("X", c - 1, n)) for n in range(8)]
    tail = lambda c: ([(c + 2, ("M", 32), ("X", c, 7))] if c < 6 else []) + ([(c + 4, ("Sp",), ("X", c, 7))] if c < 4 else [])
    wk = [0]
    def wtok(*t):
        reg[t] = WAB[wk[0] % 3]; wk[0] += 1
        if t[0] == "W2": return [(c, t, ("M4", t[1] - c + 4, t[2])) for c in range(t[1] + 2, min(t[1] + 5, 8))]
        return [(c, t, ("M8", t[1] - c + 8)) for c in range(t[1] + 4, 8)]
    def zipm(a, b):
        out = []
        for n in range(max(len(a), len(b))): out += a[n:n + 1] + b[n:n + 1]
        return out
    MM = zipm(near(0), near(1)) + zipm(far(1), far(2)) + [tail(0)[0], tail(1)[0]]
    wplan = {3: [("W2", 0, 0), ("W2", 0, 1), ("W2", 1, 0), ("W2", 1, 1)], 4: [("W2", 2, 0), ("W2", 2, 1), ("W3", 0)],
             5: [("W2", 3, 0), ("W2", 3, 1), ("W3", 1)], 6: [("W2", 4, 0), ("W2", 4, 1), ("W3", 2)], 7: [("W2", 5, 0), ("W2", 5, 1), ("W3", 3)]}
    if cfg.wstep == 4:
        wplan = {4: wplan[3] + [("W3", 0)], 5: wplan[4][:2] + wplan[5][:2] + [("W3", 1)], 6: wplan[6], 7: wplan[7]}
    for c in range(2, 8):
        body = zipm(near(c), far(c + 1) if c < 7 else [])
        pairs = [body[k:k + (2 if c < 7 else 1)] for k in range(0, len(body), 2 if c < 7 else 1)]
        ws = [wtok(*t) for t in wplan.get(c, [])]
        if c == 2: MM += pairs[0] + [tail(0)[1], tail(1)[1]]; pairs = pairs[1:]
        for grp in merge(pairs, ws, 1, 2 if len(ws) < 5 else 1): MM += grp
        MM += tail(c)
    first, lastu, lastacc = {}, {}, {}
    for k, (c, a, b) in enumerate(MM):
        for t in (a, b): first.setdefault(t, k); lastu[t] = k
        lastacc[c] = k
    LAT = cfg.lat
    ops = []
    class Op:
        def __init__(o, text, kind, early=-1, late=10 ** 6, after=()):
            o.text, o.kind, o.early, o.late, o.after, o.done = text, kind, early, late, list(after), None
            ops.append(o)
    def chain(items, after=()):
        prev = list(after); out = []
        for text, kind in items:
            o = Op(text, kind, after=prev); prev = [o]; out.append(o)
        return out
    def load(tok, texts, after=()):
        prevs = [lastu[t] for t in lastu if t != tok and reg[t] == reg[tok] and lastu[t] < first[tok]]
        return [Op(t, "r", early=max(prevs, default=-1), late=first[tok] - LAT, after=after) for t in texts]
    def rd64(r, addr, off): return [f"ds_read_b64 v[{r}:{r+1}], v{addr} offset:{off}", f"ds_read_b64 v[{r+2}:{r+3}], v{addr} offset:{off+8}"]
    def rdtr(r, ad0, ad1, off): return [f"ds_read_b64_tr_b16 v[{r}:{r+1}], v{ad0} offset:{off}", f"ds_read_b64_tr_b16 v[{r+2}:{r+3}], v{ad1} offset:{off}"]
    for mu in range(14, -1, -2): load(("M", mu), rd64(reg["M", mu], aMD, 1024 - 32 * mu))
    def farwait():
        A.label("L_pchk")
        I("v_cmp_eq_u32 vcc, 0, v243\ns_cbranch_vccz L_pok")
        sn = A.snapshot()
        I(f"ds_read_b64 v[242:243], v{vPR}\ns_waitcnt lgkmcnt(0)\ns_branch L_pchk")
        A.label("L_pok", sn)
    pr = Op(f"ds_read_b64 v[242:243], v{vPR}", "r"); pr.gap = 3
    pc = Op(farwait, "v", after=[pr])
    for mu in list(range(30, 14, -2)) + [32]: load(("M", mu), rd64(reg["M", mu], aMD, 1024 - 32 * mu), [pc])
    sp = chain([(f"v_and_b32 v{mSp}, v242, v{mSp}\nv_and_b32 v{mSp+1}, v242, v{mSp+1}", "v"),
                (f"v_and_b32 v{mSp+2}, v242, v{mSp+2}\nv_and_b32 v{mSp+3}, v242, v{mSp+3}", "v")], [pc])
    sp[-1].late = first["Sp",] - 2
    for i in (2, 1, 0):
        for f in (0, 1): load(("M4", i, f), rd64(reg["M4", i, f], aM4, 128 * i + 64 * f), [pc])
    for i in (4, 3, 2, 1): load(("M8", i), rd64(reg["M8", i], aM8, 64 * (i - 1)), [pc])
    for c in range(2):
        for n in range(8): load(("X", c, n), [rdX(c, n)])
    for c in range(2, 8):
        for n in range(8): load(("X", c, n), [rdX(c, n)])
    fr = Op(f"ds_read_b128 v[248:251], v{vFL} offset:32", "r")
    fc = Op(lambda: flagwait("w", 32), "v", after=[fr]); fr.gap = 4
    for t in [t for t in first if t[0] in ("W2", "W3")]:
        load(t, rdtr(reg[t], aW2, aW2b, 544 * t[1] + 272 * t[2]) if t[0] == "W2" else rdtr(reg[t], aW3, aW3b, 544 * t[1]), [fc])
    def flagw(c):
        I(f"ds_write_b32 v240, v240 offset:{16*c}")
        if cfg.stamps and (c in (0, 1, 3, 7) or cfg.fine == 6): stamp()
    for c in range(8):
        a = Op(f"ds_write_b64 v{aR}, v[{ACC(c)}:{ACC(c)+1}] offset:{1024*c}", "w64", early=lastacc[c] + 2, late=lastacc[c] + cfg.rlag)
        a2 = Op(f"ds_write_b64 v{aR}, v[{ACC(c)+2}:{ACC(c)+3}] offset:{1024*c+8}", "w64", after=[a], late=lastacc[c] + cfg.rlag + 2)
        Op(lambda c=c: flagw(c), "w32", after=[a2], late=lastacc[c] + cfg.rlag + 4)
    for _ in range(len(ops)):
        for x in ops:
            for p in x.after: p.late = min(p.late, x.late - getattr(p, "gap", 1))
    touched = set(); busy = -1; extra = 0
    def ready(x, g): return x.done is None and x.early <= g and all(p.done is not None and p.done + getattr(p, "gap", 0) <= g for p in x.after)
    for g in range(-1, len(MM)):
        if g >= 0:
            c, a, b = MM[g]
            src = q4(ACC(c)) if c in touched else "0"; touched.add(c)
            I(f"v_mfma_f32_16x16x32_bf16 {q4(ACC(c))}, {q4(reg[a])}, {q4(reg[b])}, {src}")
        n = 0
        while True:
            cand = sorted((x for x in ops if ready(x, g)), key=lambda x: x.late)
            due = [x for x in cand if x.late <= g]
            if n == 0 and g >= 0 and not due:
                cand = [x for x in cand if not (x.kind[0] == "w" and g < busy) and x.late - g < cfg.horizon]
                pick = cand[0] if cand else None
            else: pick = due[0] if due else None
            if pick is None: break
            run([pick.text]); pick.done = g; n += 1
            if pick.kind == "w128": busy = g + 4
            elif pick.kind == "w64": busy = max(busy, g + 2)
        if g >= 0: extra += max(0, n - 1)
    for x in sorted((x for x in ops if x.done is None), key=lambda x: x.late): run([x.text])
    sys.stderr.write(f"conv: {len(MM)} MFMAs, {len(ops)} side ops, {extra} share a gap\n")
    from asmlib import Ins
    live = set()
    for ln in A.lines[conv_mark:]:
        if ln.endswith(":") or ln.strip().startswith(";"): continue
        q = Ins(ln.strip())
        if q.kind == "mfma": assert "32x32" in q.mn or set(q.A + q.B) <= live, ln
        elif q.mn.startswith("ds_read") or q.mn == "v_and_b32": live |= set(q.w)
        else: live -= set(q.w)
    stamp_out()
    I("s_endpgm")

    nst[0] = nst_io
    A.label("L_io", snap_io)
    if cfg.fine == 2: stamp()
    BND = 8
    aXio, aWW, aWW3, aZ, aRr, offG, aOW, aOR = range(24, 32)
    aUW, offOut = 246, 247
    vCR1 = 189
    I(f"""s_getreg_b32 s54, hwreg(HW_REG_XCC_ID, 0, 4)
         ; column reads / transposed stores: lane = 4*j + q
         v_and_b32 v34, 3, v0
         v_lshrrev_b32 v35, 4, v0
         v_lshlrev_b32 v36, 1, v34
         v_xor_b32 v35, v35, v36
         v_and_b32 v36, 12, v0
         v_lshl_add_u32 v35, v35, 4, v36
         v_lshl_add_u32 v35, v34, 9, v35
         v_xor_b32 v36, 64, v35
         v_add_u32 v{vCRd}, s22, v35
         v_add_u32 v{vCR1}, s22, v36
         v_lshrrev_b32 v35, 2, v0
         v_lshlrev_b32 v36, 4, v34
         v_lshl_add_u32 v35, v35, 14, v36
         s_lshr_b32 s4, s5, 3
         s_lshl_b32 s4, s4, 9
         s_and_b32 s23, s5, 7
         s_lshl_b32 s23, s23, 1
         s_add_u32 s4, s4, s23
         s_lshr_b32 s23, s45, 1
         s_add_u32 s4, s4, s23
         s_lshl_b32 s4, s4, 10
         s_lshl_b32 s23, s46, 6
         s_add_u32 s4, s4, s23
         s_add_u32 s4, s4, s49
         v_add_u32 v{vST0}, s4, v35
         v_add_u32 v{vST1}, 0x40000, v{vST0}
         s_lshl_b32 s4, s48, 9
         s_lshl_b32 s23, s45, 7
         s_add_u32 s4, s4, s23
         s_add_u32 s4, s4, {WS_LF}
         v_and_b32 v34, 31, v0
         v_lshl_add_u32 v{vPL}, v34, 2, s4
         s_add_u32 s4, s49, {WS_HL}
         v_lshl_add_u32 v212, v34, 2, s4
         v_cmp_gt_u32 vcc, 32, v0
         v_cndmask_b32 v35, v212, v{vPL}, vcc
         global_load_dword v{vNR}, v35, s[42:43] sc1
         v_add_u32 v223, s22, v{vL16}
         v_lshrrev_b32 v35, 3, v0
         v_and_b32 v36, 0x70, v{vL16}
         v_lshl_add_u32 v213, v35, 10, v36
         s_lshl_b32 s4, s5, 14
         s_add_u32 s4, s4, s49
         s_lshr_b32 s23, s45, 1
         s_lshl_b32 s23, s23, 19
         s_add_u32 s23, s23, s4
         s_lshl_b32 s8, s46, 13
         s_add_u32 s23, s23, s8
         v_add_u32 v{vU0}, s23, v213
         v_add_u32 v{vU1}, 0x100000, v{vU0}
         s_lshl_b32 s23, s45, 19
         s_add_u32 s4, s4, s23
         v_add_u32 v213, s4, v213
         ; own flag word, hello words
         s_lshl_b32 s4, s48, 9
         s_bfe_u32 s23, s5, 0x20002
         s_lshl_b32 s23, s23, 7
         s_add_u32 s4, s4, s23
         s_lshr_b32 s23, s5, 4
         s_lshl_b32 s23, s23, 6
         s_add_u32 s4, s4, s23
         s_and_b32 s23, s5, 3
         s_lshl_b32 s23, s23, 4
         s_add_u32 s4, s4, s23
         s_lshl_b32 s23, s45, 2
         s_add_u32 s4, s4, s23
         s_add_u32 s4, s4, {WS_LF}
         v_mov_b32 v216, s4
         s_lshl_b32 s26, s45, 9
         s_add_u32 s4, s26, {UB + 480}
         v_lshl_add_u32 v{aUW}, v0, 3, s4
         s_lshl_b32 s4, s45, 2
         s_add_u32 s4, s4, {FLAG}
         v_mov_b32 v235, s4
         v_mov_b32 v234, 1
         v_mov_b32 v232, 0
         v_mov_b32 v233, 0
         ds_write_b32 v235, v232
         ds_write_b32 v235, v232 offset:32
         s_cmp_lg_u32 s45, 0
         s_cbranch_scc1 L_io5
         v_subrev_u32 v72, 480, v{aUW}
         ds_write_b64 v72, v[232:233]
         ds_write_b64 v72, v[232:233] offset:{USTR}""")
    A.label("L_io5")
    sL, sH, sKW, sR4, sR8, sPR = range(240, 246)
    I(f"""s_lshl_b32 s4, s45, 3
         s_add_u32 s4, s4, {PRD}
         v_mov_b32 v{sPR}, s4
         ds_write_b64 v{sPR}, v[232:233]""")
    late = f"""s_mul_i32 s23, s45, {KSTR}
         s_add_u32 s23, s23, {KB}
         """ + tap_addr(sL, sH, sKW, sR4, sR8) + f"""
         s_add_u32 s4, s47, {WS_HELLO}
         v_mov_b32 v218, s4
         v_add_u32 v{vHL}, {WS_HELLO - WS_HL}, v212
         ; cut
         s_add_u32 s9, s45, 3
         s_and_b32 s9, s9, 3
         s_lshl_b32 s4, s9, 9
         v_add_u32 v{aXio}, s4, v{aXio}
         s_mul_i32 s4, s9, 544
         v_add_u32 v{aWW}, s4, v{aWW}
         v_add_u32 v{aWW3}, s4, v{aWW3}
         s_lshl_b32 s4, s45, 10
         v_add_u32 v{aRr}, s4, v{aRr}
         s_lshl_b32 s4, s45, 12
         v_add_u32 v{offG}, s4, v{offG}
         v_add_u32 v{aOW}, s22, v{aOW}
         v_add_u32 v{aOR}, s22, v{aOR}
         ; send addresses: rows 2*lane.. of tile w -> 16-row units, gathered by workgroup 16*(w&1) + 8*h + (lane>>3)
         v_lshrrev_b32 v36, 3, v0
         v_and_b32 v37, 7, v0
         v_lshlrev_b32 v37, 3, v37
         v_lshl_add_u32 v36, v36, 14, v37
         s_lshl_b32 s4, s46, 18
         s_lshr_b32 s8, s45, 1
         s_lshl_b32 s8, s8, 19
         s_add_u32 s4, s4, s8
         s_lshr_b32 s8, s5, 1
         s_lshl_b32 s8, s8, 10
         s_add_u32 s4, s4, s8
         s_and_b32 s8, s5, 1
         s_lshl_b32 s8, s8, 6
         s_add_u32 s4, s4, s8
         s_add_u32 s4, s4, s49
         v_add_u32 v248, s4, v36
         v_add_u32 v249, 0x20000, v248
         """
    late = [t.strip() for t in late.split("\n") if t.strip() and not t.strip().startswith(";")]
    I(f"""s_add_u32 s6, s6, L_tabi-L_pc+2048
         s_addc_u32 s7, s7, 0
         s_mov_b32 s30, 0x05040100
         s_mov_b32 s31, 0x07060302
         s_sub_u32 s23, s22, {MOFS}""")
    consts()
    I("s_mov_b32 m0, s23")
    if cfg.prio: I("s_setprio 1")
    if cfg.fine == 2: stamp()
    dt_scale()
    def tile():
        I(f"ds_write_b128 v223, v[{TR}:{TR+3}]\nds_write_b128 v223, v[{TR+4}:{TR+7}] offset:1024")
        stamp()
        for Jp in range(2):
            for i in (0, 2): I(f"ds_read2_b32 v[{TR+4*Jp+i}:{TR+4*Jp+i+1}], v{(vCRd, vCR1)[Jp]} offset0:{32*i} offset1:{32*(i+1)}")
        I(f"ds_write_addtid_b32 v32 offset:{MOFS}")
    def tile2():
        I(f"""global_store_dwordx4 v{vST0}, v[{TR}:{TR+3}], s[62:63]
             global_store_dwordx4 v{vST1}, v[{TR+4}:{TR+7}], s[62:63]
             global_load_dword v215, v188, s[40:41] sc1""")
    def publish():
        stamp()
        I("s_waitcnt vmcnt(0)"); A.vm = []
        I("v_cmp_eq_u32 vcc, 0, v215\ns_cbranch_vccz L_io4")
        A.label("L_io3")
        I("s_sleep 2")
        I("global_load_dword v215, v188, s[40:41] sc1", track=False)
        I("s_waitcnt vmcnt(0)\nv_cmp_eq_u32 vcc, 0, v215\ns_cbranch_vccnz L_io3")
        A.label("L_io4")
        I(f"""v_lshl_add_u32 v219, s54, 1, v215
             s_mov_b64 exec, 1
             global_store_dword v216, v219, s[42:43]
             s_mov_b64 exec, -1""")
        stamp()
    tabl = [f"global_load_dwordx4 v[{BND+4*k}:{BND+4*k+3}], v{vL16}, s[6:7] offset:{1024*k - 2048}" for k in range(6)]
    U1, U2 = 224, 228
    uload = f"""global_load_dwordx4 v[{U1}:{U1+3}], v{vU0}, s[62:63] sc1
             global_load_dwordx4 v[{U2}:{U2+3}], v{vU1}, s[62:63] sc1"""
    def hello(tag):
        I(f"s_cmp_lg_u32 s45, 0\ns_cbranch_scc1 L_hi{tag}\ns_mov_b64 exec, 1\nv_add_u32 v222, {32 if tag == 'a' else 0}, v219")
        I("global_store_dword v218, v222, s[42:43] sc1", track=False)
        I("s_mov_b64 exec, -1")
        A.label(f"L_hi{tag}")
    def try_u():
        I("s_waitcnt vmcnt(0)"); A.vm = []
        I(f"v_cmp_ne_u32 vcc, v221, v219\ns_mov_b32 s25, 0")
        I("s_branch L_try0" if cfg.force_slow else "s_cbranch_vccnz L_try0")
        I(uload + "\ns_mov_b32 s25, 1")
        A.label("L_try0")
        stamp()
    def fetch_u():
        I("s_mov_b32 s33, 0")
        A.label("L_poll")
        I(f"global_load_dword v221, v{vPL}, s[42:43] sc1\ns_add_u32 s33, s33, 1\nv_cmp_ne_u32 vcc, v221, v219")
        if not cfg.force_slow: I("s_cbranch_vccz L_fast")
        I(f"""s_and_b32 s4, s33, 15
             s_cbranch_scc1 L_poll""")
        hello("a")
        I(f"""global_load_dword v222, v{vHL}, s[42:43] sc1
             s_cmp_gt_u32 s33, 0x40000
             s_cbranch_scc1 L_slow
             v_sub_u32 v222, v222, v215
             v_bfe_u32 v220, v222, 1, 4
             v_and_b32 v222, 0xffffffc1, v222
             v_cmp_ne_u32 s[12:13], s54, v220
             v_cmp_ne_u32 vcc, 0, v222
             s_cbranch_vccnz L_poll""")
        if not cfg.force_slow: I("s_cmp_eq_u64 s[12:13], 0\ns_cbranch_scc1 L_poll")
        A.label("L_slow")
        I(f"""s_lshl_b32 s4, s45, 18
             s_add_u32 s4, s4, s47
             v_lshl_add_u32 v222, v0, 12, s4
             s_mov_b32 s23, 0x100000""")
        for base, so in ((U1, "0"), (U2, "s23")):
            for j in range(4): I(f"buffer_load_dword v{base+j}, v222, s[56:59], {so} offen offset:{1024*j}")
        I("s_waitcnt vmcnt(0)\ns_branch L_have")
        A.vm = []
        A.label("L_fast")
        I(uload)
        A.label("L_have")
    def stage():
        for base, off in ((U1, 0), (U2, 2048)):
            I(f"""v_perm_b32 v236, v{base+1}, v{base}, s30
                  v_perm_b32 v237, v{base+3}, v{base+2}, s30
                  v_perm_b32 v238, v{base+1}, v{base}, s31
                  v_perm_b32 v239, v{base+3}, v{base+2}, s31
                  ds_write_b64 v{aUW}, v[236:237] offset:{off}
                  ds_write_b64 v{aUW}, v[238:239] offset:{off+USTR}""")
        I("ds_write_b32 v235, v234")
    S1 = merge(half(1, MOFS), red + [f"v_mul_f32 v62, s35, v{vDT}"], cfg.red_at, 3)
    first_w = min(i for i, t in enumerate(S1) if "addtid" in t)
    held = []
    if cfg.tile_at > first_w:
        held = [t for t in S1[:cfg.tile_at] if "addtid" in t]
        S1 = [t for t in S1[:cfg.tile_at] if "addtid" not in t] + S1[cfg.tile_at:]
    ta = cfg.tile_at - len(held)
    S1 = S1[:ta] + [tile] + held + S1[ta:ta + 6] + [tile2] + S1[ta + 6:]
    S1.insert(cfg.pub_at, publish)
    S1 = S1[:cfg.pub_at + 1] + merge(S1[cfg.pub_at + 1:], tabl, 1, 3)
    S1.insert(len(S1) - cfg.poll_at, f"global_load_dword v221, v{vPL}, s[42:43] sc1")
    run(with_l_reads(S1, sL, MOFS))
    if cfg.fine == 5: stamp()
    h_reads(sH)
    try_u()
    def stage_early():
        I("s_cmp_eq_u32 s25, 0\ns_cbranch_scc1 L_nost")
        stage()
        A.label("L_nost")
        A.vm = []
    I("s_waitcnt lgkmcnt(0)"); A.lg = []
    per = -(-len(late) // cfg.stage_at)
    tap_mfma(KA, 223, ["\n".join(late[per * k:per * k + per]) for k in range(cfg.stage_at)] + [stage_early] + [""] * (7 - cfg.stage_at))
    I("s_barrier")
    I(f"v_subrev_u32 v223, {SCRS}, v223\nds_read_b128 v[152:155], v223\nds_read_b128 v[156:159], v223 offset:1024")
    tap_sum(KA + 8)
    v0_, v2_, v4_, v6_ = o(8), o(9), o(10), o(11)
    I(f"v_cndmask_b32_e64 {v6_}, {v6_}, {v4_}, s[28:29]\nv_cvt_pk_bf16_f32 v{Q+17}, 0, {v4_}")
    for q, pr_, s_ in ((Q + 8, ((v4_, v2_), (v0_, v0_)), 3), (Q + 10, ((v4_, v4_), (v2_, v0_)), 0),
                       (Q + 12, ((v4_, v4_), (v4_, v2_)), 1), (Q + 14, ((v6_, v4_), (v4_, v4_)), 2)):
        wcopy(sKW, q, pr_, s_, 256)
    I(f"""v_cvt_pk_bf16_f32 v{Q+18}, {o(12)}, {o(13)}
         v_cvt_pk_bf16_f32 v{Q+19}, {o(14)}, {o(15)}
         s_mov_b64 exec, s[28:29]
         ds_write_b32 v63, v{Q+17} offset:{3*RDS + 56}
         ds_write_b32 v63, v{Q+10} offset:{3*RDS + 60}
         ds_write_b32 v63, v{Q+10} offset:{0*RDS + 52}
         ds_write_b32 v63, v{Q+17} offset:{1*RDS + 52}
         s_mov_b64 exec, -1
         ds_write_b32 v{sR4}, v{Q+18}
         ds_write_b16 v{sR8}, v{Q+19} offset:128
         ds_write_b16_d16_hi v{sR8}, v{Q+19} offset:0
         ds_write_b16 v{sR8}, v{Q+19} offset:{128+388}
         ds_write_b16_d16_hi v{sR8}, v{Q+19} offset:388
         v_perm_b32 v236, v{Q+18}, v{Q+18}, s30
         v_mov_b32 v237, 1
         s_mov_b64 exec, s[28:29]
         ds_write_b64 v{sPR}, v[236:237]
         s_mov_b64 exec, -1
         s_cmp_eq_u32 s25, 1
         s_cbranch_scc1 L_join""")
    fetch_u()
    I("s_waitcnt vmcnt(0)"); A.vm = []
    stage()
    A.label("L_join")
    stamp()
    if cfg.prio: I(f"s_setprio {0 if cfg.wlow else 1}")
    I(f"""v_add_u32 v76, 0x4000, v{offG}
         s_lshl_b32 s4, s45, 5
         v_mov_b32 v78, s4""")
    GQ = 128
    def gather(second=True):
        I(f"""global_load_dword v{GQ+4}, v78, s[40:41] sc1
              global_load_dwordx2 v[{GQ}:{GQ+1}], v{offG}, s[42:43] sc1
              global_load_dwordx2 v[{GQ+2}:{GQ+3}], v{offG}, s[42:43] offset:2048 sc1""")
        if second:
            I(f"""global_load_dword v{GQ+10}, v78, s[40:41] offset:128 sc1
                  global_load_dwordx2 v[{GQ+6}:{GQ+7}], v76, s[42:43] sc1
                  global_load_dwordx2 v[{GQ+8}:{GQ+9}], v76, s[42:43] offset:2048 sc1""")
    I(f"s_cmp_lg_u32 s45, 1\ns_cbranch_scc1 L_uall\nds_write_b64 v{aZ}, v[232:233]\ns_branch L_uall")
    A.label("L_uall0")
    I("s_sleep 1")
    A.label("L_uall")
    I(f"ds_read_b128 v[116:119], v{vFL}")
    I("v_min_u32 v116, v116, v117\nv_min3_u32 v116, v116, v118, v119\nv_cmp_eq_u32 vcc, 0, v116\ns_cbranch_vccnz L_uall0")
    I(f"""s_cmp_lg_u32 s45, 0
         s_cbranch_scc1 L_gpub
         s_mov_b64 exec, 15
         v_lshl_add_u32 v72, v0, 2, v235
         ds_read_b32 v214, v72 offset:48
         s_lshl_b32 s4, s44, 7
         s_add_u32 s4, s4, {WS_G}
         v_lshl_add_u32 v217, v0, 3, s4
         s_waitcnt lgkmcnt(0)""")
    A.lg = []
    I("global_store_dwordx2 v217, v[214:215], s[42:43] sc1", track=False)
    I("s_mov_b64 exec, -1")
    A.label("L_gpub")
    I(f"""v_mov_b32 v116, -1
         v_mov_b32 v117, -1
         v_mov_b32 v118, -1
         v_mov_b32 v119, -1
         v_add_u32 v121, 0x2000, v213
         global_store_dwordx4 v213, v[116:119], s[62:63]
         global_store_dwordx4 v121, v[116:119], s[62:63]""")
    I(f"""ds_read_b128 v[80:83], v{aXio}
         ds_read_b128 v[84:87], v{aXio} offset:{USTR}
         s_lshr_b32 s4, s45, 1
         s_sub_u32 s4, 5, s4
         s_sub_u32 s4, s4, s9
         s_mul_i32 s23, s46, {USTR}
         s_lshl_b32 s8, s4, 9
         s_add_u32 s23, s23, s8
         v_add_u32 v72, s23, v{aXio}
         ds_read_b128 v[88:91], v72
         s_mul_i32 s23, s46, {WSTR}
         s_mul_i32 s8, s4, 544
         s_add_u32 s23, s23, s8
         v_add_u32 v73, s23, v{aWW}
         v_add_u32 v75, s23, v{aWW3}
         s_mov_b32 s33, 0""")
    units = [(0, (aWW, aWW3), 0, a) for a in range(4)] + [(1, (aWW, aWW3), WSTR, a) for a in range(4)] + [(2, (73, 75), 0, a) for a in range(2)]
    for u, (n, ad, off, a) in enumerate(units):
        I(f"v_mfma_f32_16x16x32_bf16 v[{140+4*u}:{143+4*u}], v[{BND+4*a}:{BND+4*a+3}], v[{80+4*n}:{83+4*n}], 0")
    if cfg.gather_early: gather()
    I("s_mov_b32 s27, s45")
    if cfg.wout_after >= 0:
        I("s_branch L_wo1")
        A.label("L_wo0")
        I("s_sleep 2")
        A.label("L_wo1")
        I(f"ds_read_b32 v116, v235 offset:{PRG + 16*cfg.wout_after - FLAG}\nv_cmp_eq_u32 vcc, 0, v116\ns_cbranch_vccnz L_wo0")
    if cfg.prio and cfg.wout_hi: I("s_setprio 1")
    for u, (n, ad, off, a) in enumerate(units):
        r = 140 + 4 * u
        I(f"v_cvt_pk_bf16_f32 v{r}, v{r}, v{r+1}\nv_cvt_pk_bf16_f32 v{r+1}, v{r+2}, v{r+3}")
        I(f"ds_write_b64 v{ad[a == 1]}, v[{r}:{r+1}] offset:{off + (W5O, W3O, W9O, W7O)[a]}")
    I(f"s_waitcnt vmcnt({6 if cfg.gather_early else 0})"); A.vm = A.vm[-6:] if cfg.gather_early else []
    I("ds_write_b32 v235, v234 offset:32\ns_cmp_lg_u32 s45, 0\ns_cbranch_scc1 L_hib")
    A.label("L_wall")
    I(f"""ds_read_b128 v[116:119], v{vFL} offset:32
         v_min_u32 v116, v116, v117
         v_min3_u32 v116, v116, v118, v119
         v_cmp_eq_u32 vcc, 0, v116
         s_cbranch_vccnz L_wall
         s_mov_b64 exec, 1
         v_subrev_u32 v72, {WS_HELLO - WS_HL}, v218""")
    I("global_store_dword v72, v219, s[42:43]", track=False)
    I("s_mov_b64 exec, -1")
    A.label("L_hib")
    if not cfg.gather_early: gather()
    if cfg.prio: I(f"s_setprio {cfg.sprio}")
    stamp()
    if cfg.nofinal: I("s_endpgm")
    I(f"""         s_mov_b32 s25, 0
         global_load_dword v139, v212, s[42:43] sc1
         s_waitcnt vmcnt(0)""")
    A.vm = []
    hello("c")
    A.label("L_mode")
    I("v_cmp_ne_u32 vcc, v139, v219")
    if not cfg.force_slow: I("s_cbranch_vccz L_mode1")
    I(f"""s_add_u32 s33, s33, 1
         s_sleep 2
         global_load_dword v139, v212, s[42:43] sc1
         s_and_b32 s4, s33, 31
         s_waitcnt vmcnt(0)
         s_cbranch_scc1 L_mode
         global_load_dword v118, v{vHL}, s[42:43] sc1
         s_cmp_gt_u32 s33, 0x40000
         s_cbranch_scc1 L_spread
         v_sub_u32 v116, v118, v215
         v_bfe_u32 v117, v116, 1, 4
         v_and_b32 v116, 0xffffffc1, v116
         v_cmp_ne_u32 s[34:35], s54, v117
         v_cmp_eq_u32 vcc, 0, v116
         s_and_b64 vcc, vcc, s[34:35]""")
    I("s_branch L_spread" if cfg.force_slow else "s_cbranch_vccnz L_spread\ns_branch L_mode")
    A.vm = []
    A.label("L_mode1")
    I("s_mov_b32 s25, 1\ns_branch L_fin_loop")
    A.label("L_spread")
    I(f"""s_lshl_b32 s4, s45, 18
         s_add_u32 s4, s4, s47
         v_lshl_add_u32 v{offOut}, v0, 11, s4
         v_add_u32 v116, {WS_CL - WS_HELLO}, v218
         v_add_u32 v117, {WS_CL - WS_HELLO}, v{vHL}
         s_cmp_lg_u32 s45, 0
         s_cbranch_scc1 L_clean
         buffer_wbl2 sc1
         s_waitcnt vmcnt(0)
         s_mov_b64 exec, 1
         global_store_dword v116, v215, s[42:43] sc1
         s_mov_b64 exec, -1""")
    A.label("L_clean")
    I(f"""global_load_dword v118, v117, s[42:43] sc1
         s_add_u32 s33, s33, 1
         s_cmp_gt_u32 s33, 0x80000
         s_cbranch_scc1 L_fin_loop
         s_waitcnt vmcnt(0)
         v_cmp_ne_u32 vcc, v118, v215
         s_cbranch_vccnz L_clean""")
    A.vm = []
    A.label("L_fin_loop")
    I(f"""v_cmp_ne_u32 s[34:35], v{GQ+1}, v{GQ+4}
         v_cmp_ne_u32 s[36:37], v{GQ+3}, v{GQ+4}
         v_cmp_eq_u32 vcc, 0, v{GQ+4}
         s_or_b64 s[34:35], s[34:35], s[36:37]
         s_or_b64 vcc, vcc, s[34:35]
         s_cbranch_vccz L_gok
         s_add_u32 s33, s33, 1
         s_cmp_gt_u32 s33, 0x40000
         s_cbranch_scc1 L_gok
         s_sleep {cfg.gsleep}""")
    gather(False)
    I("s_waitcnt vmcnt(0)\ns_branch L_fin_loop")
    A.label("L_gok")
    A.vm = []
    if cfg.stamps:
        I("s_cmp_ge_u32 s27, 4\ns_cbranch_scc1 L_gok2"); stamp(); A.label("L_gok2")
    gq = GQ
    for i in range(4):
        I(f"v_and_b32 v{96+i}, 0xffff0000, v{gq+2*(i>>1)}" if i & 1 else f"v_lshlrev_b32 v{96+i}, 16, v{gq+2*(i>>1)}")
    for i in range(4): I(f"v_sub_f32 v{100+i}, 1.0, v{96+i}")
    I("v_cvt_pk_bf16_f32 v101, v100, v101\nv_cvt_pk_bf16_f32 v103, v102, v103")
    I("v_lshlrev_b32 v100, 16, v101\nv_and_b32 v101, 0xffff0000, v101\nv_lshlrev_b32 v102, 16, v103\nv_and_b32 v103, 0xffff0000, v103")
    I(f"""v_add_u32 v104, 0x20000, v{offOut}
         s_lshl_b32 s4, s27, 4
         s_add_u32 s4, s4, {PRG}
         v_mov_b32 v122, s4
         s_min_u32 s4, s4, {PRG + 16*cfg.ptile}
         v_mov_b32 v123, s4
         s_branch L_prog1""")
    A.label("L_prog")
    I(f"s_sleep {cfg.psleep}")
    A.label("L_prog1")
    I("""ds_read_b128 v[116:119], v123
         v_min_u32 v116, v116, v117
         v_min3_u32 v116, v116, v118, v119
         v_cmp_eq_u32 vcc, 0, v116
         s_cbranch_vccnz L_prog""")
    A.label("L_prog2")
    I("ds_read_b128 v[116:119], v122")
    for h in range(2):
        for n in range(4): I(f"ds_read_b64 v[{80+4*n+2*h}:{81+4*n+2*h}], v{aRr} offset:{SCRW*n + 512*h}")
    I("v_min_u32 v116, v116, v117\nv_min3_u32 v116, v116, v118, v119\nv_cmp_eq_u32 vcc, 0, v116\ns_cbranch_vccnz L_prog2")
    I("s_cmp_eq_u32 s25, 1\ns_cbranch_scc1 L_send")
    sn = A.snapshot()
    def mix(i):
        for ch in range(2): I(f"v_mul_f32 v{80+4*ch+i}, v{96+i}, v{80+4*ch+i}")
        for ch in range(2): I(f"v_fmac_f32 v{80+4*ch+i}, v{100+i}, v{88+4*ch+i}")
        if i == 0 and cfg.stamps: I(f"{'s_memtime' if cfg.cycles else 's_memrealtime'} s[94:95]", track=False)
        I(f"v_cvt_pk_bf16_f32 v{112+i}, v{80+i}, v{84+i}")
    for i in range(4):
        mix(i)
        I(f"global_store_dword v{(offOut, 104)[i >> 1]}, v{112+i}, s[62:63] offset:{1024*(i & 1)} sc0 sc1")
    I("s_branch L_next")
    A.label("L_send", sn)
    for i in range(4):
        mix(i)
        I(f"v_min_u32 v{112+i}, -2, v{112+i}")
        if i & 1: I(f"global_store_dwordx2 v{248 + (i >> 1)}, v[{111+i}:{112+i}], s[62:63]")
    A.label("L_next")
    for i in range(5): I(f"v_mov_b32 v{gq+i}, v{gq+6+i}")
    I(f"""v_mov_b32 v{offG}, v76
         v_add_u32 v78, 128, v78
         v_add_u32 v{aRr}, 4096, v{aRr}
         v_add_u32 v{offOut}, 0x100000, v{offOut}
         v_add_u32 v248, 0x100000, v248
         v_add_u32 v249, 0x100000, v249
         s_add_u32 s27, s27, 4
         s_cmp_lt_u32 s27, 8""")
    if cfg.stamps:
        I("s_cbranch_scc0 L_two")
        if nst[0] < 15: I(f"s_waitcnt lgkmcnt(0)\ns_mov_b32 s{64+2*nst[0]}, s94"); nst[0] += 1
        stamp()
        I("s_branch L_fin_loop")
        A.label("L_two")
        if nst[0] < 15: I(f"s_waitcnt lgkmcnt(0)\ns_mov_b32 s{64+2*nst[0]}, s94"); nst[0] += 1
        stamp()
    else: I("s_cbranch_scc1 L_fin_loop")
    I("s_cmp_eq_u32 s25, 0\ns_cbranch_scc1 L_fin_out")
    A.vm = []
    A.label("L_recv")
    I(f"""global_load_dwordx4 v[80:83], v213, s[62:63] sc1
         global_load_dwordx4 v[84:87], v121, s[62:63] sc1
         s_add_u32 s33, s33, 1
         s_cmp_gt_u32 s33, 0x100000
         s_cbranch_scc1 L_fin_out
         ds_write_b128 v{aOW}, v[80:83]
         v_max3_u32 v116, v80, v81, v82
         ds_write_b128 v{aOW}, v[84:87] offset:1088
         v_max3_u32 v117, v84, v85, v86
         v_max3_u32 v116, v116, v83, v87
         v_max_u32 v116, v116, v117
         v_cmp_eq_u32 vcc, -1, v116
         s_cbranch_vccnz L_recv""")
    stamp()
    for m in range(2):
        for i in (0, 2): I(f"ds_read2_b32 v[{88+4*m+i}:{89+4*m+i}], v{aOR} offset0:{16*i + 8*m} offset1:{16*i + 16 + 8*m}")
    I("global_store_dwordx4 v213, v[88:91], s[62:63]\nglobal_store_dwordx4 v121, v[92:95], s[62:63]")
    A.label("L_fin_out")
    if cfg.stamps:
        stamp(); I("s_waitcnt vmcnt(0)"); stamp()
    stamp_out()
    A.label("L_end")
    I("s_endpgm")
    tc, ti = tables()
    A.raw(".p2align 7\nL_tabc:")
    for i in range(0, len(tc), 8): A.raw(".long " + ", ".join("0x%x" % x for x in tc[i:i + 8]))
    A.raw("L_tabi:")
    for i in range(0, len(ti), 8): A.raw(".long " + ", ".join("0x%x" % x for x in ti[i:i + 8]))
    A.raw("L_fin:")
    A.raw(f""".section .rodata,"a"
.p2align 6
.amdhsa_kernel {KN}_kernel
  .amdhsa_next_free_vgpr 256
  .amdhsa_next_free_sgpr 102
  .amdhsa_accum_offset 256
  .amdhsa_group_segment_fixed_size 0
  .amdhsa_kernarg_size 144
  .amdhsa_user_sgpr_count 2
  .amdhsa_user_sgpr_kernarg_segment_ptr 1
  .amdhsa_system_sgpr_workgroup_id_x 1
.end_amdhsa_kernel""")
    lint(A.lines)
    sys.stderr.write(f"instructions {A.nins}, nops {A.nops}, lds {LDS_BYTES}\n")
    if cfg.align:
        A.lines, wid, nop = align8(A.text().split("\n"))
        sys.stderr.write(f"alignment: {wid} widened, {nop} nops\n")
    return A.text()

if __name__ == "__main__":
    out = sys.argv[1]
    for kv in sys.argv[2:]:
        k, v = kv.split("="); setattr(Cfg, k, eval(v))
    open(out, "w").write(gen())
```

```python
import sys
from asmlib import Asm, merge, align8
KN = "gated_mix__ssm_conv_s4d__ssm_conv_s4d__prompt"

class Cfg:
    stamps = False
    cycles = False
    padto = 1500
    probe = (0, 0)
    force_slow = False
    PF = 3
    fine = False
    align = True
    red_at = 50
    tile_at = 34
    pub_at = 110
    gate_at = 150
    gate_sp = 2
    gload_at = 60
    gather_at = 0
    wlow = False
    gout_at = 2
    wstep = 4
    gsleep = 1
    nofinal = False
    touch_at = 0
    touch2_at = 110
    lag01 = 5
    sprio = 1
    wout_hi = True
    lat = 5
    psleep = 4
    ptile = 5
    wout_after = -1
    rlag = 6
    horizon = 1000
    poll_at = 25
    stage_at = 5
    plow = False
    gather_early = False
    prio = 2

ROW = 272
SCRW = 57 * ROW
SCRS = 4 * SCRW
MOFS = 48000
WB = SCRS + 2048; WSTR = SCRW
W5O, W3O, W9O, W7O = 0, 3440, 6728, 8920
RB = 2048; OB = 13312
UB = 8 * SCRW; USTR = 4608
KB = UB + 2 * USTR; KSTR = 6656
RDS = 1344; R4O = 5376; R8O = 5888
FLAG = KB + 4 * KSTR
PRG = FLAG + 64
PRD = PRG + 128
LDS_BYTES = PRD + 32
P0 = 540
WS_CL, WS_HL = 0x7000, 0x5000
WS_LF, WS_HELLO, WS_G = 0x4000, 0x6000, 0x8000

def drow_hi(rho):
    q, hh, i = rho >> 3, (rho >> 2) & 1, rho & 3
    if q == 0: return 4 * hh + i
    if q == 1: return 4 * hh + 4 + i
    if q == 2: return 256 + 4 * hh + 2 * i
    return [[520, 516, 1032, 1544], [776, 772, 1288, 1800]][hh][i]
def hslot(rho):
    x = rho - 4 * (rho >= 8) - (rho >= 15) - 2 * (rho >= 20)
    return x ^ 4 if x < 8 else 31 - x if x in (11, 20) else x
HSLOT = {drow_hi(rho): hslot(rho) for rho in range(32) if rho not in (11, 15)}
assert len(HSLOT) == 25 and sorted(HSLOT.values()) == list(range(25))
HTREE = [(1, 0, 1), (2, 0, 2), (3, 2, 1), (4, 0, 4), (5, 4, 1), (6, 4, 2), (7, 6, 1), (8, 0, 8), (9, 8, 1), (10, 8, 2),
         (256, 0, 256), (258, 2, 256), (260, 4, 256), (262, 6, 256), (264, 8, 256), (266, 10, 256),
         (516, 4, 512), (520, 8, 512), (772, 516, 256), (776, 520, 256), (1032, 8, 1024), (1288, 264, 1024), (1544, 520, 1024), (1800, 776, 1024)]

def tables():
    comp, io = [], []
    for l in range(64):
        b, g = l & 15, l >> 4
        def frag(pred, val):
            return [(val if pred(8 * g + 2 * d) else 0) | (val if pred(8 * g + 2 * d + 1) else 0) << 16 for d in range(4)]
        comp.append(frag(lambda e: e in (b + 12, b + 13), 0xffff))
        t = []
        for tau, w in ((8, 2), (12, 1), (8, 4), (8, 3)):
            t += frag(lambda e: abs(tau + b - e) <= w, 0x3f80)
        pos = lambda v: 8 * (v + (v >> 4))
        t += [UB + 448 + 32 * b + 16 * g,
              WB + pos(2 + 4 * b + g), WB + pos(3 + 4 * b + g),
              WB + ((l >> 4) & 1) * WSTR + (W5O, W3O, W9O, W9O)[(l >> 2) & 3] + 8 * (l & 3),
              RB + 16 * (4 * (l >> 3) + (((l >> 1) & 3) ^ (l >> 4))) + 8 * (l & 1),
              WS_G + 128 * (l >> 2) + 8 * (l & 3),
              OB + 272 * (l >> 4) + 16 * (l & 15), OB + 272 * (l & 7) + 4 * (l >> 3)]
        io.append(t)
    def lay(tb):
        n = len(tb[0]) // 4
        return [tb[l][4 * k + j] & 0xffffffff for k in range(n) for l in range(64) for j in range(4)]
    return lay(comp), lay(io)

def lint(lines):
    from asmlib import Ins, regs_of
    ok = ("v_add_u32", "v_lshl_add_u32", "v_mov_b32", "v_lshlrev_b32", "v_min_u32", "v_xor_b32", "v_sub_u32", "v_subrev_u32", "v_cndmask_b32",
          "v_add3_u32", "v_mad_u32_u24", "v_add_lshl_u32")
    last, entry = {}, None
    for ln in "\n".join(lines).split("\n"):
        if ln.startswith("L_par:"): entry = dict(last)
        if ln.startswith("L_io:"): last = dict(entry_io)
        if not ln.startswith("    ") or ln.strip().startswith(";"): continue
        q = Ins(ln.strip())
        if q.text == "s_branch L_io": entry_io = dict(last)
        addr = None
        if q.kind == "vmem": addr = q.ops[1] if ("load" in q.mn or q.mn.startswith("buffer")) else q.ops[0]
        elif q.kind == "ds" and "addtid" not in q.mn: addr = q.ops[1] if q.mn.startswith("ds_read") else q.ops[0]
        if addr:
            w = last.get(regs_of(addr)[0])
            assert w and (w.mn.replace("_e64", "") in ok or (w.mn == "global_load_dwordx4" and "s[6:7]" in w.text)), (ln, w and w.text)
        for r in q.w: last[r] = q

def gen(cfg=Cfg):
    A = Asm(); I = A.I
    def run(stream):
        for t in stream:
            if callable(t): t()
            else: I(t)
    head = open("cdna_kernels/" + KN + ".s.ref").read().split("; Override launch")[0]
    A.raw(head.rstrip())
    A.raw(f"; @launch grid=(256,1,1) block=(512,1,1) lds={LDS_BYTES}")
    A.raw('.amdgcn_target "amdgcn-amd-amdhsa--gfx950"\n.text')
    A.raw(f".globl {KN}_kernel\n.p2align 8\n.type {KN}_kernel,@function\n{KN}_kernel:")
    nst = [0]
    def stamp():
        if cfg.stamps:
            if nst[0] < 15: I(f"{'s_memtime' if cfg.cycles else 's_memrealtime'} s[{64+2*nst[0]}:{65+2*nst[0]}]", track=False); nst[0] += 1
    def stamp_out():
        if cfg.stamps == 4:
            lab = f"L_pad{A.nins}"
            role, pk = cfg.probe
            I("s_waitcnt vmcnt(0) lgkmcnt(0)\nv_and_b32 v250, 7, v0\nv_lshlrev_b32 v250, 5, v250\nglobal_load_dword v251, v250, s[40:41] sc1\ns_waitcnt vmcnt(0)")
            A.vm = []
            I("v_readlane_b32 s96, v251, 0\ns_mov_b32 s98, 0\ns_mov_b32 s99, 0")
            for i in range(1, 8):
                I(f"v_readlane_b32 s97, v251, {i}\ns_sub_u32 s97, s97, s96\ns_max_i32 s98, s98, s97\ns_min_i32 s99, s99, s97")
            I("s_add_u32 s98, s98, s96\ns_add_u32 s99, s99, s96")
            mine = (role == "c") == (nst[0] < 12)
            if role == "skew": I("s_sub_u32 s98, s98, s99")
            elif role != "base" and mine: I(f"s_sub_u32 s98, s{64+2*pk}, s98\ns_max_i32 s98, s98, 0")
            else: I("s_mov_b32 s98, 0")
            I(f"s_mul_i32 s98, s98, 10\ns_add_u32 s98, s98, {cfg.padto}")
            A.label(lab)
            I("s_memrealtime s[96:97]", track=False)
            I(f"s_waitcnt lgkmcnt(0)\ns_sub_u32 s96, s96, s99\ns_cmp_lt_u32 s96, s98\ns_cbranch_scc1 {lab}")
        elif cfg.stamps == 3:
            lab = f"L_pad{A.nins}"
            pw, pk = cfg.probe
            I(f"s_waitcnt vmcnt(0) lgkmcnt(0)\ns_sub_u32 s98, s{64+2*pk}, s64\ns_mul_i32 s98, s98, 10\ns_lshl_b32 s97, s2, 3\ns_add_u32 s97, s97, s3")
            I(f"s_cmp_eq_u32 s97, {77*8+pw}\ns_cselect_b32 s98, s98, 0\ns_add_u32 s98, s98, {cfg.padto}")
            A.label(lab)
            I("s_memrealtime s[96:97]", track=False)
            I(f"s_waitcnt lgkmcnt(0)\ns_sub_u32 s96, s96, s64\ns_cmp_lt_u32 s96, s98\ns_cbranch_scc1 {lab}")
        elif cfg.stamps:
            n = nst[0]
            I("s_waitcnt lgkmcnt(0)\ns_lshl_b32 s97, s2, 3\ns_add_u32 s97, s97, s3\ns_lshl_b32 s97, s97, 6\ns_add_u32 s97, s97, 0x100000\nv_mov_b32 v250, s97")
            I("s_mov_b64 exec, 1")
            for i in range(16):
                I(f"v_mov_b32 v251, {f's{64+2*i}' if i < n else 's50' if i == 15 else 0}\nglobal_store_dword v250, v251, s[42:43] offset:{4*i}")

    vLR, vAI, vCR, vCI = 1, 2, 3, 4
    vDS, vCRd, vST0, vST1, vPL, vHL, vU0, vU1, vL16, vGR, vFL, vNR = range(176, 188)
    GX, GW, TR = 192, 200, 204
    vDT = 33
    stamp()
    I("s_cmp_ge_u32 s2, 0x100\ns_cbranch_scc1 L_end\ns_getpc_b64 s[6:7]")
    A.raw("L_pc:")
    I(f"""v_lshrrev_b32 v1, 6, v0
         s_andn2_b32 s4, s2, 7
         v_add_lshl_u32 v2, v1, s4, 7
         v_readfirstlane_b32 s3, v1
         v_min_u32 v2, L_fin-L_pc-4, v2
         global_load_dword v255, v2, s[6:7]
         s_bfe_u32 s4, s3, 0x10001
         s_mul_i32 s4, s4, 56
         s_add_u32 s52, s0, s4
         s_addc_u32 s53, s1, 0
         s_load_dwordx8 s[8:15], s[52:53], 8
         s_load_dwordx4 s[16:19], s[52:53], 40
         s_load_dwordx2 s[56:57], s[0:1], 0
         s_load_dwordx4 s[60:63], s[0:1], 112
         s_load_dwordx4 s[40:43], s[0:1], 128
         s_memrealtime s[50:51]
         v_and_b32 v0, 63, v0
         v_mov_b32 v28, 0
         v_mov_b32 v29, 0
         v_mov_b32 v30, 0
         v_mov_b32 v31, 0
         v_mov_b32 v{vFL}, {FLAG}
         s_and_b32 s48, s2, 7
         s_lshr_b32 s5, s2, 3
         s_lshl_b32 s44, s48, 5
         s_add_u32 s44, s44, s5
         s_and_b32 s45, s3, 3
         s_and_b32 s46, s3, 1
         s_lshl_b32 s4, s44, 1
         s_add_u32 s4, s4, s46
         s_lshl_b32 s4, s4, 8
         v_lshl_add_u32 v5, v0, 2, s4
         s_lshl_b32 s47, s44, 2
         s_mul_i32 s22, s3, {SCRW}
         s_mov_b32 m0, s22
         v_lshlrev_b32 v{vL16}, 4, v0
         v_lshrrev_b32 v6, 3, v0
         v_and_b32 v7, 0x70, v{vL16}
         v_lshl_add_u32 v6, v6, 10, v7
         v_and_b32 v7, 32, v0
         v_xor_b32 v6, v7, v6
         s_lshl_b32 s49, s48, 7
         s_lshl_b32 s4, s5, 16
         s_add_u32 s4, s4, s49
         s_lshl_b32 s23, s45, 14
         s_add_u32 s4, s4, s23
         v_add_u32 v{vDS}, s4, v6
         v_xor_b32 v{vGR}, 64, v{vDS}
         s_lshl_b32 s4, s46, 1
         s_add_u32 s4, s4, s47
         v_mov_b32 v7, s4
         v_mov_b32 v{vDT}, 0
         v_mov_b32 v61, 0
         s_mov_b32 s58, 0x200000
         s_mov_b32 s59, 0x20000
         s_mov_b32 s23, {8*1024 - 1024}""")
    A.wait(lg=0)
    if cfg.fine and cfg.fine < 6: stamp()
    I(f"""global_load_dword v{vLR}, v5, s[8:9]
         global_load_short_d16_hi v{vDT}, v7, s[16:17]
         global_load_dword v{vAI}, v5, s[10:11]
         s_cmp_ge_u32 s3, 4
         s_cbranch_scc0 L_par""")
    snap_c = A.snapshot(); nst_c = nst[0]
    I(f"""buffer_load_dwordx4 v[{TR}:{TR+3}], v{vDS}, s[56:59], 0 offen
         buffer_load_dwordx4 v[{TR+4}:{TR+7}], v{vGR}, s[56:59], s23 offen offset:1024
         s_lshl_b32 s4, s48, 5
         v_mov_b32 v188, s4
         s_or_b32 s4, s5, s45
         s_cbranch_scc1 L_io2
         s_or_b32 s50, s50, 1
         v_mov_b32 v190, s50
         s_mov_b64 exec, 1""")
    I("global_store_dword v188, v190, s[40:41] sc1", track=False)
    I("s_mov_b64 exec, -1")
    A.label("L_io2")
    I(f"""global_load_dword v{vCR}, v5, s[12:13]
         global_load_dword v{vCI}, v5, s[14:15]""")
    if cfg.fine == 2: stamp()
    I("s_branch L_io")
    snap_io = A.snapshot(); nst_io = nst[0]
    A.label("L_par", snap_c); nst[0] = nst_c
    if cfg.fine == 2: stamp()

    def consts():
        I("""s_mov_b32 s24, 0x3fb8aa3b
             s_mov_b32 s28, 0
             s_mov_b32 s29, 0x80000000
             v_mov_b32 v32, 0x3c00""")
    def dt_scale():
        I(f"""v_mul_f32 v{vDT}, s24, v{vDT}
             v_exp_f32 v{vDT}, v{vDT}
             v_cvt_pk_bf16_f32 v{vDT}, v{vDT}, v{vDT}
             v_lshlrev_b32 v{vDT}, 16, v{vDT}""")
    red = [f"v_and_b32 v34, 0x7fff7fff, v{vCR}", f"v_and_b32 v35, 0x7fff7fff, v{vCI}", "v_pk_max_u16 v34, v34, v35",
           "v_lshrrev_b32 v35, 16, v34", "v_and_b32 v34, 0xffff, v34", "v_max_u32 v34, v34, v35"]
    red += [f"v_max_u32_dpp v34, v34, v34 {m}" for m in
            ("row_shr:1 row_mask:0xf bank_mask:0xf", "row_shr:2 row_mask:0xf bank_mask:0xf", "row_shr:4 row_mask:0xf bank_mask:0xf",
             "row_shr:8 row_mask:0xf bank_mask:0xf", "row_bcast:15 row_mask:0xa bank_mask:0xf", "row_bcast:31 row_mask:0xc bank_mask:0xf")]
    red += ["v_readlane_b32 s34, v34, 63",
            "s_lshr_b32 s34, s34, 7\ns_max_u32 s34, s34, 11\ns_sub_u32 s36, 264, s34\ns_lshl_b32 s36, s36, 23\ns_mov_b32 s37, s36\n"
            "s_sub_u32 s35, s34, 9\ns_lshl_b32 s35, s35, 23"]
    ZA, ZB, TP = 36, 38, 40
    AB = 42
    E1, E2 = 46, 48
    Wr = {p: 50 + i for i, p in enumerate((1, 2, 4, 8, 16, 32, 64, 128, 256, 512, 1024))}
    Lr = {r: 144 + r for r in range(1, 16)}
    for p in (8, 16, 32, 64): Lr[p // 8] = Wr[p]
    TMP = [160, 161, 162, 163]
    Hk = {h: 164 + i for i, h in enumerate((0, 2, 4, 6, 8, 10, 264, 516, 520, 776))}
    def cm(dst, a, b, conj=False):
        if conj:
            return [f"v_pk_mul_f16 v{dst}, v{a}, v{b} op_sel_hi:[0,1] neg_hi:[0,1]",
                    f"v_pk_fma_f16 v{dst}, v{a}, v{b}, v{dst} op_sel:[1,1,0] op_sel_hi:[1,0,1]"]
        return [f"v_pk_mul_f16 v{dst}, v{a}, v{b} op_sel_hi:[0,1]",
                f"v_pk_fma_f16 v{dst}, v{a}, v{b}, v{dst} op_sel:[1,1,0] op_sel_hi:[1,0,1] neg_lo:[1,0,0]"]
    def sq(z):
        return [f"v_pk_mul_f32 v[{TP}:{TP+1}], v[{z}:{z+1}], v[{z}:{z+1}] op_sel_hi:[0,1]",
                f"v_pk_fma_f32 v[{z}:{z+1}], v[{z}:{z+1}], v[{z}:{z+1}], v[{TP}:{TP+1}] op_sel:[1,1,0] op_sel_hi:[1,0,1] neg_lo:[1,0,0]"]
    def half(h, ofs):
        up = (lambda d, s: f"v_and_b32 v{d}, 0xffff0000, v{s}") if h else (lambda d, s: f"v_lshlrev_b32 v{d}, 16, v{s}")
        S = [up(AB, vLR), f"v_mul_f32 v{AB}, s24, v{AB}", f"v_exp_f32 v{AB}, v{AB}", up(AB + 1, vAI),
             f"v_cvt_pk_bf16_f32 v{AB}, v{AB}, v{AB}", f"v_mul_f32 v{AB+1}, v{vDT}, v{AB+1}", f"v_lshlrev_b32 v{AB}, 16, v{AB}",
             f"v_mul_f32 v{AB+1}, 0.15915494, v{AB+1}", f"v_mul_f32_e64 v{AB}, -v{vDT}, v{AB}", f"v_fract_f32 v{TP}, v{AB+1}",
             f"v_mul_f32 v{AB}, s24, v{AB}", f"v_cos_f32 v{ZA}, v{TP}", f"v_exp_f32 v{E1}, v{AB}", f"v_sin_f32 v{ZA+1}, v{TP}",
             f"v_pk_mul_f32 v[{ZA}:{ZA+1}], v[{ZA}:{ZA+1}], v[{E1}:{E1+1}] op_sel_hi:[1,0]"]
        cv = lambda p, z: f"v_cvt_pk_f16_f32 v{Wr[p]}, v{z}, v{z+1}"
        wl = lambda r, v: f"ds_write_addtid_b32 v{v} offset:{ofs + r*ROW}"
        wh = lambda hh, v: f"ds_write_addtid_b32 v{v} offset:{ofs + (32+HSLOT[hh])*ROW}"
        S.append(cv(1, ZA))
        for p in (2, 4, 8, 16, 32, 64, 128, 256, 512, 1024):
            S += sq(ZA) + [cv(p, ZA)]
            if 8 <= p <= 128: S.append(wl(p // 8, Wr[p]))
        if h == 0 and cfg.prio == 1: S.append("s_setprio 0")
        k = 0
        for r in range(3, 32):
            top = 1 << (r.bit_length() - 1)
            if r == top: continue
            d = Lr[r] if r < 16 else TMP[k % 4]; k += 1
            S += cm(d, Lr[r - top], Wr[8 * top]) + [wl(r, d)]
        S += [up(TP, vCR), up(TP + 1, vCI), f"v_pk_mul_f32 v[{TP}:{TP+1}], v[{TP}:{TP+1}], s[36:37]",
              f"v_cvt_pk_f16_f32 v{Hk[0]}, v{TP}, -v{TP+1}", wh(0, Hk[0])]
        for hh, a, b in HTREE:
            d = Hk.get(hh) or TMP[k % 4]; k += 1
            S += cm(d, Hk[a], Wr[b], True) + [wh(hh, d)]
        return S

    FA, FB, KA = 64, 96, 128
    def tap_addr(aL, aH, aKW, aR4W, aR8W):
        I(f"""v_and_b32 v38, 31, v0
             v_lshrrev_b32 v39, 5, v0
             v_mov_b32 v43, {ROW}
             v_lshl_add_u32 v44, v39, 4, s22
             v_mad_u32_u24 v{aL}, v38, v43, v44
             v_cmp_le_u32 vcc, 8, v38
             v_cmp_le_u32 s[10:11], 15, v38
             v_cmp_le_u32 s[12:13], 20, v38
             v_cndmask_b32_e64 v46, 0, 4, vcc
             v_cndmask_b32_e64 v47, 0, 1, s[10:11]
             v_cndmask_b32_e64 v48, 0, 2, s[12:13]
             v_add3_u32 v46, v46, v47, v48
             v_sub_u32 v45, v38, v46
             v_cmp_gt_u32 vcc, 8, v45
             v_cmp_eq_u32 s[10:11], 11, v45
             v_cmp_eq_u32 s[12:13], 20, v45
             v_xor_b32 v46, 4, v45
             v_cndmask_b32 v45, v45, v46, vcc
             v_cndmask_b32_e64 v45, v45, 20, s[10:11]
             v_cndmask_b32_e64 v45, v45, 11, s[12:13]
             v_add_u32 v45, 32, v45
             v_mad_u32_u24 v{aH}, v45, v43, v44""")
        return f"""v_and_b32 v38, 31, v0
             v_lshrrev_b32 v39, 5, v0
             v_lshlrev_b32 v44, 3, v39
             v_lshl_add_u32 v44, v38, 4, v44
             s_add_u32 s4, s23, {2*P0 - 520}
             v_sub_u32 v{aKW}, s4, v44
             v_mov_b32 v63, s23""" + (f"""
             v_lshlrev_b32 v44, 2, v0
             s_add_u32 s4, s23, {R4O + 380}
             v_sub_u32 v{aR4W}, s4, v44
             v_lshlrev_b32 v44, 1, v0
             s_add_u32 s4, s23, {R8O + 130}
             v_sub_u32 v{aR8W}, s4, v44""" if aR4W else "")
    def with_l_reads(S, aL, ofs):
        last = max(i for i, t in enumerate(S) if isinstance(t, str) and t.endswith(f"offset:{ofs + 31*ROW}"))
        return S[:last + 1] + merge(S[last + 1:], [f"ds_read_b128 v[{FB+4*k}:{FB+4*k+3}], v{aL} offset:{32*k}" for k in range(8)], 4, 6)
    def h_reads(aH): run([f"ds_read_b128 v[{FA+4*k}:{FA+4*k+3}], v{aH} offset:{32*k}" for k in range(8)])
    def tap_mfma(give, vX, fill=()):
        for k in range(8):
            I(f"v_mfma_f32_32x32x16_f16 v[{KA}:{KA+15}], v[{FA+4*k}:{FA+4*k+3}], v[{FB+4*k}:{FB+4*k+3}], " + (f"v[{KA}:{KA+15}]" if k else "0"))
            n = -(-len(fill) // (8 - k)); run(fill[:n]); fill = fill[n:]
        I(f"ds_write_b128 v{vX}, v[{give}:{give+3}]\nds_write_b128 v{vX}, v[{give+4}:{give+7}] offset:1024\ns_waitcnt lgkmcnt(0)")
        A.lg = []
    def tap_sum(keep):
        for i in range(0, 8, 2): I(f"v_pk_add_f32 v[{keep+i}:{keep+i+1}], v[{keep+i}:{keep+i+1}], v[{152+i}:{153+i}]")
        for i in range(0, 8, 2): I(f"v_pk_mul_f32 v[{keep+i}:{keep+i+1}], v[{keep+i}:{keep+i+1}], v[62:63] op_sel_hi:[1,0]")
    o = lambda i: f"v{KA+i}"
    Q = 144
    def wcopy(aKW, q, pairs, s_, lagoff):
        (a, b), (c, d) = pairs
        I(f"v_cvt_pk_bf16_f32 v{q}, {a}, {b}\nv_cvt_pk_bf16_f32 v{q+1}, {c}, {d}")
        I(f"ds_write_b64 v{aKW}, v[{q}:{q+1}] offset:{520 + s_*RDS - (0 if s_ == 3 else 8) - 2*lagoff}")

    T = 8
    aL, aH, aKW, aR4W, aR8W, aMD, aM4, aM8, aX, aW2, aW3, aR = range(T, T + 12)
    mSp = T + 12
    aW2b, aW3b = 5, 6
    vXC, vPR = aR4W, aR8W
    if cfg.prio == 1: I("s_setprio 2")
    I(f"global_load_dword v{vCR}, v5, s[12:13]\nglobal_load_dword v{vCI}, v5, s[14:15]\nglobal_load_short_d16_hi v61, v7, s[18:19]")
    if cfg.fine == 2: stamp()
    I(f"""s_add_u32 s6, s6, L_tabc-L_pc
         s_addc_u32 s7, s7, 0
         s_mul_i32 s23, s3, {KSTR}
         s_add_u32 s23, s23, {KB}
         v_add_u32 v7, s23, v{vL16}
         v_lshl_add_u32 v6, v0, 3, s23""")
    for k in range(6): I(f"ds_write_b128 v7, v[28:31] offset:{1024*k}")
    I("ds_write_b64 v6, v[28:29] offset:6144")
    consts()
    I(f"""ds_write_addtid_b32 v32 offset:0
         s_mul_i32 s30, s46, {USTR}
         s_mul_i32 s31, s46, {WSTR}
         s_lshl_b32 s4, s3, 2
         s_add_u32 s4, s4, {PRG}
         v_mov_b32 v240, s4
         v_min_u32 v241, 0x70, v{vL16}
         v_add_u32 v241, s4, v241
         ds_write_b32 v241, v28
         v_subrev_u32 v241, 16, v240
""")
    I(f"""v_and_b32 v36, 15, v0
         v_lshrrev_b32 v37, 4, v0
         v_and_b32 v40, 3, v0
         v_bfe_u32 v41, v0, 2, 2
         v_lshlrev_b32 v42, 4, v37
""")
    I(tap_addr(aL, aH, aKW, None, None))
    I(f"""         v_mul_u32_u24 v44, {RDS + 2}, v40
         v_lshlrev_b32 v45, 1, v36
         v_sub_u32 v45, v42, v45
         s_add_u32 s4, s23, {2*(P0 - 16) - 1024}
         v_add3_u32 v{aMD}, v44, v45, s4
         v_lshlrev_b32 v45, 3, v36
         v_sub_u32 v45, v42, v45
         s_add_u32 s4, s23, {R4O + 120}
         v_add_u32 v{aM4}, s4, v45
         v_and_b32 v44, 1, v0
         v_mul_u32_u24 v44, 388, v44
         v_lshlrev_b32 v45, 2, v36
         v_sub_u32 v45, v42, v45
         s_add_u32 s4, s23, {R8O + 64}
         v_add3_u32 v{aM8}, v44, v45, s4
         v_lshl_add_u32 v44, v36, 5, v42
         s_add_u32 s4, s30, {UB}
         v_add_u32 v{aX}, s4, v44
         v_bfe_u32 v44, v0, 1, 2
         v_xor_b32 v44, v44, v37
         v_lshl_add_u32 v44, v36, 2, v44
         s_add_u32 s4, s22, {RB}
         v_lshl_add_u32 v{aR}, v44, 4, s4
         ; transposing reads of the box sums: granule v -> byte 8*(v + (v>>4)); odd rows come from W3 / W7
         v_and_b32 v44, 1, v41
         v_mul_u32_u24 v45, {W3O - W5O}, v44
         s_add_u32 s4, s31, {WB + W5O}
         v_add_u32 v45, s4, v45
         v_lshl_add_u32 v46, v37, 3, v41
         v_add_u32 v46, v46, v40
         v_lshrrev_b32 v47, 4, v46
         v_add_u32 v47, v47, v46
         v_lshl_add_u32 v{aW2}, v47, 3, v45
         v_add_u32 v46, 4, v46
         v_lshrrev_b32 v47, 4, v46
         v_add_u32 v47, v47, v46
         v_lshl_add_u32 v{aW2b}, v47, 3, v45
         v_mul_u32_u24 v45, {W7O - W9O}, v44
         s_add_u32 s4, s31, {WB + W9O}
         v_add_u32 v45, s4, v45
         v_lshl_add_u32 v46, v41, 1, v42
         v_add_u32 v46, v46, v40
         v_lshrrev_b32 v47, 4, v46
         v_add_u32 v47, v47, v46
         v_lshl_add_u32 v{aW3}, v47, 3, v45
         v_add_u32 v46, 8, v46
         v_lshrrev_b32 v47, 4, v46
         v_add_u32 v47, v47, v46
         v_lshl_add_u32 v{aW3b}, v47, 3, v45
         v_add_u32 v{vXC}, s22, v{vL16}
         s_lshl_b32 s4, s3, 3
         s_add_u32 s4, s4, {PRD}
         v_mov_b32 v{vPR}, s4
         s_lshl_b32 s4, s44, 2
         s_add_u32 s4, s4, s45
         s_lshl_b32 s55, s4, 11
         v_add_u32 v{vGR}, s55, v{vL16}
         s_lshl_b32 s4, s5, 14
         s_lshl_b32 s8, s45, 19
         s_add_u32 s4, s4, s8
         s_add_u32 s4, s4, s49
         v_lshl_add_u32 v253, v36, 10, s4""")
    touch = "global_load_dword v254, v253, s[62:63]"
    if cfg.touch_at == 0: I(touch)
    gate = []
    for d in range(4):
        gate.append("\n".join(f"v_dot2_f32_bf16 v{212+rw}, v{GX+4*rw+d}, v{GW+d}, {f'v{212+rw}' if d else 0}" for rw in range(2)))
    gate += [None, "v_permlane32_swap_b32 v212, v213", "v_add_f32 v212, v212, v213"]
    gate += [f"v_add_f32_dpp v212, v212, v212 row_shr:{n} row_mask:0xf bank_mask:0xf bound_ctrl:1" for n in (1, 2, 4, 8)]
    gate += ["v_add_f32_dpp v212, v212, v212 row_bcast:15 row_mask:0xa bank_mask:0xf",
             "v_cvt_pk_bf16_f32 v212, v212, v212\nv_lshlrev_b32 v212, 16, v212\nv_mul_f32 v212, 0xbfb8aa3b, v212\nv_exp_f32 v212, v212",
             "v_add_f32 v212, 1.0, v212\nv_rcp_f32 v212, v212", "v_cvt_pk_bf16_f32 v212, v212, v212",
             "v_readlane_b32 s38, v212, 31\nv_readlane_b32 s39, v212, 63\ns_pack_ll_b32_b16 s38, s38, s39\nv_mov_b32 v214, s38"]
    gate = [t for t in gate if t]
    gate.append("ds_write_b32 v241, v214")
    gload = f"""buffer_load_dwordx4 v[{GX}:{GX+3}], v{vGR}, s[56:59], 0 offen
             buffer_load_dwordx4 v[{GX+4}:{GX+7}], v{vGR}, s[56:59], 0 offen offset:1024
             global_load_dwordx4 v[{GW}:{GW+3}], v{vL16}, s[60:61]"""
    if cfg.gload_at < 0: I(gload)
    if cfg.fine and cfg.fine < 6: stamp()
    dt_scale()
    S0 = half(0, 0)
    I(S0[0]); stamp()
    S0 = merge(S0[1:], red + [f"v_mul_f32 v62, s35, v{vDT}"], cfg.red_at, 3)
    if cfg.gload_at >= 0: S0.insert(cfg.gload_at, gload)
    if cfg.touch_at > 0: S0.insert(cfg.touch_at, touch)
    S0 = S0[:cfg.gate_at] + merge(S0[cfg.gate_at:], gate, 0, cfg.gate_sp)
    S0.insert(len(S0) - 12, f"global_load_dwordx4 v[{mSp}:{mSp+3}], v{vL16}, s[6:7]")
    run(with_l_reads(S0, aL, 0))
    stamp()
    h_reads(aH)
    tap_mfma(KA + 8, vXC)
    I("s_barrier")
    stamp()
    conv_mark = len(A.lines)
    q4 = lambda r: f"v[{r}:{r+3}]"
    XS = [[28, 32, 36, 40, 44, 48, 52, 56], [168, 172, 176, 180, 224, 228, 232, 236]]
    rdX = lambda c, n: f"ds_read_b128 {q4(XS[c & 1][n])}, v{aX} offset:{32*(16*c + 2*n)}"
    def flagwait(name, off, first=True):
        A.label(f"L_{name}chk")
        I("v_min3_u32 v249, v249, v250, v251")
        if first: I("v_min_u32 v249, v248, v249")
        I(f"v_cmp_eq_u32 vcc, 0, v249\ns_cbranch_vccz L_{name}ok")
        sn = A.snapshot()
        I(f"ds_read_b128 v[248:251], v{vFL} offset:{off}\ns_waitcnt lgkmcnt(0)\ns_branch L_{name}chk")
        A.label(f"L_{name}ok", sn)
    if cfg.prio and cfg.plow: I("s_setprio 2")
    I(f"""ds_read_b128 v[152:155], v{vXC} offset:{SCRS}
         ds_read_b128 v[156:159], v{vXC} offset:{SCRS + 1024}
         ds_read_b128 v[248:251], v{vFL}""")
    tap_sum(KA)
    stamp()
    I(f"s_mov_b64 exec, 1\nv_add_f32 {o(0)}, v61, {o(0)}\ns_mov_b64 exec, s[28:29]\nv_mov_b32 {o(5)}, {o(4)}\ns_mov_b64 exec, -1")
    for q, pr, s_ in ((Q, ((o(3), o(2)), (o(1), o(0))), 3), (Q + 2, ((o(4), o(3)), (o(2), o(1))), 0),
                      (Q + 4, ((o(5), o(4)), (o(3), o(2))), 1), (Q + 6, ((o(6), o(5)), (o(4), o(3))), 2)):
        wcopy(aKW, q, pr, s_, 0)
    I(f"""v_cvt_pk_bf16_f32 v{Q+16}, {o(0)}, 0
          s_mov_b64 exec, 1
          ds_write_b32 v63, v{Q+16} offset:{0*RDS + 2*P0}
          ds_write_b32 v63, v{Q+1} offset:{1*RDS + 2*P0}
          ds_write_b32 v63, v{Q+3} offset:{2*RDS + 2*P0}
          ds_write_b32 v63, v{Q+16} offset:{2*RDS + 2*P0 + 4}
          s_mov_b64 exec, -1""")
    flagwait("u", 0)
    if cfg.prio and cfg.plow: I("s_setprio 0")
    stamp()
    ACC = lambda c: 192 + 4 * c
    WAB = [244, 252, 188]
    reg = {}
    for mu in range(0, 34, 2): reg["M", mu] = 64 + 2 * mu if mu < 32 else 24
    for i in range(3):
        for f in range(2): reg["M4", i, f] = 144 + 8 * i + 4 * f
    for i in range(1, 5): reg["M8", i] = 128 + 4 * (i - 1)
    for c in range(8):
        for n in range(8): reg["X", c, n] = XS[c & 1][n]
    reg["Sp",] = mSp
    near = lambda c: [(c, ("M", 14 - 2 * n), ("X", c, n)) for n in range(8)]
    far = lambda c: [(c, ("M", 30 - 2 * n), ("X", c - 1, n)) for n in range(8)]
    tail = lambda c: ([(c + 2, ("M", 32), ("X", c, 7))] if c < 6 else []) + ([(c + 4, ("Sp",), ("X", c, 7))] if c < 4 else [])
    wk = [0]
    def wtok(*t):
        reg[t] = WAB[wk[0] % 3]; wk[0] += 1
        if t[0] == "W2": return [(c, t, ("M4", t[1] - c + 4, t[2])) for c in range(t[1] + 2, min(t[1] + 5, 8))]
        return [(c, t, ("M8", t[1] - c + 8)) for c in range(t[1] + 4, 8)]
    def zipm(a, b):
        out = []
        for n in range(max(len(a), len(b))): out += a[n:n + 1] + b[n:n + 1]
        return out
    MM = zipm(near(0), near(1)) + zipm(far(1), far(2)) + [tail(0)[0], tail(1)[0]]
    wplan = {3: [("W2", 0, 0), ("W2", 0, 1), ("W2", 1, 0), ("W2", 1, 1)], 4: [("W2", 2, 0), ("W2", 2, 1), ("W3", 0)],
             5: [("W2", 3, 0), ("W2", 3, 1), ("W3", 1)], 6: [("W2", 4, 0), ("W2", 4, 1), ("W3", 2)], 7: [("W2", 5, 0), ("W2", 5, 1), ("W3", 3)]}
    if cfg.wstep == 4:
        wplan = {4: wplan[3] + [("W3", 0)], 5: wplan[4][:2] + wplan[5][:2] + [("W3", 1)], 6: wplan[6], 7: wplan[7]}
    for c in range(2, 8):
        body = zipm(near(c), far(c + 1) if c < 7 else [])
        pairs = [body[k:k + (2 if c < 7 else 1)] for k in range(0, len(body), 2 if c < 7 else 1)]
        ws = [wtok(*t) for t in wplan.get(c, [])]
        if c == 2: MM += pairs[0] + [tail(0)[1], tail(1)[1]]; pairs = pairs[1:]
        for grp in merge(pairs, ws, 1, 2 if len(ws) < 5 else 1): MM += grp
        MM += tail(c)
    first, lastu, lastacc = {}, {}, {}
    for k, (c, a, b) in enumerate(MM):
        for t in (a, b): first.setdefault(t, k); lastu[t] = k
        lastacc[c] = k
    LAT = cfg.lat
    ops = []
    class Op:
        def __init__(o, text, kind, early=-1, late=10 ** 6, after=()):
            o.text, o.kind, o.early, o.late, o.after, o.done = text, kind, early, late, list(after), None
            ops.append(o)
    def chain(items, after=()):
        prev = list(after); out = []
        for text, kind in items:
            o = Op(text, kind, after=prev); prev = [o]; out.append(o)
        return out
    def load(tok, texts, after=()):
        prevs = [lastu[t] for t in lastu if t != tok and reg[t] == reg[tok] and lastu[t] < first[tok]]
        return [Op(t, "r", early=max(prevs, default=-1), late=first[tok] - LAT, after=after) for t in texts]
    def rd64(r, addr, off): return [f"ds_read_b64 v[{r}:{r+1}], v{addr} offset:{off}", f"ds_read_b64 v[{r+2}:{r+3}], v{addr} offset:{off+8}"]
    def rdtr(r, ad0, ad1, off): return [f"ds_read_b64_tr_b16 v[{r}:{r+1}], v{ad0} offset:{off}", f"ds_read_b64_tr_b16 v[{r+2}:{r+3}], v{ad1} offset:{off}"]
    for mu in range(14, -1, -2): load(("M", mu), rd64(reg["M", mu], aMD, 1024 - 32 * mu))
    def farwait():
        A.label("L_pchk")
        I("v_cmp_eq_u32 vcc, 0, v243\ns_cbranch_vccz L_pok")
        sn = A.snapshot()
        I(f"ds_read_b64 v[242:243], v{vPR}\ns_waitcnt lgkmcnt(0)\ns_branch L_pchk")
        A.label("L_pok", sn)
    pr = Op(f"ds_read_b64 v[242:243], v{vPR}", "r"); pr.gap = 3
    pc = Op(farwait, "v", after=[pr])
    for mu in list(range(30, 14, -2)) + [32]: load(("M", mu), rd64(reg["M", mu], aMD, 1024 - 32 * mu), [pc])
    sp = chain([(f"v_and_b32 v{mSp}, v242, v{mSp}\nv_and_b32 v{mSp+1}, v242, v{mSp+1}", "v"),
                (f"v_and_b32 v{mSp+2}, v242, v{mSp+2}\nv_and_b32 v{mSp+3}, v242, v{mSp+3}", "v")], [pc])
    sp[-1].late = first["Sp",] - 2
    for i in (2, 1, 0):
        for f in (0, 1): load(("M4", i, f), rd64(reg["M4", i, f], aM4, 128 * i + 64 * f), [pc])
    for i in (4, 3, 2, 1): load(("M8", i), rd64(reg["M8", i], aM8, 64 * (i - 1)), [pc])
    for c in range(2):
        for n in range(8): load(("X", c, n), [rdX(c, n)])
    for c in range(2, 8):
        for n in range(8): load(("X", c, n), [rdX(c, n)])
    fr = Op(f"ds_read_b128 v[248:251], v{vFL} offset:32", "r")
    fc = Op(lambda: flagwait("w", 32), "v", after=[fr]); fr.gap = 4
    for t in [t for t in first if t[0] in ("W2", "W3")]:
        load(t, rdtr(reg[t], aW2, aW2b, 544 * t[1] + 272 * t[2]) if t[0] == "W2" else rdtr(reg[t], aW3, aW3b, 544 * t[1]), [fc])
    def flagw(c):
        I(f"ds_write_b32 v240, v240 offset:{16*c}")
        if cfg.stamps and (c in (0, 1, 3, 7) or cfg.fine == 6): stamp()
    for c in range(8):
        a = Op(f"ds_write_b64 v{aR}, v[{ACC(c)}:{ACC(c)+1}] offset:{1024*c}", "w64", early=lastacc[c] + 2, late=lastacc[c] + cfg.rlag)
        a2 = Op(f"ds_write_b64 v{aR}, v[{ACC(c)+2}:{ACC(c)+3}] offset:{1024*c+8}", "w64", after=[a], late=lastacc[c] + cfg.rlag + 2)
        Op(lambda c=c: flagw(c), "w32", after=[a2], late=lastacc[c] + cfg.rlag + 4)
    for _ in range(len(ops)):
        for x in ops:
            for p in x.after: p.late = min(p.late, x.late - getattr(p, "gap", 1))
    touched = set(); busy = -1; extra = 0
    def ready(x, g): return x.done is None and x.early <= g and all(p.done is not None and p.done + getattr(p, "gap", 0) <= g for p in x.after)
    for g in range(-1, len(MM)):
        if g >= 0:
            c, a, b = MM[g]
            src = q4(ACC(c)) if c in touched else "0"; touched.add(c)
            I(f"v_mfma_f32_16x16x32_bf16 {q4(ACC(c))}, {q4(reg[a])}, {q4(reg[b])}, {src}")
        n = 0
        while True:
            cand = sorted((x for x in ops if ready(x, g)), key=lambda x: x.late)
            due = [x for x in cand if x.late <= g]
            if n == 0 and g >= 0 and not due:
                cand = [x for x in cand if not (x.kind[0] == "w" and g < busy) and x.late - g < cfg.horizon]
                pick = cand[0] if cand else None
            else: pick = due[0] if due else None
            if pick is None: break
            run([pick.text]); pick.done = g; n += 1
            if pick.kind == "w128": busy = g + 4
            elif pick.kind == "w64": busy = max(busy, g + 2)
        if g >= 0: extra += max(0, n - 1)
    for x in sorted((x for x in ops if x.done is None), key=lambda x: x.late): run([x.text])
    sys.stderr.write(f"conv: {len(MM)} MFMAs, {len(ops)} side ops, {extra} share a gap\n")
    from asmlib import Ins
    live = set()
    for ln in A.lines[conv_mark:]:
        if ln.endswith(":") or ln.strip().startswith(";"): continue
        q = Ins(ln.strip())
        if q.kind == "mfma": assert "32x32" in q.mn or set(q.A + q.B) <= live, ln
        elif q.mn.startswith("ds_read") or q.mn == "v_and_b32": live |= set(q.w)
        else: live -= set(q.w)
    stamp_out()
    I("s_endpgm")

    nst[0] = nst_io
    A.label("L_io", snap_io)
    if cfg.fine == 2: stamp()
    BND = 8
    aXio, aWW, aWW3, aZ, aRr, offG, aOW, aOR = range(24, 32)
    aUW, offOut = 246, 247
    vCR1 = 189
    I(f"""s_getreg_b32 s54, hwreg(HW_REG_XCC_ID, 0, 4)
         ; column reads / transposed stores: lane = 4*j + q
         v_and_b32 v34, 3, v0
         v_lshrrev_b32 v35, 4, v0
         v_lshlrev_b32 v36, 1, v34
         v_xor_b32 v35, v35, v36
         v_and_b32 v36, 12, v0
         v_lshl_add_u32 v35, v35, 4, v36
         v_lshl_add_u32 v35, v34, 9, v35
         v_xor_b32 v36, 64, v35
         v_add_u32 v{vCRd}, s22, v35
         v_add_u32 v{vCR1}, s22, v36
         v_lshrrev_b32 v35, 2, v0
         v_lshlrev_b32 v36, 4, v34
         v_lshl_add_u32 v35, v35, 14, v36
         s_lshr_b32 s4, s5, 3
         s_lshl_b32 s4, s4, 9
         s_and_b32 s23, s5, 7
         s_lshl_b32 s23, s23, 1
         s_add_u32 s4, s4, s23
         s_lshr_b32 s23, s45, 1
         s_add_u32 s4, s4, s23
         s_lshl_b32 s4, s4, 10
         s_lshl_b32 s23, s46, 6
         s_add_u32 s4, s4, s23
         s_add_u32 s4, s4, s49
         v_add_u32 v{vST0}, s4, v35
         v_add_u32 v{vST1}, 0x40000, v{vST0}
         s_lshl_b32 s4, s48, 9
         s_lshl_b32 s23, s45, 7
         s_add_u32 s4, s4, s23
         s_add_u32 s4, s4, {WS_LF}
         v_and_b32 v34, 31, v0
         v_lshl_add_u32 v{vPL}, v34, 2, s4
         s_add_u32 s4, s49, {WS_HL}
         v_lshl_add_u32 v212, v34, 2, s4
         v_cmp_gt_u32 vcc, 32, v0
         v_cndmask_b32 v35, v212, v{vPL}, vcc
         global_load_dword v{vNR}, v35, s[42:43] sc1
         v_add_u32 v223, s22, v{vL16}
         v_lshrrev_b32 v35, 3, v0
         v_and_b32 v36, 0x70, v{vL16}
         v_lshl_add_u32 v213, v35, 10, v36
         s_lshl_b32 s4, s5, 14
         s_add_u32 s4, s4, s49
         s_lshr_b32 s23, s45, 1
         s_lshl_b32 s23, s23, 19
         s_add_u32 s23, s23, s4
         s_lshl_b32 s8, s46, 13
         s_add_u32 s23, s23, s8
         v_add_u32 v{vU0}, s23, v213
         v_add_u32 v{vU1}, 0x100000, v{vU0}
         s_lshl_b32 s23, s45, 19
         s_add_u32 s4, s4, s23
         v_add_u32 v213, s4, v213
         ; own flag word, hello words
         s_lshl_b32 s4, s48, 9
         s_bfe_u32 s23, s5, 0x20002
         s_lshl_b32 s23, s23, 7
         s_add_u32 s4, s4, s23
         s_lshr_b32 s23, s5, 4
         s_lshl_b32 s23, s23, 6
         s_add_u32 s4, s4, s23
         s_and_b32 s23, s5, 3
         s_lshl_b32 s23, s23, 4
         s_add_u32 s4, s4, s23
         s_lshl_b32 s23, s45, 2
         s_add_u32 s4, s4, s23
         s_add_u32 s4, s4, {WS_LF}
         v_mov_b32 v216, s4
         s_lshl_b32 s26, s45, 9
         s_add_u32 s4, s26, {UB + 480}
         v_lshl_add_u32 v{aUW}, v0, 3, s4
         s_lshl_b32 s4, s45, 2
         s_add_u32 s4, s4, {FLAG}
         v_mov_b32 v235, s4
         v_mov_b32 v234, 1
         v_mov_b32 v232, 0
         v_mov_b32 v233, 0
         ds_write_b32 v235, v232
         ds_write_b32 v235, v232 offset:32
         s_cmp_lg_u32 s45, 0
         s_cbranch_scc1 L_io5
         v_subrev_u32 v72, 480, v{aUW}
         ds_write_b64 v72, v[232:233]
         ds_write_b64 v72, v[232:233] offset:{USTR}""")
    A.label("L_io5")
    sL, sH, sKW, sR4, sR8, sPR = range(240, 246)
    I(f"""s_lshl_b32 s4, s45, 3
         s_add_u32 s4, s4, {PRD}
         v_mov_b32 v{sPR}, s4
         ds_write_b64 v{sPR}, v[232:233]""")
    late = f"""s_mul_i32 s23, s45, {KSTR}
         s_add_u32 s23, s23, {KB}
         """ + tap_addr(sL, sH, sKW, sR4, sR8) + f"""
         s_add_u32 s4, s47, {WS_HELLO}
         v_mov_b32 v218, s4
         v_add_u32 v{vHL}, {WS_HELLO - WS_HL}, v212
         ; cut
         s_add_u32 s9, s45, 3
         s_and_b32 s9, s9, 3
         s_lshl_b32 s4, s9, 9
         v_add_u32 v{aXio}, s4, v{aXio}
         s_mul_i32 s4, s9, 544
         v_add_u32 v{aWW}, s4, v{aWW}
         v_add_u32 v{aWW3}, s4, v{aWW3}
         s_lshl_b32 s4, s45, 10
         v_add_u32 v{aRr}, s4, v{aRr}
         s_lshl_b32 s4, s45, 12
         v_add_u32 v{offG}, s4, v{offG}
         v_add_u32 v{aOW}, s22, v{aOW}
         v_add_u32 v{aOR}, s22, v{aOR}
         ; send addresses: rows 2*lane.. of tile w -> 16-row units, gathered by workgroup 16*(w&1) + 8*h + (lane>>3)
         v_lshrrev_b32 v36, 3, v0
         v_and_b32 v37, 7, v0
         v_lshlrev_b32 v37, 3, v37
         v_lshl_add_u32 v36, v36, 14, v37
         s_lshl_b32 s4, s46, 18
         s_lshr_b32 s8, s45, 1
         s_lshl_b32 s8, s8, 19
         s_add_u32 s4, s4, s8
         s_lshr_b32 s8, s5, 1
         s_lshl_b32 s8, s8, 10
         s_add_u32 s4, s4, s8
         s_and_b32 s8, s5, 1
         s_lshl_b32 s8, s8, 6
         s_add_u32 s4, s4, s8
         s_add_u32 s4, s4, s49
         v_add_u32 v248, s4, v36
         v_add_u32 v249, 0x20000, v248
         """
    late = [t.strip() for t in late.split("\n") if t.strip() and not t.strip().startswith(";")]
    I(f"""s_add_u32 s6, s6, L_tabi-L_pc+2048
         s_addc_u32 s7, s7, 0
         s_mov_b32 s30, 0x05040100
         s_mov_b32 s31, 0x07060302
         s_sub_u32 s23, s22, {MOFS}""")
    consts()
    I("s_mov_b32 m0, s23")
    if cfg.prio: I("s_setprio 1")
    if cfg.fine == 2: stamp()
    dt_scale()
    def tile():
        I(f"ds_write_b128 v223, v[{TR}:{TR+3}]\nds_write_b128 v223, v[{TR+4}:{TR+7}] offset:1024")
        stamp()
        for Jp in range(2):
            for i in (0, 2): I(f"ds_read2_b32 v[{TR+4*Jp+i}:{TR+4*Jp+i+1}], v{(vCRd, vCR1)[Jp]} offset0:{32*i} offset1:{32*(i+1)}")
        I(f"ds_write_addtid_b32 v32 offset:{MOFS}")
    def tile2():
        I(f"""global_store_dwordx4 v{vST0}, v[{TR}:{TR+3}], s[62:63]
             global_store_dwordx4 v{vST1}, v[{TR+4}:{TR+7}], s[62:63]
             global_load_dword v215, v188, s[40:41] sc1""")
    def publish():
        stamp()
        I("s_waitcnt vmcnt(0)"); A.vm = []
        I("v_cmp_eq_u32 vcc, 0, v215\ns_cbranch_vccz L_io4")
        A.label("L_io3")
        I("s_sleep 2")
        I("global_load_dword v215, v188, s[40:41] sc1", track=False)
        I("s_waitcnt vmcnt(0)\nv_cmp_eq_u32 vcc, 0, v215\ns_cbranch_vccnz L_io3")
        A.label("L_io4")
        I(f"""v_lshl_add_u32 v219, s54, 1, v215
             s_mov_b64 exec, 1
             global_store_dword v216, v219, s[42:43]
             s_mov_b64 exec, -1""")
        stamp()
    tabl = [f"global_load_dwordx4 v[{BND+4*k}:{BND+4*k+3}], v{vL16}, s[6:7] offset:{1024*k - 2048}" for k in range(6)]
    U1, U2 = 224, 228
    uload = f"""global_load_dwordx4 v[{U1}:{U1+3}], v{vU0}, s[62:63] sc1
             global_load_dwordx4 v[{U2}:{U2+3}], v{vU1}, s[62:63] sc1"""
    def spread_check(yes):
        I("s_mov_b64 exec, 1")
        I("global_store_dword v218, v219, s[42:43] sc1", track=False)
        I(f"""s_mov_b64 exec, -1
             global_load_dword v222, v{vHL}, s[42:43] sc1
             s_cmp_gt_u32 s33, 0x40000
             s_cbranch_scc1 {yes}
             v_sub_u32 v222, v222, v215
             v_bfe_u32 v220, v222, 1, 4
             v_and_b32 v222, 0xffffffe1, v222
             v_cmp_ne_u32 s[12:13], s54, v220
             v_cmp_eq_u32 vcc, 0, v222
             s_and_b64 vcc, vcc, s[12:13]""")
        I(f"s_branch {yes}" if cfg.force_slow else f"s_cbranch_vccnz {yes}")
    def try_u():
        I("s_waitcnt vmcnt(0)"); A.vm = []
        I(f"v_cmp_ne_u32 vcc, v221, v219\ns_mov_b32 s25, 0")
        I("s_branch L_try0" if cfg.force_slow else "s_cbranch_vccnz L_try0")
        I(uload + "\ns_mov_b32 s25, 1")
        A.label("L_try0")
        stamp()
    def fetch_u():
        I("s_mov_b32 s33, 0")
        A.label("L_poll")
        I(f"global_load_dword v221, v{vPL}, s[42:43] sc1\ns_add_u32 s33, s33, 1\nv_cmp_ne_u32 vcc, v221, v219")
        if not cfg.force_slow: I("s_cbranch_vccz L_fast")
        I(f"""s_and_b32 s4, s33, 15
             s_cbranch_scc1 L_poll""")
        spread_check("L_slow")
        I("s_branch L_poll")
        A.label("L_slow")
        I(f"""s_lshl_b32 s4, s45, 18
             s_add_u32 s4, s4, s47
             v_lshl_add_u32 v222, v0, 12, s4
             s_mov_b32 s23, 0x100000""")
        for base, so in ((U1, "0"), (U2, "s23")):
            for j in range(4): I(f"buffer_load_dword v{base+j}, v222, s[56:59], {so} offen offset:{1024*j}")
        I("s_waitcnt vmcnt(0)\ns_branch L_have")
        A.vm = []
        A.label("L_fast")
        I(uload)
        A.label("L_have")
    def stage():
        for base, off in ((U1, 0), (U2, 2048)):
            I(f"""v_perm_b32 v236, v{base+1}, v{base}, s30
                  v_perm_b32 v237, v{base+3}, v{base+2}, s30
                  v_perm_b32 v238, v{base+1}, v{base}, s31
                  v_perm_b32 v239, v{base+3}, v{base+2}, s31
                  ds_write_b64 v{aUW}, v[236:237] offset:{off}
                  ds_write_b64 v{aUW}, v[238:239] offset:{off+USTR}""")
        I("ds_write_b32 v235, v234")
    S1 = merge(half(1, MOFS), red + [f"v_mul_f32 v62, s35, v{vDT}"], cfg.red_at, 3)
    first_w = min(i for i, t in enumerate(S1) if "addtid" in t)
    held = []
    if cfg.tile_at > first_w:
        held = [t for t in S1[:cfg.tile_at] if "addtid" in t]
        S1 = [t for t in S1[:cfg.tile_at] if "addtid" not in t] + S1[cfg.tile_at:]
    ta = cfg.tile_at - len(held)
    S1 = S1[:ta] + [tile] + held + S1[ta:ta + 6] + [tile2] + S1[ta + 6:]
    S1.insert(cfg.pub_at, publish)
    S1 = S1[:cfg.pub_at + 1] + merge(S1[cfg.pub_at + 1:], tabl, 1, 3)
    S1.insert(len(S1) - cfg.poll_at, f"global_load_dword v221, v{vPL}, s[42:43] sc1")
    run(with_l_reads(S1, sL, MOFS))
    if cfg.fine == 5: stamp()
    h_reads(sH)
    try_u()
    def stage_early():
        I("s_cmp_eq_u32 s25, 0\ns_cbranch_scc1 L_nost")
        stage()
        A.label("L_nost")
        A.vm = []
    I("s_waitcnt lgkmcnt(0)"); A.lg = []
    per = -(-len(late) // cfg.stage_at)
    tap_mfma(KA, 223, ["\n".join(late[per * k:per * k + per]) for k in range(cfg.stage_at)] + [stage_early] + [""] * (7 - cfg.stage_at))
    I("s_barrier")
    I(f"v_subrev_u32 v223, {SCRS}, v223\nds_read_b128 v[152:155], v223\nds_read_b128 v[156:159], v223 offset:1024")
    tap_sum(KA + 8)
    v0_, v2_, v4_, v6_ = o(8), o(9), o(10), o(11)
    I(f"v_cndmask_b32_e64 {v6_}, {v6_}, {v4_}, s[28:29]\nv_cvt_pk_bf16_f32 v{Q+17}, 0, {v4_}")
    for q, pr_, s_ in ((Q + 8, ((v4_, v2_), (v0_, v0_)), 3), (Q + 10, ((v4_, v4_), (v2_, v0_)), 0),
                       (Q + 12, ((v4_, v4_), (v4_, v2_)), 1), (Q + 14, ((v6_, v4_), (v4_, v4_)), 2)):
        wcopy(sKW, q, pr_, s_, 256)
    I(f"""v_cvt_pk_bf16_f32 v{Q+18}, {o(12)}, {o(13)}
         v_cvt_pk_bf16_f32 v{Q+19}, {o(14)}, {o(15)}
         s_mov_b64 exec, s[28:29]
         ds_write_b32 v63, v{Q+17} offset:{3*RDS + 56}
         ds_write_b32 v63, v{Q+10} offset:{3*RDS + 60}
         ds_write_b32 v63, v{Q+10} offset:{0*RDS + 52}
         ds_write_b32 v63, v{Q+17} offset:{1*RDS + 52}
         s_mov_b64 exec, -1
         ds_write_b32 v{sR4}, v{Q+18}
         ds_write_b16 v{sR8}, v{Q+19} offset:128
         ds_write_b16_d16_hi v{sR8}, v{Q+19} offset:0
         ds_write_b16 v{sR8}, v{Q+19} offset:{128+388}
         ds_write_b16_d16_hi v{sR8}, v{Q+19} offset:388
         v_perm_b32 v236, v{Q+18}, v{Q+18}, s30
         v_mov_b32 v237, 1
         s_mov_b64 exec, s[28:29]
         ds_write_b64 v{sPR}, v[236:237]
         s_mov_b64 exec, -1
         s_cmp_eq_u32 s25, 1
         s_cbranch_scc1 L_join""")
    fetch_u()
    I("s_waitcnt vmcnt(0)"); A.vm = []
    stage()
    A.label("L_join")
    stamp()
    if cfg.prio: I(f"s_setprio {0 if cfg.wlow else 1}")
    I(f"""v_add_u32 v76, 0x4000, v{offG}
         s_lshl_b32 s4, s45, 5
         v_mov_b32 v78, s4""")
    GQ = 128
    def gather(second=True):
        I(f"""global_load_dword v{GQ+4}, v78, s[40:41] sc1
              global_load_dwordx2 v[{GQ}:{GQ+1}], v{offG}, s[42:43] sc1
              global_load_dwordx2 v[{GQ+2}:{GQ+3}], v{offG}, s[42:43] offset:2048 sc1""")
        if second:
            I(f"""global_load_dword v{GQ+10}, v78, s[40:41] offset:128 sc1
                  global_load_dwordx2 v[{GQ+6}:{GQ+7}], v76, s[42:43] sc1
                  global_load_dwordx2 v[{GQ+8}:{GQ+9}], v76, s[42:43] offset:2048 sc1""")
    I(f"s_cmp_lg_u32 s45, 1\ns_cbranch_scc1 L_uall\nds_write_b64 v{aZ}, v[232:233]\ns_branch L_uall")
    A.label("L_uall0")
    I("s_sleep 1")
    A.label("L_uall")
    I(f"ds_read_b128 v[116:119], v{vFL}")
    I("v_min_u32 v116, v116, v117\nv_min3_u32 v116, v116, v118, v119\nv_cmp_eq_u32 vcc, 0, v116\ns_cbranch_vccnz L_uall0")
    I(f"""s_cmp_lg_u32 s45, 0
         s_cbranch_scc1 L_gpub
         s_mov_b64 exec, 15
         v_lshl_add_u32 v72, v0, 2, v235
         ds_read_b32 v214, v72 offset:48
         s_lshl_b32 s4, s44, 7
         s_add_u32 s4, s4, {WS_G}
         v_lshl_add_u32 v217, v0, 3, s4
         s_waitcnt lgkmcnt(0)""")
    A.lg = []
    I("global_store_dwordx2 v217, v[214:215], s[42:43] sc1", track=False)
    I("s_mov_b64 exec, -1")
    A.label("L_gpub")
    I(f"""v_mov_b32 v116, -1
         v_mov_b32 v117, -1
         v_mov_b32 v118, -1
         v_mov_b32 v119, -1
         v_add_u32 v121, 0x2000, v213
         global_store_dwordx4 v213, v[116:119], s[62:63]
         global_store_dwordx4 v121, v[116:119], s[62:63]""")
    I(f"""ds_read_b128 v[80:83], v{aXio}
         ds_read_b128 v[84:87], v{aXio} offset:{USTR}
         s_lshr_b32 s4, s45, 1
         s_sub_u32 s4, 5, s4
         s_sub_u32 s4, s4, s9
         s_mul_i32 s23, s46, {USTR}
         s_lshl_b32 s8, s4, 9
         s_add_u32 s23, s23, s8
         v_add_u32 v72, s23, v{aXio}
         ds_read_b128 v[88:91], v72
         s_mul_i32 s23, s46, {WSTR}
         s_mul_i32 s8, s4, 544
         s_add_u32 s23, s23, s8
         v_add_u32 v73, s23, v{aWW}
         v_add_u32 v75, s23, v{aWW3}
         s_mov_b32 s33, 0""")
    units = [(0, (aWW, aWW3), 0, a) for a in range(4)] + [(1, (aWW, aWW3), WSTR, a) for a in range(4)] + [(2, (73, 75), 0, a) for a in range(2)]
    for u, (n, ad, off, a) in enumerate(units):
        I(f"v_mfma_f32_16x16x32_bf16 v[{140+4*u}:{143+4*u}], v[{BND+4*a}:{BND+4*a+3}], v[{80+4*n}:{83+4*n}], 0")
    if cfg.gather_early: gather()
    I("s_mov_b32 s27, s45")
    if cfg.wout_after >= 0:
        I("s_branch L_wo1")
        A.label("L_wo0")
        I("s_sleep 2")
        A.label("L_wo1")
        I(f"ds_read_b32 v116, v235 offset:{PRG + 16*cfg.wout_after - FLAG}\nv_cmp_eq_u32 vcc, 0, v116\ns_cbranch_vccnz L_wo0")
    if cfg.prio and cfg.wout_hi: I("s_setprio 1")
    for u, (n, ad, off, a) in enumerate(units):
        r = 140 + 4 * u
        I(f"v_cvt_pk_bf16_f32 v{r}, v{r}, v{r+1}\nv_cvt_pk_bf16_f32 v{r+1}, v{r+2}, v{r+3}")
        I(f"ds_write_b64 v{ad[a == 1]}, v[{r}:{r+1}] offset:{off + (W5O, W3O, W9O, W7O)[a]}")
    I(f"s_waitcnt vmcnt({6 if cfg.gather_early else 0})"); A.vm = A.vm[-6:] if cfg.gather_early else []
    I("ds_write_b32 v235, v234 offset:32\ns_cmp_lg_u32 s45, 0\ns_cbranch_scc1 L_hib")
    A.label("L_wall")
    I(f"""ds_read_b128 v[116:119], v{vFL} offset:32
         v_min_u32 v116, v116, v117
         v_min3_u32 v116, v116, v118, v119
         v_cmp_eq_u32 vcc, 0, v116
         s_cbranch_vccnz L_wall
         s_mov_b64 exec, 1
         v_subrev_u32 v72, {WS_HELLO - WS_HL}, v218""")
    I("global_store_dword v72, v219, s[42:43]", track=False)
    I("s_mov_b64 exec, -1")
    A.label("L_hib")
    if not cfg.gather_early: gather()
    if cfg.prio: I(f"s_setprio {cfg.sprio}")
    stamp()
    if cfg.nofinal: I("s_endpgm")
    I(f"""         s_mov_b32 s25, 0
         global_load_dword v139, v212, s[42:43] sc1
         s_waitcnt vmcnt(0)""")
    A.vm = []
    A.label("L_mode")
    I("v_cmp_ne_u32 vcc, v139, v219")
    if not cfg.force_slow: I("s_cbranch_vccz L_mode1")
    I(f"""s_add_u32 s33, s33, 1
         s_sleep 2
         global_load_dword v139, v212, s[42:43] sc1
         s_and_b32 s4, s33, 31
         s_waitcnt vmcnt(0)
         s_cbranch_scc1 L_mode
"""); A.vm = []
    spread_check("L_spread")
    I("s_branch L_mode")
    A.vm = []
    A.label("L_mode1")
    I("s_mov_b32 s25, 1\ns_branch L_fin_loop")
    A.label("L_spread")
    I(f"""s_lshl_b32 s4, s45, 18
         s_add_u32 s4, s4, s47
         v_lshl_add_u32 v{offOut}, v0, 11, s4
         v_add_u32 v116, {WS_CL - WS_HELLO}, v218
         v_add_u32 v117, {WS_CL - WS_HELLO}, v{vHL}
         s_cmp_lg_u32 s45, 0
         s_cbranch_scc1 L_clean
         buffer_wbl2 sc1
         s_waitcnt vmcnt(0)
         s_mov_b64 exec, 1
         global_store_dword v116, v215, s[42:43] sc1
         s_mov_b64 exec, -1""")
    A.label("L_clean")
    I(f"""global_load_dword v118, v117, s[42:43] sc1
         s_add_u32 s33, s33, 1
         s_cmp_gt_u32 s33, 0x80000
         s_cbranch_scc1 L_fin_loop
         s_waitcnt vmcnt(0)
         v_cmp_ne_u32 vcc, v118, v215
         s_cbranch_vccnz L_clean""")
    A.vm = []
    A.label("L_fin_loop")
    I(f"""v_cmp_ne_u32 s[34:35], v{GQ+1}, v{GQ+4}
         v_cmp_ne_u32 s[36:37], v{GQ+3}, v{GQ+4}
         v_cmp_eq_u32 vcc, 0, v{GQ+4}
         s_or_b64 s[34:35], s[34:35], s[36:37]
         s_or_b64 vcc, vcc, s[34:35]
         s_cbranch_vccz L_gok
         s_add_u32 s33, s33, 1
         s_cmp_gt_u32 s33, 0x40000
         s_cbranch_scc1 L_gok
         s_sleep {cfg.gsleep}""")
    gather(False)
    I("s_waitcnt vmcnt(0)\ns_branch L_fin_loop")
    A.label("L_gok")
    A.vm = []
    if cfg.stamps:
        I("s_cmp_ge_u32 s27, 4\ns_cbranch_scc1 L_gok2"); stamp(); A.label("L_gok2")
    gq = GQ
    for i in range(4):
        I(f"v_and_b32 v{96+i}, 0xffff0000, v{gq+2*(i>>1)}" if i & 1 else f"v_lshlrev_b32 v{96+i}, 16, v{gq+2*(i>>1)}")
    for i in range(4): I(f"v_sub_f32 v{100+i}, 1.0, v{96+i}")
    I("v_cvt_pk_bf16_f32 v101, v100, v101\nv_cvt_pk_bf16_f32 v103, v102, v103")
    I("v_lshlrev_b32 v100, 16, v101\nv_and_b32 v101, 0xffff0000, v101\nv_lshlrev_b32 v102, 16, v103\nv_and_b32 v103, 0xffff0000, v103")
    I(f"""v_add_u32 v104, 0x20000, v{offOut}
         s_lshl_b32 s4, s27, 4
         s_add_u32 s4, s4, {PRG}
         v_mov_b32 v122, s4
         s_min_u32 s4, s4, {PRG + 16*cfg.ptile}
         v_mov_b32 v123, s4
         s_branch L_prog1""")
    A.label("L_prog")
    I(f"s_sleep {cfg.psleep}")
    A.label("L_prog1")
    I("""ds_read_b128 v[116:119], v123
         v_min_u32 v116, v116, v117
         v_min3_u32 v116, v116, v118, v119
         v_cmp_eq_u32 vcc, 0, v116
         s_cbranch_vccnz L_prog""")
    A.label("L_prog2")
    I("ds_read_b128 v[116:119], v122")
    for h in range(2):
        for n in range(4): I(f"ds_read_b64 v[{80+4*n+2*h}:{81+4*n+2*h}], v{aRr} offset:{SCRW*n + 512*h}")
    I("v_min_u32 v116, v116, v117\nv_min3_u32 v116, v116, v118, v119\nv_cmp_eq_u32 vcc, 0, v116\ns_cbranch_vccnz L_prog2")
    I("s_cmp_eq_u32 s25, 1\ns_cbranch_scc1 L_send")
    sn = A.snapshot()
    def mix(i):
        for ch in range(2): I(f"v_mul_f32 v{80+4*ch+i}, v{96+i}, v{80+4*ch+i}")
        for ch in range(2): I(f"v_fmac_f32 v{80+4*ch+i}, v{100+i}, v{88+4*ch+i}")
        if i == 0 and cfg.stamps: I(f"{'s_memtime' if cfg.cycles else 's_memrealtime'} s[94:95]", track=False)
        I(f"v_cvt_pk_bf16_f32 v{112+i}, v{80+i}, v{84+i}")
    for i in range(4):
        mix(i)
        I(f"global_store_dword v{(offOut, 104)[i >> 1]}, v{112+i}, s[62:63] offset:{1024*(i & 1)} sc0 sc1")
    I("s_branch L_next")
    A.label("L_send", sn)
    for i in range(4):
        mix(i)
        I(f"v_min_u32 v{112+i}, -2, v{112+i}")
        if i & 1: I(f"global_store_dwordx2 v{248 + (i >> 1)}, v[{111+i}:{112+i}], s[62:63]")
    A.label("L_next")
    for i in range(5): I(f"v_mov_b32 v{gq+i}, v{gq+6+i}")
    I(f"""v_mov_b32 v{offG}, v76
         v_add_u32 v78, 128, v78
         v_add_u32 v{aRr}, 4096, v{aRr}
         v_add_u32 v{offOut}, 0x100000, v{offOut}
         v_add_u32 v248, 0x100000, v248
         v_add_u32 v249, 0x100000, v249
         s_add_u32 s27, s27, 4
         s_cmp_lt_u32 s27, 8""")
    if cfg.stamps:
        I("s_cbranch_scc0 L_two")
        if nst[0] < 15: I(f"s_waitcnt lgkmcnt(0)\ns_mov_b32 s{64+2*nst[0]}, s94"); nst[0] += 1
        stamp()
        I("s_branch L_fin_loop")
        A.label("L_two")
        if nst[0] < 15: I(f"s_waitcnt lgkmcnt(0)\ns_mov_b32 s{64+2*nst[0]}, s94"); nst[0] += 1
        stamp()
    else: I("s_cbranch_scc1 L_fin_loop")
    I("s_cmp_eq_u32 s25, 0\ns_cbranch_scc1 L_fin_out")
    A.vm = []
    A.label("L_recv")
    I(f"""global_load_dwordx4 v[80:83], v213, s[62:63] sc1
         global_load_dwordx4 v[84:87], v121, s[62:63] sc1
         s_add_u32 s33, s33, 1
         s_cmp_gt_u32 s33, 0x100000
         s_cbranch_scc1 L_fin_out
         ds_write_b128 v{aOW}, v[80:83]
         v_max3_u32 v116, v80, v81, v82
         ds_write_b128 v{aOW}, v[84:87] offset:1088
         v_max3_u32 v117, v84, v85, v86
         v_max3_u32 v116, v116, v83, v87
         v_max_u32 v116, v116, v117
         v_cmp_eq_u32 vcc, -1, v116
         s_cbranch_vccnz L_recv""")
    stamp()
    for m in range(2):
        for i in (0, 2): I(f"ds_read2_b32 v[{88+4*m+i}:{89+4*m+i}], v{aOR} offset0:{16*i + 8*m} offset1:{16*i + 16 + 8*m}")
    I("global_store_dwordx4 v213, v[88:91], s[62:63]\nglobal_store_dwordx4 v121, v[92:95], s[62:63]")
    A.label("L_fin_out")
    if cfg.stamps:
        stamp(); I("s_waitcnt vmcnt(0)"); stamp()
    stamp_out()
    A.label("L_end")
    I("s_endpgm")
    tc, ti = tables()
    A.raw(".p2align 7\nL_tabc:")
    for i in range(0, len(tc), 8): A.raw(".long " + ", ".join("0x%x" % x for x in tc[i:i + 8]))
    A.raw("L_tabi:")
    for i in range(0, len(ti), 8): A.raw(".long " + ", ".join("0x%x" % x for x in ti[i:i + 8]))
    A.raw("L_fin:")
    A.raw(f""".section .rodata,"a"
.p2align 6
.amdhsa_kernel {KN}_kernel
  .amdhsa_next_free_vgpr 256
  .amdhsa_next_free_sgpr 102
  .amdhsa_accum_offset 256
  .amdhsa_group_segment_fixed_size 0
  .amdhsa_kernarg_size 144
  .amdhsa_user_sgpr_count 2
  .amdhsa_user_sgpr_kernarg_segment_ptr 1
  .amdhsa_system_sgpr_workgroup_id_x 1
.end_amdhsa_kernel""")
    lint(A.lines)
    sys.stderr.write(f"instructions {A.nins}, nops {A.nops}, lds {LDS_BYTES}\n")
    if cfg.align:
        A.lines, wid, nop = align8(A.text().split("\n"))
        sys.stderr.write(f"alignment: {wid} widened, {nop} nops\n")
    return A.text()

if __name__ == "__main__":
    out = sys.argv[1]
    for kv in sys.argv[2:]:
        k, v = kv.split("="); setattr(Cfg, k, eval(v))
    open(out, "w").write(gen())
```
